```python
import torch

def _softmax(x, axis=-1):
    return torch.softmax(x, dim=axis)
def _gelu(x):
    return torch.nn.functional.gelu(x, approximate="tanh")
def _silu(x):
    return torch.nn.functional.silu(x)
def _sigmoid(x):
    return torch.sigmoid(x)
def _layernorm(x, axis=-1, eps=1e-5):
    m = x.mean(dim=axis, keepdim=True)
    v = x.var(dim=axis, keepdim=True, unbiased=False)
    return (x - m) / torch.sqrt(v + eps)
def _scatter_add(tgt, idx, src, axis=0):
    return tgt.clone().index_add_(axis, idx, src)
def _segment_sum(src, seg, n):
    out = torch.zeros((n,) + src.shape[1:], dtype=src.dtype)
    return out.index_add_(0, seg, src)
def _pad(x, pw):
    flat = tuple(v for pair in reversed(pw) for v in pair)
    return torch.nn.functional.pad(x, flat)

kernel_name = 'gather_scatter__cheap_equivariant_egnn__graph'

def setup_inputs():

    _w = (lambda a: (lambda t: t.to(torch.bfloat16) if t.is_floating_point() else t)(torch.as_tensor(a)))
    N, deg, D, De = 10000, 32, 128, max(0, 1)
    E = N * deg
    return {
        "h": _w((lambda *s: torch.randn(*s, dtype=torch.bfloat16) * 0.2)(N, D)),
        "pos": _w((lambda *s: torch.randn(*s, dtype=torch.bfloat16) * 0.8)(N, 3)),
        "e_attr": _w((lambda *s: torch.randn(*s, dtype=torch.bfloat16) * 0.8)(E, De)),
        "src": _w((lambda lo, hi, *s: torch.randint(lo, hi, s))(0, N, E).to(torch.int64)),
        "dst": _w((lambda lo, hi, *s: torch.randint(lo, hi, s))(0, N, E).to(torch.int64)),
        "w_e": _w(0.1 * (lambda *s: torch.randn(*s, dtype=torch.bfloat16) * 0.8)(2 * D + 1 + De, D)),
        "w_x": _w(0.1 * (lambda *s: torch.randn(*s, dtype=torch.bfloat16) * 0.2)(D, 1)),
        "w_h": _w(0.1 * (lambda *s: torch.randn(*s, dtype=torch.bfloat16) * 0.2)(2 * D, D)),
    }

def reference(h, pos, e_attr, src, dst, w_e, w_x, w_h):
    N, D = h.shape[0], h.shape[1]
    diff = pos[dst] - pos[src]
    dist2 = torch.sum(diff * diff, axis=-1, keepdims=True)
    e_in = torch.concatenate([h[dst], h[src], dist2, e_attr], axis=-1)
    m_ij = _silu(e_in @ w_e)
    coord_scale = m_ij @ w_x
    pos_new = pos + _segment_sum(diff * coord_scale, dst, N)
    m_i = _segment_sum(m_ij, dst, N)
    h_new = h + _silu(torch.concatenate([h, m_i], axis=-1) @ w_h)
    return h_new, pos_new
```

```python
import re

TRANS = ("v_exp_f32", "v_rcp_f32", "v_log_f32", "v_rsq_f32", "v_sqrt_f32", "v_exp_f16", "v_rcp_f16")

def regs_of(tok):
    tok = tok.strip()
    tok = tok.lstrip("-").strip("|")
    m = re.fullmatch(r"([vsa])\[(\d+):(\d+)\]", tok)
    if m:
        return {(m.group(1), i) for i in range(int(m.group(2)), int(m.group(3)) + 1)}
    m = re.fullmatch(r"([vsa])(\d+)", tok)
    if m:
        return {(m.group(1), int(m.group(2)))}
    if tok == "vcc":
        return {("s", 106), ("s", 107)}
    if tok == "m0":
        return {("m", 0)}
    if tok == "exec":
        return {("x", 0)}
    return set()

class I:
    def __init__(self, text):
        self.text = text
        t = text.split(";")[0].strip()
        self.label = t.endswith(":")
        self.op = t.split()[0] if t and not self.label else ""
        rest = t[len(self.op):].strip()
        ops, depth, cur = [], 0, ""
        for ch in rest:
            if ch == "[": depth += 1
            if ch == "]": depth -= 1
            if ch == "," and depth == 0:
                ops.append(cur.strip()); cur = ""
            else:
                cur += ch
        if cur.strip():
            ops.append(cur.strip())
        mods = ""
        if ops:
            parts = ops[-1].split(None, 1)
            ops[-1] = parts[0]
            mods = parts[1] if len(parts) > 1 else ""
        self.ops, self.mods = ops, mods
        op = self.op
        self.mfma = op.startswith("v_mfma") or op.startswith("v_smfmac")
        self.valu = op.startswith("v_") and not self.mfma
        self.trans = op.replace("_e32", "").replace("_e64", "") in TRANS
        self.dot = op.startswith("v_dot")
        self.ds = op.startswith("ds_")
        self.vmem = op.startswith("buffer_") or op.startswith("global_")
        self.salu = op.startswith("s_")
        self.dpp = "_dpp" in op or "row_" in mods or "quad_perm" in mods
        self.ldsdma = self.vmem and (" lds" in (" " + mods) or "_lds_" in op)
        self.wr, self.rd = set(), set()
        R = [regs_of(o) for o in ops]
        if self.mfma:
            self.wr = R[0]; self.a = R[1]; self.b = R[2]; self.c = R[3] if len(R) > 3 else set()
            self.rd = self.a | self.b | self.c
            self.passes = 8 if "32x32x16" in op or "32x32x8" in op else (4 if "16x16x32" in op else 16)
        elif self.valu:
            if op == "v_nop":
                pass
            else:
                self.wr = R[0]
                for r in R[1:]: self.rd |= r
                if "fmac" in op or "dot2c" in op or self.dpp or "writelane" in op: self.rd |= R[0]
        elif self.ds:
            if op.startswith("ds_read") or "_rtn" in op or "permute" in op:
                self.wr = R[0]
                for r in R[1:]: self.rd |= r
            else:
                for r in R: self.rd |= r
        elif self.vmem:
            if "store" in op or self.ldsdma:
                for r in R: self.rd |= r
            else:
                self.wr = R[0]
                for r in R[1:]: self.rd |= r
        elif self.salu:
            if op.startswith("s_cmp") or op.startswith("s_cbranch") or op in ("s_waitcnt", "s_nop", "s_barrier", "s_branch", "s_endpgm", "s_setprio"):
                for r in R: self.rd |= r
            elif R:
                self.wr = R[0]
                for r in R[1:]: self.rd |= r
        self.states = 0 if (self.label or not op) else 1
        if op == "s_nop":
            self.states = int(ops[0]) + 1

def need(p, c):
    n = 0
    vw = {r for r in p.wr if r[0] in "va"}
    sw = {r for r in p.wr if r[0] == "s"}
    if p.valu:
        if c.mfma and (vw & c.rd): n = max(n, 2)
        if p.trans and c.valu and not c.trans and (vw & (c.rd | c.wr)): n = max(n, 1)
        if p.trans and (c.ds or c.vmem) and (vw & c.rd): n = max(n, 1)
        if c.valu and (sw & c.rd):
            n = max(n, 2)
            if ("readlane" in c.op or "writelane" in c.op) and (sw & regs_of(c.ops[-1])): n = max(n, 4)
        if c.vmem and (sw & c.rd): n = max(n, 5)
        if c.valu and ("readlane" in c.op or "readfirstlane" in c.op) and (vw & c.rd): n = max(n, 1)
        if c.valu and (c.dpp or "permlane" in c.op) and (vw & c.rd): n = max(n, 2)
        if p.dot and (vw & (c.rd | c.wr)):
            if c.op == p.op and not (vw & (regs_of(c.ops[1]) | regs_of(c.ops[2]))): pass
            else: n = max(n, 3)
        if ("op_sel" in p.mods and not p.op.startswith("v_pk")) or "sdwa" in p.op:
            if c.valu and (vw & (c.rd | c.wr)): n = max(n, 1)
    if p.mfma:
        big = {4: 8, 8: 12, 16: 20}[p.passes]
        if c.mfma:
            if vw & (c.a | c.b): n = max(n, big)
            if vw & c.c:
                if not (c.c == vw and c.passes == p.passes): n = max(n, big - 2)
            elif vw & c.wr: n = max(n, big - 2)
        elif (c.valu or c.ds or c.vmem) and (vw & (c.rd | c.wr)): n = max(n, big)
        if c.valu and (p.c & c.wr): n = max(n, p.passes - 1)
    if p.salu and ("m", 0) in p.wr and c.ldsdma: n = max(n, 1)
    if p.vmem and "store" in p.op and ("x4" in p.op or "x3" in p.op):
        data = regs_of(p.ops[0]) if p.op.startswith("buffer") else regs_of(p.ops[1])
        if data & c.wr: n = max(n, 2)
    return n

class Asm:
    def __init__(self):
        self.ins = []
        self.nops = 0
    def __call__(self, text):
        for line in text.strip().split("\n"):
            line = line.strip()
            if not line or line.startswith(";"):
                continue
            if line.startswith("@"):
                self.macro(self, line[1:].split())
                continue
            self.add(I(line))
    def add(self, c):
        if c.op and not c.label:
            dist, worst = 0, 0
            for p in reversed(self.ins[-40:]):
                if dist >= 20: break
                if p.op in ("s_branch", "s_endpgm"): break
                worst = max(worst, need(p, c) - dist)
                dist += p.states
            if worst > 0:
                self.ins.append(I(f"s_nop {worst-1}"))
                self.nops += 1
        self.ins.append(c)
    def check_edge(self, frm_idx, label):
        tgt = next(i for i, x in enumerate(self.ins) if x.label and x.text.split(":")[0].strip() == label)
        seq = self.ins[max(0, frm_idx - 30): frm_idx + 1]
        n0 = len(seq)
        seq = seq + self.ins[tgt: tgt + 30]
        for j in range(n0, len(seq)):
            dist = 0
            if seq[j].op in ("s_branch",): break
            for i in range(j - 1, -1, -1):
                if i < n0 and need(seq[i], seq[j]) > dist:
                    raise AssertionError(f"hazard across edge {label}: {seq[i].text} -> {seq[j].text}")
                dist += seq[i].states
    def check_all_edges(self):
        for i, x in enumerate(self.ins):
            if x.op.startswith("s_cbranch") or x.op == "s_branch":
                self.check_edge(i, x.ops[0])
    def text(self):
        return "\n".join((x.text if x.label else "    " + x.text) for x in self.ins) + "\n"
```

```python
from asmlib import Asm
from gen import *

CAPT = 48
X0 = 0
CNT = 49152
CA = CNT + 256
S0 = CNT + 1024
SL0 = 67584
SLOT = 4192
POS = SL0 + 8 * SLOT
MB = POS + 4 * SLOT
MSTR = 272
LDS2 = POS + 61440
assert S0 + (4 * CAPT + 80) * 64 == SL0 and LDS2 <= 163840

T0, T1, E0, E1, AC0, AC1, AF, PB, SF, ID, EXT, XF, ON, IX = 0, 16, 32, 48, 64, 80, 96, 112, 120, 128, 136, 144, 148, 152
VL, VX, VA, VSC, VLO, VHI, VLO2, VHI2 = 160, 161, 162, 163, 164, 165, 166, 167

def gen_k2():
    A = Asm()
    A("k2_kernel:")
    A(f"""
    s_load_dwordx16 s[4:19], s[0:1], 0
    s_load_dwordx2 s[20:21], s[0:1], 64
    s_load_dwordx2 s[22:23], s[0:1], 80
    s_cmp_ge_u32 s2, 250
    s_cbranch_scc1 L2_exit
    v_lshrrev_b32 v1, 6, v0
    v_lshlrev_b32 v96, 4, v0
    v_lshlrev_b32 v97, 3, v0
    v_readfirstlane_b32 s24, v1
    v_lshlrev_b32 v98, 2, v0
    s_mul_i32 s3, s2, 16000
    s_mul_i32 s72, s2, 8000
    s_add_u32 s72, s72, {EAC_OFF}
    s_mov_b32 s73, 12288
    s_mov_b32 s74, 6144
    s_mov_b32 s29, 0
    s_mov_b32 s30, 0
    s_and_b32 s25, s24, 1
    s_bfe_u32 s26, s24, 0x10001
    s_lshr_b32 s27, s24, 2
    s_lshl_b32 s28, s26, 1
    s_add_u32 s28, s28, s27
    s_sub_u32 s28, s28, 1
    s_cmp_eq_u32 s27, 0
    s_cselect_b32 s28, 4, s28
    s_mul_i32 s31, s24, {SLOT}
    s_add_u32 s31, s31, {SL0}
    v_and_b32 v99, 63, v0
    s_waitcnt lgkmcnt(0)
    """)
    srd(A, 32, 22, 23, 16000, add="s3")
    A("buffer_load_dwordx4 v[2:5], v96, s[32:35], 0 offen")
    A("buffer_load_dwordx2 v[6:7], v97, s[32:35], s73 offen")
    srd(A, 36, 22, 23, 8000, add="s72")
    A("buffer_load_dwordx2 v[8:9], v97, s[36:39], 0 offen")
    A("buffer_load_dword v10, v98, s[36:39], s74 offen")
    srd(A, 44, 6, 7, 60000)
    srd(A, 48, 22, 23, WS_SIZE)
    A(f"""
    s_lshl_b32 s75, s25, 7
    s_add_u32 s75, s75, {BT_OFF}
    """)
    srd(A, 40, 22, 23, 10000, add="s75", stride=256)
    A(f"""
    v_and_b32 v100, 31, v99
    v_lshrrev_b32 v101, 5, v99
    s_mul_i32 s76, s2, 5
    s_add_u32 s76, s76, s28
    s_lshl_b32 s76, s76, 11
    s_sub_u32 s77, {EXTC_OFF - AT_OFF}, s76
    v_mul_u32_u24 v102, s77, v101
    v_lshl_add_u32 v102, v100, 4, v102
    s_lshl_b32 s77, s25, 10
    s_add_u32 s76, s76, s77
    s_add_u32 s76, s76, {AT_OFF}
    """)
    for i in range(32):
        A(f"v_mov_b32 v{AC0+i}, 0")
    A(f"""
    L2_batch:
    v_lshlrev_b32 v103, 4, v99
    s_mul_i32 s78, s24, 5120
    s_add_u32 s79, s78, {POS}
    s_mov_b32 m0, s79
    s_add_u32 s80, s78, 4096
    buffer_load_dwordx4 v103, s[44:47], s78 offen lds
    buffer_load_dwordx4 v103, s[44:47], s78 offen offset:1024 lds
    buffer_load_dwordx4 v103, s[44:47], s78 offen offset:2048 lds
    buffer_load_dwordx4 v103, s[44:47], s78 offen offset:3072 lds
    s_add_u32 s79, s79, 4096
    s_mov_b32 m0, s79
    s_lshr_b32 s81, s2, 3
    buffer_load_dwordx4 v103, s[44:47], s80 offen lds
    buffer_load_dwordx4 v[{EXT}:{EXT+3}], v102, s[48:51], s76 offen
    buffer_load_dwordx4 v[{EXT+4}:{EXT+7}], v102, s[48:51], s76 offen offset:512
    s_min_u32 s81, s81, 30
    s_mul_i32 s81, s81, 82944
    s_add_u32 s81, s81, {BT_OFF}
    v_lshlrev_b32 v104, 3, v96
    buffer_load_dword v105, v104, s[48:51], s81 offen
    v_and_b32 v16, 1, v99
    v_mul_u32_u24 v14, 10000, v16
    v_mov_b32 v12, 0
    v_mov_b32 v13, 0
    v_mov_b32 v15, 0
    v_mov_b32 v16, 0
    v_mov_b32 v17, 0
    v_mov_b32 v18, 0
    v_mov_b32 v19, 0
    ds_write_b128 v96, v[12:15]
    ds_write_b128 v96, v[12:15] offset:12288
    ds_write_b128 v96, v[12:15] offset:24576
    ds_write_b128 v96, v[12:15] offset:36864
    ds_write_b128 v96, v[16:19] offset:{CNT}
    ds_write_b64 v97, v[16:17] offset:{CNT+12288}
    """)
    A(f"""
    v_lshlrev_b32 v20, 3, v101
    v_sub_u32 v20, v100, v20
    v_and_b32 v21, 1, v20
    v_lshlrev_b32 v21, 4, v21
    v_mov_b32 v22, 0x3f80
    v_lshlrev_b32 v21, v21, v22
    v_ashrrev_i32 v20, 1, v20
    """)
    for r in range(8):
        A(f"v_cmp_eq_u32 s[{60+2*r}:{61+2*r}], {r if r < 4 else r+4}, v20")
    for r in range(8):
        A(f"v_cndmask_b32 v{ID+r}, 0, v21, s[{60+2*r}:{61+2*r}]")
    for r in range(4):
        A(f"v_mov_b32 v{ON+r}, 0x3e803e80")
    A(f"""
    v_and_b32 v20, 7, v99
    v_bfe_u32 v21, v99, 4, 1
    v_xor_b32 v20, v20, v21
    v_lshlrev_b32 v{IX+1}, 4, v20
    v_lshlrev_b32 v{IX+3}, 4, v20
    v_lshlrev_b32 v{IX+5}, 4, v20
    v_lshlrev_b32 v{IX+7}, 4, v20
    """)
    pq = [0, 3, 6, 5, 2, 1, 4, 7]
    pqk = sum(v << (4 * g) for g, v in enumerate(pq))
    q = [0, 3, 5, 6, 1, 2, 4, 7]
    qinv = [q.index(i) for i in range(8)]
    qik = sum(v << (4 * g) for g, v in enumerate(qinv))
    A(f"""
    v_lshrrev_b32 v20, 3, v99
    v_lshlrev_b32 v20, 2, v20
    s_mov_b32 s82, {pqk}
    v_bfe_u32 v20, s82, v20, 3
    v_lshlrev_b32 v106, 7, v20
    v_and_b32 v20, 28, v100
    s_mov_b32 s82, {qik}
    v_bfe_u32 v20, s82, v20, 3
    v_bfe_u32 v21, v20, 1, 1
    v_xor_b32 v21, v21, v101
    v_lshlrev_b32 v21, 4, v21
    v_lshl_add_u32 v21, v20, 7, v21
    v_and_b32 v20, 3, v100
    v_mul_u32_u24 v20, 1056, v20
    v_add3_u32 v{VA}, v20, v21, s31
    v_and_b32 v20, 19, v100
    v_bfe_u32 v21, v100, 2, 1
    v_lshl_or_b32 v20, v21, 3, v20
    v_bfe_u32 v21, v100, 3, 1
    v_lshl_or_b32 v20, v21, 2, v20
    v_lshlrev_b32 v20, 5, v20
    v_lshl_add_u32 v107, v101, 4, v20
    v_mov_b32 v11, 1
    v_lshlrev_b32 v108, 2, v99
    """)
    for i in range(12):
        A(f"v_mov_b32 v{32+i}, 0")
    A(f"""
    s_waitcnt lgkmcnt(0)
    s_barrier
    s_waitcnt vmcnt(8)
    """)
    for j in range(6):
        A(f"v_cmp_ne_u32 s[{60+2*j}:{61+2*j}], 0, v{2+j}")
        A(f"v_lshrrev_b32 v{20+j}, 16, v{2+j}")
    for j in range(6):
        A(f"s_mov_b64 exec, s[{60+2*j}:{61+2*j}]")
        A(f"ds_add_rtn_u32 v{26+j}, v{20+j}, v11 offset:{CNT}")
    A(f"""
    s_mov_b64 exec, -1
    s_or_b32 s72, s66, s67
    s_and_b32 s72, s72, 0x80808080
    s_or_b32 s73, s70, s71
    s_and_b32 s73, s73, 0x80008000
    s_or_b32 s72, s72, s73
    s_cbranch_scc0 L2_noovf
    ds_write_b32 v12, v11 offset:{CNT}
    L2_noovf:
    s_mov_b32 s83, 0x07060100
    s_mov_b32 s84, 0x07060302
    """)
    for j in range(6):
        A(f"v_and_b32 v{44+2*j}, 0xffff, v{2+j}")
        A(f"v_perm_b32 v{45+2*j}, v{2+j}, v{8+j//2}, s{83 + (j&1)}")
    A(f"""
    s_waitcnt lgkmcnt(0)
    s_barrier
    ds_read_b32 v56, v108 offset:{CNT}
    s_waitcnt lgkmcnt(0)
    s_nop 1
    v_add_u32_dpp v57, v56, v56 row_shr:1 row_mask:0xf bank_mask:0xf bound_ctrl:0
    v_readlane_b32 s85, v56, 0
    v_add_u32_dpp v57, v57, v57 row_shr:2 row_mask:0xf bank_mask:0xf bound_ctrl:0
    v_add_u32_dpp v57, v57, v57 row_shr:4 row_mask:0xf bank_mask:0xf bound_ctrl:0
    v_add_u32_dpp v57, v57, v57 row_shr:8 row_mask:0xf bank_mask:0xf bound_ctrl:0
    v_add_u32_dpp v57, v57, v57 row_bcast:15 row_mask:0xa bank_mask:0xf
    v_add_u32_dpp v57, v57, v57 row_bcast:31 row_mask:0xc bank_mask:0xf
    v_readlane_b32 s72, v57, 15
    v_readlane_b32 s73, v57, 23
    v_readlane_b32 s74, v57, 31
    v_readlane_b32 s75, v57, 39
    v_readlane_b32 s77, v57, 47
    v_sub_u32 v57, v57, v56
    s_sub_u32 s77, s77, s75
    s_sub_u32 s75, s75, s74
    s_sub_u32 s74, s74, s73
    s_sub_u32 s73, s73, s72
    """)
    for i, r in enumerate((72, 73, 74, 75)):
        A(f"s_sub_u32 s{86+i}, 0, s{r}")
        A(f"s_and_b32 s{86+i}, s{86+i}, 31")
        lo = (0xFFFFFFFF << (16 + 8 * i)) & 0xFFFFFFFF if i < 2 else 0
        hi = 0xFFFFFFFF if i < 3 else 0xFFFFFF00
        A(f"s_mov_b32 exec_lo, {lo}")
        if i == 3:
            A(f"s_mov_b32 exec_hi, {hi}")
        A(f"v_add_u32 v57, s{86+i}, v57")
    A("s_mov_b64 exec, -1")
    for j in range(6):
        A(f"ds_bpermute_b32 v{2+j}, v{20+j}, v57")
    A(f"""
    s_lshl_b32 s86, s28, 5
    s_add_u32 s86, s86, 32
    v_and_b32 v58, 28, v99
    v_add_u32 v58, s86, v58
    ds_bpermute_b32 v59, v58, v57
    ds_bpermute_b32 v60, v58, v56
    """)
    for r in (72, 73, 74, 75, 77):
        A(f"s_add_u32 s{r}, s{r}, 31")
        A(f"s_lshr_b32 s{r}, s{r}, 5")
    A(f"""
    s_add_u32 s87, s72, s73
    s_add_u32 s88, s87, s74
    s_add_u32 s89, s88, s75
    s_add_u32 s90, s89, s77
    s_cmp_gt_u32 s90, {CAPT}
    s_cselect_b32 s85, 1, s85
    s_cmp_lg_u32 s85, 0
    s_cbranch_scc1 L2_goslow
    s_sub_u32 s91, s90, s87
    s_sub_u32 s91, s91, s87
    s_add_u32 s91, s91, 1
    s_ashr_i32 s91, s91, 1
    s_max_i32 s91, s91, 0
    s_min_i32 s91, s91, s77
    s_sub_u32 s92, s77, s91
    s_add_u32 s93, s89, s91
    s_cmp_eq_u32 s26, 0
    s_cselect_b32 s94, s89, s93
    s_cselect_b32 s95, s91, s92
    s_cmp_eq_u32 s28, 0
    s_cselect_b32 s94, 0, s94
    s_cselect_b32 s95, s72, s95
    s_cmp_eq_u32 s28, 1
    s_cselect_b32 s94, s72, s94
    s_cselect_b32 s95, s73, s95
    s_cmp_eq_u32 s28, 2
    s_cselect_b32 s94, s87, s94
    s_cselect_b32 s95, s74, s95
    s_cmp_eq_u32 s28, 3
    s_cselect_b32 s94, s88, s94
    s_cselect_b32 s95, s75, s95
    """)
    for j in range(6):
        A(f"s_waitcnt lgkmcnt({7-j+j})")
        A(f"v_add_lshl_u32 v{2+j}, v{2+j}, v{26+j}, 5")
        A(f"s_mov_b64 exec, s[{60+2*j}:{61+2*j}]")
        A(f"ds_write_b64 v{2+j}, v[{44+2*j}:{45+2*j}] offset:24")
        A("s_mov_b64 exec, -1")
    A(f"""
    s_lshl_b32 s86, s94, 10
    v_add_u32 v{VL}, s86, v106
    v_add_u32 v{VX}, s86, v107
    v_and_b32 v61, 3, v99
    v_lshlrev_b32 v61, 4, v61
    v_lshl_add_u32 v61, v58, 5, v61
    v_add_u32 v61, {S0 - 1024}, v61
    s_waitcnt lgkmcnt(6)
    v_add3_u32 v60, v59, v60, -1
    v_ashrrev_i32 v59, 3, v59
    v_ashrrev_i32 v60, 3, v60
    v_lshl_add_u32 v{VLO}, v59, 6, v61
    v_lshl_add_u32 v{VHI2}, v60, 6, v61
    v_add_u32 v{VHI}, 128, v{VHI2}
    v_add_u32 v{VLO2}, -128, v{VLO}
    s_lshl_b32 s86, s94, 8
    s_add_u32 s86, s86, 64
    v_lshl_add_u32 v{VSC}, v101, 6, v61
    v_add_u32 v{VSC}, s86, v{VSC}
    v_lshlrev_b32 v2, 1, v96
    s_waitcnt vmcnt(0) lgkmcnt(0)
    s_barrier
    ds_read_b64 v[4:5], v2 offset:24
    ds_read_b64 v[6:7], v2 offset:{24+24576}
    """)
    def idx_reads(off):
        for i in range(4):
            A(f"ds_read_b32 v{IX+2*i}, v{VL} offset:{off + 24 + 32*i}")
    def dma():
        for i in range(4):
            if i == 0:
                A("s_mov_b32 m0, s31")
            else:
                A(f"s_add_u32 m0, s31, {1056*i}")
            A(f"buffer_load_dwordx4 v[{IX+2*i}:{IX+2*i+1}], s[40:43], 0 idxen offen lds")
    idx_reads(0)
    A(f"""
    s_mov_b32 s86, {POS}
    s_mul_i32 s87, s2, 480
    s_add_u32 s87, s87, {2*POS - 96}
    v_lshrrev_b32 v3, 3, v0
    v_lshlrev_b32 v3, 6, v3
    v_and_b32 v8, 7, v0
    v_lshl_add_u32 v3, v8, 1, v3
    v_add_u32 v3, {S0 + 64 - 1024}, v3
    v_mov_b32 v8, 0x3f80
    """)
    for k in range(2):
        s_, a_ = 4 + 2 * k, 5 + 2 * k
        f_, as_, ad_ = 20 + 4 * k, 21 + 4 * k, 22 + 4 * k
        p = 32 + 6 * k
        A(f"s_waitcnt lgkmcnt({5 if k == 0 else 10})")
        A(f"v_mad_u32_u24 v{as_}, v{s_}, 6, s86")
        A(f"v_lshrrev_b32 v{f_}, 16, v{a_}")
        for c in range(3):
            A(f"ds_read_u16_d16_hi v{p+c}, v{as_} offset:{2*c}")
        A(f"v_mad_u32_u24 v{ad_}, v{f_}, 3, s87")
        A(f"v_lshrrev_b32 v{ad_}, 1, v{ad_}")
        for c in range(3):
            A(f"ds_read_u16_d16_hi v{p+3+c}, v{ad_} offset:{2*c}")
        A(f"v_cmp_ne_u32 s[{60+2*k}:{61+2*k}], 0, v{f_}")
    A(f"""
    s_cmp_eq_u32 s95, 0
    s_cbranch_scc1 L2_nodma0
    s_cmp_ge_u32 s24, 8
    s_cbranch_scc1 L2_nodma0
    s_waitcnt lgkmcnt(12)
    """)
    dma()
    A("L2_nodma0:")
    for k in range(2):
        s_, a_ = 4 + 2 * k, 5 + 2 * k
        f_, as_, ad_ = 20 + 4 * k, 21 + 4 * k, 22 + 4 * k
        p = 32 + 6 * k
        A(f"v_bfe_u32 v{as_}, v{f_}, 1, 4")
        A(f"v_add_u32 v{as_}, v2, v{as_}")
        A(f"v_lshl_add_u32 v{ad_}, v{f_}, 5, v3")
        A(f"s_waitcnt lgkmcnt(6)")
        for c in range(3):
            A(f"v_sub_f32 v{p+c}, v{p+3+c}, v{p+c}")
        A(f"v_cvt_pk_bf16_f32 v{p}, v{p}, v{p+1}")
        A(f"v_cvt_pk_bf16_f32 v{p+1}, v{p+2}, 0")
        A(f"v_dot2_f32_bf16 v{p+2}, v{p}, v{p}, 0")
        A(f"v_dot2_f32_bf16 v{p+2}, v{p+1}, v{p+1}, v{p+2}")
        A(f"s_mov_b64 exec, s[{60+2*k}:{61+2*k}]")
        A(f"ds_write_b16 v{as_}, v8 offset:{24576*k}")
        A(f"ds_write_b16 v{ad_}, v8 offset:{6144*k}")
        A(f"ds_write_b16 v{ad_}, v{p} offset:{6144*k+16}")
        A(f"v_cvt_pk_bf16_f32 v{s_}, v{p+2}, v{p+2}")
        A(f"ds_write_b16_d16_hi v{ad_}, v{p} offset:{6144*k+32}")
        A(f"ds_write_b16 v{ad_}, v{p+1} offset:{6144*k+48}")
        A(f"ds_write_b64 v2, v[{s_}:{a_}] offset:{24576*k+16}")
        A("s_mov_b64 exec, -1")
    for i in range(8):
        A(f"v_mov_b32 v{PB+i}, 0")
        A(f"v_mov_b32 v{SF+i}, 0")
        A(f"v_mov_b32 v{E1+8+i}, 0")
    A(f"""
    s_waitcnt lgkmcnt(0)
    s_barrier
    s_cmp_eq_u32 s95, 0
    s_cbranch_scc1 L2_done
    s_cmp_lt_u32 s24, 8
    s_cbranch_scc1 L2_dma0done
    """)
    dma()
    A("L2_dma0done:")
    def a_reads():
        for i in range(4):
            A(f"ds_read_b128 v[{AF+4*i}:{AF+4*i+3}], v{VA} offset:{32*i}")
    A(f"ds_read_b128 v[{XF}:{XF+3}], v{VX}")
    idx_reads(1024)
    A("s_waitcnt vmcnt(0)")
    a_reads()
    A(f"""
    s_waitcnt lgkmcnt(0)
    s_cmp_lt_u32 s95, 2
    s_cbranch_scc1 L2_nodma1
    """)
    dma()
    A("L2_nodma1:")
    A(mf32(T0, AF, ID, None))
    A(mf32(T0, AF+4, ID+4, T0))
    A(mf32(T0, XF, EXT, T0))
    A(mf32(T1, AF+8, ID, None))
    A("s_nop 10")
    A("L2_loop:")
    def run(ops, ins):
        for i, v in enumerate(ops):
            for x in ins.get(i, []):
                if callable(x): x()
                else: A(x)
            A(v)
    ex = lambda e, t: [f"v_exp_f32 v{e+i}, v{t+i}" for i in range(16)]
    rc = lambda e: [f"v_rcp_f32 v{e+i}, v{e+i}" for i in range(16)]
    mu = lambda e, t: [f"v_pk_mul_f32 v[{e+2*i}:{e+2*i+1}], v[{e+2*i}:{e+2*i+1}], v[{t+2*i}:{t+2*i+1}]" for i in range(8)]
    run(ex(E0, T0), {0: [mf32(T1, AF+12, ID+4, T1)], 4: [mf32(T1, XF, EXT+4, T1)]})
    run(ex(E1, T1), {0: ["s_waitcnt lgkmcnt(0)", mf32(AC1, E1+8, SF, AC1)], 4: [mf32(E0, ON, ON, E0)], 8: [mf32(AC1, E1+12, SF+4, AC1)],
                     12: [f"ds_read_b128 v[{XF}:{XF+3}], v{VX} offset:1024", lambda: idx_reads(2048)]})
    run(rc(E0), {0: [mf32(AC0, PB, SF, AC0)], 2: ["s_waitcnt vmcnt(0)", a_reads], 4: [mf32(E1, ON, ON, E1)], 8: [mf32(AC0, PB+4, SF+4, AC0)]})
    run(mu(E0, T0), {})
    def dma_next():
        A("s_cmp_lt_u32 s95, 3")
        A("s_cbranch_scc1 L2_nodma2")
        dma()
        A("L2_nodma2:")
    run([f"v_cvt_pk_bf16_f32 v{PB+i}, v{E0+2*i}, v{E0+2*i+1}" for i in range(8)],
        {0: ["s_waitcnt lgkmcnt(0)", mf32(T0, AF, ID, None)], 2: [dma_next]})
    run(rc(E1), {0: [mf32(T0, AF+4, ID+4, T0)], 4: [mf32(T0, XF, EXT, T0)],
                 8: [f"v_med3_i32 v{SF}, v{VSC}, v{VLO}, v{VHI}", f"v_med3_i32 v{SF+4}, v{VSC}, v{VLO2}, v{VHI2}",
                     f"ds_read_b128 v[{SF}:{SF+3}], v{SF}", f"ds_read_b128 v[{SF+4}:{SF+7}], v{SF+4} offset:128",
                     f"v_add_u32 v{VSC}, 256, v{VSC}", f"v_add_u32 v{VL}, 1024, v{VL}", f"v_add_u32 v{VX}, 1024, v{VX}"]})
    run(mu(E1, T1), {})
    run([f"v_cvt_pk_bf16_f32 v{E1+8+i}, v{E1+2*i}, v{E1+2*i+1}" for i in range(7, -1, -1)],
        {0: [mf32(T1, AF+8, ID, None)], 6: ["s_sub_u32 s95, s95, 1", "s_cmp_lg_u32 s95, 0"]})
    A("s_cbranch_scc1 L2_loop")
    A("s_waitcnt lgkmcnt(0)")
    A(mf32(AC0, PB, SF, AC0))
    A(mf32(AC1, E1+8, SF, AC1))
    A(mf32(AC0, PB+4, SF+4, AC0))
    A(mf32(AC1, E1+12, SF+4, AC1))
    A("s_nop 11")
    A("L2_done:")
    A(f"""
    v_mbcnt_lo_u32_b32 v99, -1, 0
    v_mbcnt_hi_u32_b32 v99, -1, v99
    s_cmp_lg_u32 s29, 0
    s_cbranch_scc1 L2_slownext
    L2_flush:
    v_lshrrev_b32 v101, 5, v99
    s_lshl_b32 s72, s25, 7
    v_lshl_add_u32 v1, v101, 3, s72
    """)
    for i in range(8):
        A(f"global_load_dwordx2 v[{2*i+2}:{2*i+3}], v1, s[16:17] offset:{16*i}")
    A(f"""
    s_mul_i32 s73, s2, 10240
    """)
    srd(A, 52, 4, 5, 10240, add="s73")
    srd(A, 56, 20, 21, 10240, add="s73")
    A(f"""
    s_mov_b32 s74, {NLN2}
    s_mov_b32 s75, {NLN2}
    s_lshl_b32 s76, s28, 3
    s_cmp_eq_u32 s27, 0
    s_cselect_b32 s77, s26, 0
    s_lshl_b32 s77, s77, 3
    s_add_u32 s77, s77, s76
    s_mul_i32 s77, s77, {MSTR}
    s_add_u32 s77, s77, {MB}
    s_add_u32 s77, s77, s72
    v_bfe_u32 v20, v99, 2, 3
    v_mul_u32_u24 v20, {MSTR}, v20
    v_lshl_add_u32 v20, v101, 3, v20
    v_add_u32 v20, s77, v20
    s_lshl_b32 s76, s28, 7
    v_and_b32 v21, 31, v99
    v_lshl_add_u32 v21, v21, 2, s76
    """)
    for i in range(16):
        A(f"v_pk_mul_f32 v[{AC0+2*i}:{AC0+2*i+1}], v[{AC0+2*i}:{AC0+2*i+1}], s[74:75]")
    for i in range(16):
        A(f"v_cvt_pk_bf16_f32 v{AC0+i}, v{AC0+2*i}, v{AC0+2*i+1}")
    A("s_mov_b32 exec_lo, 0x11111111")
    A("s_mov_b32 exec_hi, 0x11111111")
    for i in range(8):
        A(f"ds_write_b64 v20, v[{AC0+2*i}:{AC0+2*i+1}] offset:{16*i}")
    A("s_mov_b64 exec, -1")
    A("s_waitcnt vmcnt(0)")
    for i in range(16):
        A(f"v_dot2_f32_bf16 v22, v{AC0+i}, v{2+i}, {'v22' if i else '0'}")
    A(f"ds_add_f32 v21, v22 offset:{CA}")
    A(f"""
    s_cmp_lg_u32 s27, 0
    s_cbranch_scc1 L2_other
    """)
    W, H, D = 0, 64, 112
    A(f"""
    v_lshlrev_b32 v140, 4, v99
    s_lshl_b32 s72, s24, 14
    s_add_u32 s72, s72, {WHP_OFF}
    v_and_b32 v141, 15, v99
    v_lshrrev_b32 v142, 4, v99
    v_lshlrev_b32 v143, 4, v142
    v_lshl_add_u32 v144, v141, 8, v143
    """)
    for k in range(4):
        A(f"s_add_u32 s{78+k}, s24, {k}")
        A(f"s_and_b32 s{78+k}, s{78+k}, 3")
        A(f"s_lshl_b32 s{82+k}, s{78+k}, 6")
        A(f"s_lshl_b32 s{78+k}, s{78+k}, 10")
        A(f"s_add_u32 s{78+k}, s{78+k}, s72")
        A(f"s_add_u32 s{86+k}, s{78+k}, 8192")
    A("v_add_u32 v146, 4096, v144")
    A("v_add_u32 v147, 8192, v144")
    A(f"v_mov_b32 v145, {MB}")
    A(f"v_mul_u32_u24 v148, {MSTR}, v141")
    A("v_add3_u32 v145, v145, v148, v143")
    for k in range(4):
        A(f"buffer_load_dwordx4 v[{W+4*k}:{W+4*k+3}], v140, s[48:51], s{78+k} offen")
        A(f"buffer_load_dwordx4 v[{W+32+4*k}:{W+32+4*k+3}], v140, s[48:51], s{86+k} offen")
        for nt in range(3):
            A(f"buffer_load_dwordx4 v[{H+16*nt+4*k}:{H+16*nt+4*k+3}], v{(144,146,147)[nt]}, s[52:55], s{82+k} offen")
    A("s_add_u32 s73, s72, 4096")
    A("s_add_u32 s74, s72, 12288")
    for k in range(4):
        A(f"buffer_load_dwordx4 v[{W+16+4*k}:{W+16+4*k+3}], v140, s[48:51], s73 offen offset:{1024*k}")
        A(f"buffer_load_dwordx4 v[{W+48+4*k}:{W+48+4*k+3}], v140, s[48:51], s74 offen offset:{1024*k}")
    for k in range(4):
        A(f"s_waitcnt vmcnt({8 + 5*(3-k)})")
        for nt in range(3):
            for ab in range(2):
                d = D + 8 * nt + 4 * ab
                A(mf16(d, W+32*ab+4*k, H+16*nt+4*k, d if k else None))
    MF = [0, 32, 148]
    A(f"""
    s_mov_b32 s78, {NLOG2E}
    s_waitcnt vmcnt(0) lgkmcnt(0)
    s_barrier
    """)
    for nt in range(3):
        for k in range(4):
            A(f"ds_read_b128 v[{MF[nt]+4*k}:{MF[nt]+4*k+3}], v145 offset:{nt*16*MSTR + 64*k}")
    for nt in range(3):
        for k in range(4):
            A(f"s_waitcnt lgkmcnt({11 - 4*nt - k})")
            for ab in range(2):
                d = D + 8 * nt + 4 * ab
                A(mf16(d, W+16+32*ab+4*k, MF[nt]+4*k, d))
    for nt in range(3):
        d = D + 8 * nt
        tmp = H + 16 * nt + 4
        if nt == 2:
            for i in range(8):
                A(f"v_add_f32_dpp v{d+i}, v{d+i}, v{d+i} row_ror:8 row_mask:0xf bank_mask:0xf")
        for i in range(8):
            A(f"v_mul_f32 v{tmp+i}, s78, v{d+i}")
        for i in range(8):
            A(f"v_exp_f32 v{tmp+i}, v{tmp+i}")
        for i in range(8):
            A(f"v_add_f32 v{tmp+i}, 1.0, v{tmp+i}")
        for i in range(8):
            A(f"v_rcp_f32 v{tmp+i}, v{tmp+i}")
        h = H + 16 * nt
        for i in range(4):
            A(f"v_lshlrev_b32 v{tmp+8}, 16, v{h+i}")
            A(f"v_and_b32 v{tmp+9}, 0xffff0000, v{h+i}")
            A(f"v_fma_f32 v{tmp+8}, v{d+2*i}, v{tmp+2*i}, v{tmp+8}")
            A(f"v_fma_f32 v{tmp+9}, v{d+2*i+1}, v{tmp+2*i+1}, v{tmp+9}")
            A(f"v_cvt_pk_bf16_f32 v{h+i}, v{tmp+8}, v{tmp+9}")
        A(f"buffer_store_dwordx4 v[{h}:{h+3}], v{(144,146,147)[nt]}, s[56:59], s82 offen")
    A(f"""
    s_endpgm
    L2_other:
    s_mul_i32 s72, s2, 240
    s_add_u32 s73, s72, 2560000
    """)
    srd(A, 52, 6, 7, 240, add="s72")
    srd(A, 56, 20, 21, 240, add="s73")
    A(f"""
    s_sub_u32 s74, s24, 4
    s_lshl_b32 s74, s74, 6
    v_add_u32 v1, s74, v99
    v_lshlrev_b32 v2, 1, v1
    buffer_load_ushort v3, v2, s[52:55], 0 offen
    v_mul_u32_u24 v4, 21846, v1
    v_lshrrev_b32 v4, 16, v4
    v_add_u32 v4, v4, v1
    v_lshlrev_b32 v4, 2, v4
    s_waitcnt lgkmcnt(0)
    s_barrier
    s_cmp_gt_u32 s24, 5
    s_cbranch_scc1 L2_exit
    ds_read_b32 v5, v4 offset:{CA+4}
    s_waitcnt vmcnt(0)
    v_lshlrev_b32 v3, 16, v3
    s_waitcnt lgkmcnt(0)
    v_add_f32 v3, v3, v5
    v_cvt_pk_bf16_f32 v3, v3, v3
    buffer_store_short v3, v2, s[56:59], 0 offen
    L2_exit:
    s_endpgm
    """)
    A(f"""
    L2_slownext:
    s_add_u32 s30, s30, 768
    s_cmp_ge_u32 s30, 320000
    s_cbranch_scc1 L2_flush
    L2_goslow:
    s_mov_b32 s29, 1
    s_waitcnt vmcnt(0) lgkmcnt(0)
    s_barrier
    s_lshl_b32 s72, s24, 6
    v_add_u32 v0, s72, v99
    v_lshlrev_b32 v96, 4, v0
    v_lshlrev_b32 v97, 3, v0
    v_and_b32 v100, 31, v99
    v_lshrrev_b32 v101, 5, v99
    s_mul_i32 s76, s2, 5
    s_add_u32 s76, s76, s28
    s_lshl_b32 s76, s76, 11
    s_sub_u32 s77, {EXTC_OFF - AT_OFF}, s76
    v_mul_u32_u24 v102, s77, v101
    v_lshl_add_u32 v102, v100, 4, v102
    s_lshl_b32 s77, s25, 10
    s_add_u32 s76, s76, s77
    s_add_u32 s76, s76, {AT_OFF}
    v_add_u32 v1, s30, v0
    v_min_u32 v3, 319999, v1
    v_lshlrev_b32 v4, 2, v3
    v_lshlrev_b32 v3, 1, v3
    global_load_dword v5, v4, s[12:13]
    global_load_dword v6, v4, s[10:11]
    global_load_ushort v8, v3, s[8:9]
    s_mul_i32 s72, s2, 40
    s_mov_b32 s73, 320000
    v_cmp_gt_u32 s[60:61], s73, v1
    s_waitcnt vmcnt(0)
    v_subrev_u32 v5, s72, v5
    v_cmp_gt_u32 s[62:63], 40, v5
    v_add_u32 v5, 8, v5
    v_lshl_add_u32 v5, v5, 18, v6
    s_and_b64 s[60:61], s[60:61], s[62:63]
    v_cndmask_b32 v2, 0, v5, s[60:61]
    v_mov_b32 v3, 0
    v_mov_b32 v4, 0
    v_mov_b32 v5, 0
    v_mov_b32 v6, 0
    v_mov_b32 v7, 0
    s_branch L2_batch
    """)
    A.check_all_edges()
    return A
```

```python
import sys
from asmlib import Asm

NAME = "gather_scatter__cheap_equivariant_egnn__graph"
REC_OFF = 0
EAC_OFF = 4 << 20
AT_OFF = 8 << 20
EXTC_OFF = AT_OFF + 1280 * 2048
BT_OFF = 12 << 20
WHP_OFF = 16 << 20
WS_SIZE = 32 << 20
NBINWG = 125
NGEMM = 314
NWG1 = NBINWG + NGEMM + 2
LDS1 = 49152
NLOG2E = 0xBFB8AA3B
NLN2 = 0xBF317218

def mf32(d, a, b, c):
    cs = "0" if c is None else f"v[{c}:{c+15}]"
    return f"v_mfma_f32_32x32x16_bf16 v[{d}:{d+15}], v[{a}:{a+3}], v[{b}:{b+3}], {cs}"
def mf16(d, a, b, c):
    cs = "0" if c is None else f"v[{c}:{c+3}]"
    return f"v_mfma_f32_16x16x32_bf16 v[{d}:{d+3}], v[{a}:{a+3}], v[{b}:{b+3}], {cs}"

def srd(A, r, lo, hi, size, add=None, stride=0):
    if add is None:
        A(f"s_mov_b32 s{r}, s{lo}")
        A(f"s_mov_b32 s{r+1}, s{hi}")
    else:
        A(f"s_add_u32 s{r}, s{lo}, {add}")
        A(f"s_addc_u32 s{r+1}, s{hi}, 0")
    if stride:
        A(f"s_or_b32 s{r+1}, s{r+1}, {stride << 16}")
    A(f"s_mov_b32 s{r+2}, {size}")
    A(f"s_mov_b32 s{r+3}, 0x00020000")

def gen_k1():
    A = Asm()
    A("k1_kernel:")
    A(f"""
    s_load_dwordx16 s[4:19], s[0:1], 0
    s_load_dwordx2 s[20:21], s[0:1], 80
    s_cmp_ge_u32 s2, {NWG1}
    s_cbranch_scc1 L1_exit
    s_cmp_ge_u32 s2, {NBINWG}
    s_cbranch_scc1 L1_gemm
    v_lshlrev_b32 v1, 4, v0
    v_lshlrev_b32 v2, 2, v0
    s_mul_i32 s3, s2, 10240
    v_add_u32 v3, s3, v1
    s_add_u32 s22, s3, 8192
    v_add_u32 v4, s22, v2
    v_lshrrev_b32 v5, 1, v3
    v_lshrrev_b32 v6, 1, v4
    v_mov_b32 v24, 0
    v_mov_b32 v25, 0
    v_mov_b32 v26, 0
    v_mov_b32 v27, 0
    s_waitcnt lgkmcnt(0)
    global_load_dwordx4 v[8:11], v3, s[12:13]
    global_load_dword v12, v4, s[12:13]
    global_load_dwordx4 v[14:17], v3, s[10:11]
    global_load_dword v18, v4, s[10:11]
    global_load_dwordx2 v[20:21], v5, s[8:9]
    global_load_ushort v22, v6, s[8:9]
    ds_write_b128 v1, v[24:27]
    ds_write_b128 v1, v[24:27] offset:8192
    ds_write_b128 v1, v[24:27] offset:16384
    ds_write_b128 v1, v[24:27] offset:24576
    ds_write_b32 v2, v24 offset:32768
    v_mov_b32 v23, 1
    """)
    srd(A, 24, 20, 21, 4000000)
    srd(A, 28, 20, 21, 2000000, add=EAC_OFF)
    A(f"""
    v_lshrrev_b32 v28, 3, v0
    v_and_b32 v29, 7, v0
    v_mul_u32_u24 v28, 16000, v28
    v_lshl_add_u32 v28, v29, 4, v28
    v_lshrrev_b32 v29, 2, v0
    v_and_b32 v30, 3, v0
    v_mul_u32_u24 v29, 8000, v29
    v_lshl_add_u32 v29, v30, 4, v29
    s_lshl_b32 s32, s2, 7
    s_add_u32 s33, s32, 1024000
    s_add_u32 s34, s32, 2048000
    s_add_u32 s35, s32, 3072000
    s_lshl_b32 s36, s2, 6
    s_add_u32 s37, s36, 1024000
    s_mov_b32 s38, 52429
    s_movk_i32 s39, -40
    s_waitcnt lgkmcnt(0)
    s_barrier
    s_waitcnt vmcnt(4)
    """)
    for j in range(5):
        A(f"v_mul_u32_u24 v{32+j}, s38, v{8+j}")
        A(f"v_lshrrev_b32 v{32+j}, 21, v{32+j}")
        A(f"v_lshlrev_b32 v{38+j}, 2, v{32+j}")
        A(f"ds_add_rtn_u32 v{44+j}, v{38+j}, v23 offset:32000")
    for j in range(5):
        A(f"v_mad_i32_i24 v{8+j}, v{32+j}, s39, v{8+j}")
        A(f"v_add_u32 v{8+j}, 8, v{8+j}")
    A("s_waitcnt vmcnt(2)")
    for j in range(5):
        A(f"v_lshl_add_u32 v{8+j}, v{8+j}, 18, v{14+j}")
    A("s_waitcnt vmcnt(0)")
    for j in range(5):
        A(f"s_waitcnt lgkmcnt({4-j+2*j})")
        A(f"v_min_u32 v{44+j}, 31, v{44+j}")
        A(f"v_lshl_add_u32 v{44+j}, v{32+j}, 5, v{44+j}")
        A(f"v_lshlrev_b32 v{38+j}, 2, v{44+j}")
        A(f"v_lshlrev_b32 v{44+j}, 1, v{44+j}")
        A(f"ds_write_b32 v{38+j}, v{8+j}")
        op = "ds_write_b16_d16_hi" if j in (1, 3) else "ds_write_b16"
        A(f"{op} v{44+j}, v{20 + j//2} offset:33024")
    A(f"""
    s_waitcnt lgkmcnt(0)
    s_barrier
    ds_read_b128 v[32:35], v1
    ds_read_b128 v[36:39], v1 offset:8192
    ds_read_b128 v[40:43], v1 offset:16384
    ds_read_b128 v[44:47], v1 offset:24576
    ds_read_b128 v[48:51], v1 offset:33024
    ds_read_b128 v[52:55], v1 offset:41216
    s_waitcnt lgkmcnt(5)
    buffer_store_dwordx4 v[32:35], v28, s[24:27], s32 offen
    s_waitcnt lgkmcnt(4)
    buffer_store_dwordx4 v[36:39], v28, s[24:27], s33 offen
    s_waitcnt lgkmcnt(3)
    buffer_store_dwordx4 v[40:43], v28, s[24:27], s34 offen
    s_waitcnt lgkmcnt(2)
    buffer_store_dwordx4 v[44:47], v28, s[24:27], s35 offen
    s_waitcnt lgkmcnt(1)
    buffer_store_dwordx4 v[48:51], v29, s[28:31], s36 offen
    s_waitcnt lgkmcnt(0)
    buffer_store_dwordx4 v[52:55], v29, s[28:31], s37 offen
    L1_exit:
    s_endpgm
    """)
    A(f"""
    L1_gemm:
    s_sub_u32 s3, s2, {NBINWG}
    v_lshrrev_b32 v1, 6, v0
    v_and_b32 v2, 63, v0
    s_and_b32 s22, s3, 1
    v_readfirstlane_b32 s23, v1
    s_lshr_b32 s3, s3, 1
    s_lshl_b32 s40, s22, 15
    v_lshrrev_b32 v3, 4, v2
    v_and_b32 v4, 15, v2
    v_lshlrev_b32 v5, 2, v3
    v_xor_b32 v5, v5, v4
    v_lshlrev_b32 v5, 4, v5
    v_lshl_add_u32 v5, v3, 8, v5
    s_lshl_b32 s41, s23, 12
    v_add_u32 v5, s41, v5
    s_lshl_b32 s42, s23, 3
    v_add_u32 v6, s42, v3
    v_and_b32 v7, 15, v6
    v_xor_b32 v7, v7, v4
    v_lshlrev_b32 v7, 4, v7
    v_lshl_add_u32 v6, v6, 8, v7
    v_xor_b32 v7, 64, v6
    s_and_b32 s43, s23, 3
    s_lshr_b32 s44, s23, 2
    v_bfe_u32 v8, v2, 2, 2
    v_and_b32 v9, 3, v2
    v_xor_b32 v10, s43, v8
    v_lshlrev_b32 v10, 6, v10
    v_lshl_add_u32 v10, v8, 8, v10
    s_cmp_eq_u32 s3, {NGEMM//2}
    s_waitcnt lgkmcnt(0)
    s_cselect_b32 s24, s18, s14
    s_cselect_b32 s25, s19, s15
    s_add_u32 s24, s24, s40
    s_addc_u32 s25, s25, 0
    s_mov_b32 m0, s41
    s_mov_b32 s26, 32768
    s_mov_b32 s27, 0x00020000
    buffer_load_dwordx4 v5, s[24:27], 0 offen lds
    buffer_load_dwordx4 v5, s[24:27], 0 offen offset:1024 lds
    buffer_load_dwordx4 v5, s[24:27], 0 offen offset:2048 lds
    buffer_load_dwordx4 v5, s[24:27], 0 offen offset:3072 lds
    """)
    srd(A, 32, 20, 21, WS_SIZE)
    A(f"""
    s_cmp_eq_u32 s3, {NGEMM//2}
    s_cbranch_scc1 L1_pack
    """)
    srd(A, 28, 4, 5, 2560000)
    A(f"""
    s_lshl_b32 s45, s23, 11
    s_add_u32 s45, s45, 32768
    s_lshl_b32 s46, s3, 14
    s_mov_b32 m0, s45
    v_lshrrev_b32 v11, 5, v2
    buffer_load_dwordx4 v6, s[28:31], s46 offen lds
    buffer_load_dwordx4 v7, s[28:31], s46 offen offset:1024 lds
    v_lshl_add_u32 v10, v11, 11, v10
    v_bfe_u32 v12, v2, 4, 1
    v_and_b32 v13, 31, v2
    s_lshl_b32 s47, s44, 5
    v_add_u32 v14, s47, v13
    v_xor_b32 v15, v11, v14
    v_and_b32 v15, 15, v15
    v_lshlrev_b32 v15, 4, v15
    v_lshl_add_u32 v15, v14, 8, v15
    s_mov_b32 s48, {NLOG2E}
    s_mov_b32 s49, {NLOG2E}
    s_cmp_eq_u32 s22, 1
    s_cbranch_scc1 L1_matB
    v_lshl_add_u32 v10, v12, 5, v10
    v_lshl_add_u32 v10, v9, 3, v10
    """)
    def frag_reads():
        A("s_waitcnt vmcnt(0)")
        A("s_barrier")
        for s in range(8):
            if s:
                A(f"v_xor_b32 v16, {s*32}, v15")
            A(f"ds_read_b128 v[{64+4*s}:{64+4*s+3}], v{16 if s else 15} offset:32768")
            A(f"ds_read_b64_tr_b16 v[{32+4*s}:{32+4*s+1}], v10 offset:{16*s*256}")
            A(f"ds_read_b64_tr_b16 v[{32+4*s+2}:{32+4*s+3}], v10 offset:{(16*s+4)*256}")
    def scale_cvt():
        for i in range(8):
            A(f"v_pk_mul_f32 v[{96+2*i}:{96+2*i+1}], v[{96+2*i}:{96+2*i+1}], s[48:49]")
        for i in range(8):
            A(f"v_cvt_pk_bf16_f32 v{96+i}, v{96+2*i}, v{96+2*i+1}")
    A(f"""
    s_lshl_b32 s50, s43, 9
    v_lshl_add_u32 v17, v13, 4, s50
    v_lshl_add_u32 v17, v11, 3, v17
    s_lshl_b32 s51, s44, 13
    s_add_u32 s51, s51, s46
    s_add_u32 s51, s51, {AT_OFF}
    s_add_u32 s52, s51, 4096
    """)
    frag_reads()
    for s in range(8):
        A(f"s_waitcnt lgkmcnt({min(15, 3*(7-s))})")
        A(mf32(96, 64+4*s, 32+4*s, 96 if s else None))
    scale_cvt()
    A(f"""
    buffer_store_dwordx2 v[96:97], v17, s[32:35], s51 offen
    buffer_store_dwordx2 v[98:99], v17, s[32:35], s51 offen offset:2048
    buffer_store_dwordx2 v[100:101], v17, s[32:35], s52 offen
    buffer_store_dwordx2 v[102:103], v17, s[32:35], s52 offen offset:2048
    s_endpgm
    L1_matB:
    v_and_b32 v18, 1, v9
    v_lshrrev_b32 v19, 1, v9
    v_lshl_add_u32 v10, v18, 5, v10
    v_lshl_add_u32 v10, v12, 4, v10
    v_lshl_add_u32 v10, v19, 3, v10
    s_lshl_b32 s50, s43, 6
    v_lshl_add_u32 v17, v14, 8, s50
    v_lshl_add_u32 v17, v11, 5, v17
    s_add_u32 s51, s46, {BT_OFF}
    """)
    frag_reads()
    for s in range(8):
        A(f"s_waitcnt lgkmcnt({min(15, 3*(7-s))})")
        A(mf32(96, 32+4*s, 64+4*s, 96 if s else None))
    scale_cvt()
    A(f"""
    buffer_store_dwordx4 v[96:99], v17, s[32:35], s51 offen
    buffer_store_dwordx4 v[100:103], v17, s[32:35], s51 offen offset:16
    s_endpgm
    L1_pack:
    v_and_b32 v20, 127, v0
    v_lshlrev_b32 v21, 1, v20
    v_add_u32 v21, 65536, v21
    global_load_ushort v22, v21, s[14:15]
    global_load_ushort v23, v21, s[14:15] offset:256
    v_lshl_add_u32 v10, v3, 11, v10
    v_lshl_add_u32 v10, v9, 4, v10
    s_lshl_b32 s50, s44, 3
    v_add_u32 v10, s50, v10
    s_lshl_b32 s51, s43, 14
    s_lshl_b32 s52, s44, 13
    s_add_u32 s51, s51, s52
    s_lshl_b32 s52, s22, 12
    s_add_u32 s51, s51, s52
    s_add_u32 s51, s51, {WHP_OFF}
    v_lshlrev_b32 v17, 4, v2
    v_lshlrev_b32 v20, 4, v20
    s_mov_b32 s48, {NLOG2E}
    s_mov_b32 s53, {EXTC_OFF}
    s_waitcnt vmcnt(0)
    s_barrier
    """)
    for ks in range(4):
        A(f"ds_read_b64_tr_b16 v[{32+4*ks}:{32+4*ks+1}], v10 offset:{32*ks*256}")
        A(f"ds_read_b64_tr_b16 v[{32+4*ks+2}:{32+4*ks+3}], v10 offset:{(32*ks+4)*256}")
    A(f"""
    v_lshlrev_b32 v22, 16, v22
    v_lshlrev_b32 v23, 16, v23
    v_mul_f32 v22, s48, v22
    v_mul_f32 v23, s48, v23
    v_cvt_pk_bf16_f32 v24, v22, 0
    v_cvt_pk_bf16_f32 v27, v23, 0
    v_lshlrev_b32 v24, 16, v24
    v_lshlrev_b32 v25, 16, v27
    v_sub_f32 v24, v22, v24
    v_sub_f32 v25, v23, v25
    v_cvt_pk_bf16_f32 v24, v22, v24
    v_cvt_pk_bf16_f32 v25, v25, 0
    v_mov_b32 v26, 0
    buffer_store_dwordx4 v[24:27], v20, s[32:35], s53 offen
    """)
    for ks in range(4):
        A(f"s_waitcnt lgkmcnt({6-2*ks})")
        A(f"buffer_store_dwordx4 v[{32+4*ks}:{32+4*ks+3}], v17, s[32:35], s51 offen offset:{1024*ks}")
    A("s_endpgm")
    A.check_all_edges()
    return A

HEAD = open(f"cdna_kernels/{NAME}.s.ref").read().split("; Override launch")[0]

def kdesc(name, nv):
    return f""".p2align 6
.amdhsa_kernel {name}
  .amdhsa_next_free_vgpr {nv}
  .amdhsa_next_free_sgpr 102
  .amdhsa_accum_offset {nv}
  .amdhsa_group_segment_fixed_size 0
  .amdhsa_kernarg_size 88
  .amdhsa_user_sgpr_count 2
  .amdhsa_user_sgpr_kernarg_segment_ptr 1
  .amdhsa_system_sgpr_workgroup_id_x 1
.end_amdhsa_kernel
"""

def build(kernels):
    s = HEAD
    for (name, A, grid, block, lds, nv) in kernels:
        s += f"; @launch kernel={name} grid=({grid},1,1) block=({block},1,1) lds={lds}\n"
    s += '.amdgcn_target "amdgcn-amd-amdhsa--gfx950"\n.text\n'
    for (name, A, grid, block, lds, nv) in kernels:
        s += f".globl {name}\n.p2align 8\n.type {name},@function\n" + A.text()
    s += '.section .rodata,"a"\n'
    for (name, A, grid, block, lds, nv) in kernels:
        s += kdesc(name, nv)
    return s

if __name__ == "__main__":
    from gen2 import gen_k2, LDS2
    k1 = gen_k1(); k2 = gen_k2()
    out = sys.argv[1] if len(sys.argv) > 1 else f"cdna_kernels/{NAME}.s"
    open(out, "w").write(build([("k1_kernel", k1, NWG1, 512, LDS1, 112), ("k2_kernel", k2, 250, 768, LDS2, 168)]))
    print("written", out, "nops", k1.nops, k2.nops, "instrs", len(k1.ins), len(k2.ins))
```

```python
from asmlib import Asm, I
from gen import *

CAPT = 48
X0 = 0
CNT = 49152
CA = CNT + 256
S0 = CNT + 1024
SL0 = 67584
SLOT = 4192
POS = SL0 + 8 * SLOT
MB = POS + 4 * SLOT
MSTR = 272
LDS2 = POS + 61440
assert S0 + (4 * CAPT + 80) * 64 == SL0 and LDS2 <= 163840

T0, T1, E0, E1, AC0, AC1, AF, PB, SF, ID, EXT, XF, ON, IX = 0, 16, 32, 48, 64, 80, 96, 112, 120, 128, 136, 144, 148, 152
VL, VX, VA, VSC, VLO, VHI, VLO2, VHI2 = 160, 161, 162, 163, 164, 165, 166, 167

XF_ = set(os.environ.get("X", "").split(","))
def gen_k2():
    A = Asm()
    A.macro = mk_macro([98, 99, 32, 33, 34, 35, 36, 37, 38, 39, 100, 101, 14, 15, 18, 19], 22, DBG2_OFF, 24)
    A("k2_kernel:")
    A(f"""
    s_load_dwordx16 s[4:19], s[0:1], 0
    s_load_dwordx2 s[20:21], s[0:1], 64
    s_load_dwordx2 s[22:23], s[0:1], 80
    s_cmp_ge_u32 s2, 250
    s_cbranch_scc1 L2_exit
    @stamp 0 real
    @stamp 1
    v_lshrrev_b32 v1, 6, v0
    v_lshlrev_b32 v96, 4, v0
    v_lshlrev_b32 v97, 3, v0
    v_readfirstlane_b32 s24, v1
    v_lshlrev_b32 v98, 2, v0
    s_mul_i32 s3, s2, 16000
    s_mul_i32 s72, s2, 8000
    s_add_u32 s72, s72, {EAC_OFF}
    s_mov_b32 s73, 12288
    s_mov_b32 s74, 6144
    s_mov_b32 s29, 0
    s_mov_b32 s30, 0
    s_and_b32 s25, s24, 1
    s_bfe_u32 s26, s24, 0x10001
    s_lshr_b32 s27, s24, 2
    s_lshl_b32 s28, s26, 1
    s_add_u32 s28, s28, s27
    s_sub_u32 s28, s28, 1
    s_cmp_eq_u32 s27, 0
    s_cselect_b32 s28, 4, s28
    s_mul_i32 s31, s24, {SLOT}
    s_add_u32 s31, s31, {SL0}
    v_and_b32 v99, 63, v0
    s_waitcnt lgkmcnt(0)
    """)
    srd(A, 32, 22, 23, 16000, add="s3")
    A("buffer_load_dwordx4 v[2:5], v96, s[32:35], 0 offen")
    A("buffer_load_dwordx2 v[6:7], v97, s[32:35], s73 offen")
    srd(A, 36, 22, 23, 8000, add="s72")
    A("buffer_load_dwordx2 v[8:9], v97, s[36:39], 0 offen")
    A("buffer_load_dword v10, v98, s[36:39], s74 offen")
    srd(A, 44, 6, 7, 60000)
    srd(A, 48, 22, 23, WS_SIZE)
    A(f"""
    s_lshl_b32 s75, s25, 7
    s_add_u32 s75, s75, {BT_OFF}
    """)
    srd(A, 40, 22, 23, 0 if "oob" in XF_ else (1 if "one" in XF_ else 10000), add="s75", stride=256)
    A(f"""
    v_and_b32 v100, 31, v99
    v_lshrrev_b32 v101, 5, v99
    s_mul_i32 s76, s2, 5
    s_add_u32 s76, s76, s28
    s_lshl_b32 s76, s76, 11
    s_sub_u32 s77, {EXTC_OFF - AT_OFF}, s76
    v_mul_u32_u24 v102, s77, v101
    v_lshl_add_u32 v102, v100, 4, v102
    s_lshl_b32 s77, s25, 10
    s_add_u32 s76, s76, s77
    s_add_u32 s76, s76, {AT_OFF}
    """)
    for i in range(32):
        A(f"v_mov_b32 v{AC0+i}, 0")
    A(f"""
    L2_batch:
    v_lshlrev_b32 v103, 4, v99
    s_mul_i32 s78, s24, 5120
    s_add_u32 s79, s78, {POS}
    s_mov_b32 m0, s79
    s_add_u32 s80, s78, 4096
    buffer_load_dwordx4 v103, s[44:47], s78 offen lds
    buffer_load_dwordx4 v103, s[44:47], s78 offen offset:1024 lds
    buffer_load_dwordx4 v103, s[44:47], s78 offen offset:2048 lds
    buffer_load_dwordx4 v103, s[44:47], s78 offen offset:3072 lds
    s_add_u32 s79, s79, 4096
    s_mov_b32 m0, s79
    s_lshr_b32 s81, s2, 3
    buffer_load_dwordx4 v103, s[44:47], s80 offen lds
    buffer_load_dwordx4 v[{EXT}:{EXT+3}], v102, s[48:51], s76 offen
    buffer_load_dwordx4 v[{EXT+4}:{EXT+7}], v102, s[48:51], s76 offen offset:512
    s_min_u32 s81, s81, 30
    s_mul_i32 s81, s81, 82944
    s_add_u32 s81, s81, {BT_OFF}
    v_lshlrev_b32 v104, 3, v96
    {"buffer_load_dword v105, v96, s[48:51], s81 offen" if os.environ.get("NOPF") else "buffer_load_dword v105, v104, s[48:51], s81 offen"}
    v_and_b32 v16, 1, v99
    v_mul_u32_u24 v14, 10000, v16
    v_mov_b32 v12, 0
    v_mov_b32 v13, 0
    v_mov_b32 v15, 0
    v_mov_b32 v16, 0
    v_mov_b32 v17, 0
    v_mov_b32 v18, 0
    v_mov_b32 v19, 0
    ds_write_b128 v96, v[12:15]
    ds_write_b128 v96, v[12:15] offset:12288
    ds_write_b128 v96, v[12:15] offset:24576
    ds_write_b128 v96, v[12:15] offset:36864
    ds_write_b128 v96, v[16:19] offset:{CNT}
    ds_write_b64 v97, v[16:17] offset:{CNT+12288}
    """)
    A(f"""
    v_lshlrev_b32 v20, 3, v101
    v_sub_u32 v20, v100, v20
    v_and_b32 v21, 1, v20
    v_lshlrev_b32 v21, 4, v21
    v_mov_b32 v22, 0x3f80
    v_lshlrev_b32 v21, v21, v22
    v_ashrrev_i32 v20, 1, v20
    """)
    for r in range(8):
        A(f"v_cmp_eq_u32 s[{60+2*r}:{61+2*r}], {r if r < 4 else r+4}, v20")
    for r in range(8):
        A(f"v_cndmask_b32 v{ID+r}, 0, v21, s[{60+2*r}:{61+2*r}]")
    for r in range(4):
        A(f"v_mov_b32 v{ON+r}, 0x3e803e80")
    A(f"""
    v_and_b32 v20, 7, v99
    v_bfe_u32 v21, v99, 4, 1
    v_xor_b32 v20, v20, v21
    v_lshlrev_b32 v{IX+1}, 4, v20
    v_lshlrev_b32 v{IX+3}, 4, v20
    v_lshlrev_b32 v{IX+5}, 4, v20
    v_lshlrev_b32 v{IX+7}, 4, v20
    """)
    pq = [0, 3, 6, 5, 2, 1, 4, 7]
    pqk = sum(v << (4 * g) for g, v in enumerate(pq))
    q = [0, 3, 5, 6, 1, 2, 4, 7]
    qinv = [q.index(i) for i in range(8)]
    qik = sum(v << (4 * g) for g, v in enumerate(qinv))
    A(f"""
    v_lshrrev_b32 v20, 3, v99
    v_lshlrev_b32 v20, 2, v20
    s_mov_b32 s82, {pqk}
    v_bfe_u32 v20, s82, v20, 3
    v_lshlrev_b32 v106, 7, v20
    v_and_b32 v20, 28, v100
    s_mov_b32 s82, {qik}
    v_bfe_u32 v20, s82, v20, 3
    v_bfe_u32 v21, v20, 1, 1
    v_xor_b32 v21, v21, v101
    v_lshlrev_b32 v21, 4, v21
    v_lshl_add_u32 v21, v20, 7, v21
    v_and_b32 v20, 3, v100
    v_mul_u32_u24 v20, 1056, v20
    v_add3_u32 v{VA}, v20, v21, s31
    v_and_b32 v20, 19, v100
    v_bfe_u32 v21, v100, 2, 1
    v_lshl_or_b32 v20, v21, 3, v20
    v_bfe_u32 v21, v100, 3, 1
    v_lshl_or_b32 v20, v21, 2, v20
    v_lshlrev_b32 v20, 5, v20
    v_lshl_add_u32 v107, v101, 4, v20
    v_mov_b32 v11, 1
    v_lshlrev_b32 v108, 2, v99
    """)
    for i in range(12):
        A(f"v_mov_b32 v{32+i}, 0")
    A(f"""
    s_waitcnt lgkmcnt(0)
    @stamp 2
    s_barrier
    s_waitcnt vmcnt(8)
    @stamp 3
    """)
    for j in range(6):
        A(f"v_cmp_ne_u32 s[{60+2*j}:{61+2*j}], 0, v{2+j}")
        A(f"v_lshrrev_b32 v{20+j}, 16, v{2+j}")
    for j in range(6):
        A(f"s_mov_b64 exec, s[{60+2*j}:{61+2*j}]")
        A(f"ds_add_rtn_u32 v{26+j}, v{20+j}, v11 offset:{CNT}")
    A(f"""
    s_mov_b64 exec, -1
    s_or_b32 s72, s66, s67
    s_and_b32 s72, s72, 0x80808080
    s_or_b32 s73, s70, s71
    s_and_b32 s73, s73, 0x80008000
    s_or_b32 s72, s72, s73
    s_cbranch_scc0 L2_noovf
    ds_write_b32 v12, v11 offset:{CNT}
    L2_noovf:
    s_mov_b32 s83, 0x07060100
    s_mov_b32 s84, 0x07060302
    """)
    for j in range(6):
        A(f"v_and_b32 v{44+2*j}, 0xffff, v{2+j}")
        A(f"v_perm_b32 v{45+2*j}, v{2+j}, v{8+j//2}, s{83 + (j&1)}")
    A(f"""
    s_waitcnt lgkmcnt(0)
    s_barrier
    @stamp 4
    ds_read_b32 v56, v108 offset:{CNT}
    s_waitcnt lgkmcnt(0)
    s_nop 1
    v_add_u32_dpp v57, v56, v56 row_shr:1 row_mask:0xf bank_mask:0xf bound_ctrl:0
    v_readlane_b32 s85, v56, 0
    v_add_u32_dpp v57, v57, v57 row_shr:2 row_mask:0xf bank_mask:0xf bound_ctrl:0
    v_add_u32_dpp v57, v57, v57 row_shr:4 row_mask:0xf bank_mask:0xf bound_ctrl:0
    v_add_u32_dpp v57, v57, v57 row_shr:8 row_mask:0xf bank_mask:0xf bound_ctrl:0
    v_add_u32_dpp v57, v57, v57 row_bcast:15 row_mask:0xa bank_mask:0xf
    v_add_u32_dpp v57, v57, v57 row_bcast:31 row_mask:0xc bank_mask:0xf
    v_readlane_b32 s72, v57, 15
    v_readlane_b32 s73, v57, 23
    v_readlane_b32 s74, v57, 31
    v_readlane_b32 s75, v57, 39
    v_readlane_b32 s77, v57, 47
    v_sub_u32 v57, v57, v56
    s_sub_u32 s77, s77, s75
    s_sub_u32 s75, s75, s74
    s_sub_u32 s74, s74, s73
    s_sub_u32 s73, s73, s72
    """)
    for i, r in enumerate((72, 73, 74, 75)):
        A(f"s_sub_u32 s{86+i}, 0, s{r}")
        A(f"s_and_b32 s{86+i}, s{86+i}, 31")
        lo = (0xFFFFFFFF << (16 + 8 * i)) & 0xFFFFFFFF if i < 2 else 0
        hi = 0xFFFFFFFF if i < 3 else 0xFFFFFF00
        A(f"s_mov_b32 exec_lo, {lo}")
        if i == 3:
            A(f"s_mov_b32 exec_hi, {hi}")
        A(f"v_add_u32 v57, s{86+i}, v57")
    A("s_mov_b64 exec, -1")
    for j in range(6):
        A(f"ds_bpermute_b32 v{2+j}, v{20+j}, v57")
    A(f"""
    s_lshl_b32 s86, s28, 5
    s_add_u32 s86, s86, 32
    v_and_b32 v58, 28, v99
    v_add_u32 v58, s86, v58
    ds_bpermute_b32 v59, v58, v57
    ds_bpermute_b32 v60, v58, v56
    """)
    for r in (72, 73, 74, 75, 77):
        A(f"s_add_u32 s{r}, s{r}, 31")
        A(f"s_lshr_b32 s{r}, s{r}, 5")
    A(f"""
    s_add_u32 s87, s72, s73
    s_add_u32 s88, s87, s74
    s_add_u32 s89, s88, s75
    s_add_u32 s90, s89, s77
    s_cmp_gt_u32 s90, {CAPT}
    s_cselect_b32 s85, 1, s85
    s_cmp_lg_u32 s85, 0
    s_cbranch_scc1 L2_goslow
    s_sub_u32 s91, s90, s87
    s_sub_u32 s91, s91, s87
    s_add_u32 s91, s91, 1
    s_ashr_i32 s91, s91, 1
    s_max_i32 s91, s91, 0
    s_min_i32 s91, s91, s77
    s_sub_u32 s92, s77, s91
    s_add_u32 s93, s89, s91
    s_cmp_eq_u32 s26, 0
    s_cselect_b32 s94, s89, s93
    s_cselect_b32 s95, s91, s92
    s_cmp_eq_u32 s28, 0
    s_cselect_b32 s94, 0, s94
    s_cselect_b32 s95, s72, s95
    s_cmp_eq_u32 s28, 1
    s_cselect_b32 s94, s72, s94
    s_cselect_b32 s95, s73, s95
    s_cmp_eq_u32 s28, 2
    s_cselect_b32 s94, s87, s94
    s_cselect_b32 s95, s74, s95
    s_cmp_eq_u32 s28, 3
    s_cselect_b32 s94, s88, s94
    s_cselect_b32 s95, s75, s95
    """)
    for j in range(6):
        A(f"s_waitcnt lgkmcnt({7-j+j})")
        A(f"v_add_lshl_u32 v{2+j}, v{2+j}, v{26+j}, 5")
        A(f"s_mov_b64 exec, s[{60+2*j}:{61+2*j}]")
        A(f"ds_write_b64 v{2+j}, v[{44+2*j}:{45+2*j}] offset:24")
        A("s_mov_b64 exec, -1")
    A(f"""
    s_lshl_b32 s86, s94, 10
    v_add_u32 v{VL}, s86, v106
    v_add_u32 v{VX}, s86, v107
    v_and_b32 v61, 3, v99
    v_lshlrev_b32 v61, 4, v61
    v_lshl_add_u32 v61, v58, 5, v61
    v_add_u32 v61, {S0 - 1024}, v61
    s_waitcnt lgkmcnt(6)
    v_add3_u32 v60, v59, v60, -1
    v_ashrrev_i32 v59, 3, v59
    v_ashrrev_i32 v60, 3, v60
    v_lshl_add_u32 v{VLO}, v59, 6, v61
    v_lshl_add_u32 v{VHI2}, v60, 6, v61
    v_add_u32 v{VHI}, 128, v{VHI2}
    v_add_u32 v{VLO2}, -128, v{VLO}
    s_lshl_b32 s86, s94, 8
    s_add_u32 s86, s86, 64
    v_lshl_add_u32 v{VSC}, v101, 6, v61
    v_add_u32 v{VSC}, s86, v{VSC}
    v_lshlrev_b32 v2, 1, v96
    @stamp 5
    s_waitcnt vmcnt(0) lgkmcnt(0)
    s_barrier
    @stamp 6
    ds_read_b64 v[4:5], v2 offset:24
    ds_read_b64 v[6:7], v2 offset:{24+24576}
    """)
    def idx_reads(off):
        for i in range(4):
            A(f"ds_read_b32 v{IX+2*i}, v{VL} offset:{off + 24 + 32*i}")
    def dma():
        for i in range(4):
            if i == 0:
                A("s_mov_b32 m0, s31")
            else:
                A(f"s_add_u32 m0, s31, {1056*i}")
            A(f"buffer_load_dwordx4 v[{IX+2*i}:{IX+2*i+1}], s[40:43], 0 idxen offen lds")
    idx_reads(0)
    A(f"""
    s_mov_b32 s86, {POS}
    s_mul_i32 s87, s2, 480
    s_add_u32 s87, s87, {2*POS - 96}
    v_lshrrev_b32 v3, 3, v0
    v_lshlrev_b32 v3, 6, v3
    v_and_b32 v8, 7, v0
    v_lshl_add_u32 v3, v8, 1, v3
    v_add_u32 v3, {S0 + 64 - 1024}, v3
    v_mov_b32 v8, 0x3f80
    """)
    for k in range(2):
        s_, a_ = 4 + 2 * k, 5 + 2 * k
        f_, as_, ad_ = 20 + 4 * k, 21 + 4 * k, 22 + 4 * k
        p = 32 + 6 * k
        A(f"s_waitcnt lgkmcnt({5 if k == 0 else 10})")
        A(f"v_mad_u32_u24 v{as_}, v{s_}, 6, s86")
        A(f"v_lshrrev_b32 v{f_}, 16, v{a_}")
        for c in range(3):
            A(f"ds_read_u16_d16_hi v{p+c}, v{as_} offset:{2*c}")
        A(f"v_mad_u32_u24 v{ad_}, v{f_}, 3, s87")
        A(f"v_lshrrev_b32 v{ad_}, 1, v{ad_}")
        for c in range(3):
            A(f"ds_read_u16_d16_hi v{p+3+c}, v{ad_} offset:{2*c}")
        A(f"v_cmp_ne_u32 s[{60+2*k}:{61+2*k}], 0, v{f_}")
    A(f"""
    s_cmp_eq_u32 s95, 0
    s_cbranch_scc1 L2_nodma0
    s_cmp_ge_u32 s24, 8
    s_cbranch_scc1 L2_nodma0
    s_waitcnt lgkmcnt(12)
    """)
    dma()
    A("L2_nodma0:")
    for k in range(2):
        s_, a_ = 4 + 2 * k, 5 + 2 * k
        f_, as_, ad_ = 20 + 4 * k, 21 + 4 * k, 22 + 4 * k
        p = 32 + 6 * k
        A(f"v_bfe_u32 v{as_}, v{f_}, 1, 4")
        A(f"v_add_u32 v{as_}, v2, v{as_}")
        A(f"v_lshl_add_u32 v{ad_}, v{f_}, 5, v3")
        A(f"s_waitcnt lgkmcnt(6)")
        for c in range(3):
            A(f"v_sub_f32 v{p+c}, v{p+3+c}, v{p+c}")
        A(f"v_cvt_pk_bf16_f32 v{p}, v{p}, v{p+1}")
        A(f"v_cvt_pk_bf16_f32 v{p+1}, v{p+2}, 0")
        A(f"v_dot2_f32_bf16 v{p+2}, v{p}, v{p}, 0")
        A(f"v_dot2_f32_bf16 v{p+2}, v{p+1}, v{p+1}, v{p+2}")
        A(f"s_mov_b64 exec, s[{60+2*k}:{61+2*k}]")
        A(f"ds_write_b16 v{as_}, v8 offset:{24576*k}")
        A(f"ds_write_b16 v{ad_}, v8 offset:{6144*k}")
        A(f"ds_write_b16 v{ad_}, v{p} offset:{6144*k+16}")
        A(f"v_cvt_pk_bf16_f32 v{s_}, v{p+2}, v{p+2}")
        A(f"ds_write_b16_d16_hi v{ad_}, v{p} offset:{6144*k+32}")
        A(f"ds_write_b16 v{ad_}, v{p+1} offset:{6144*k+48}")
        A(f"ds_write_b64 v2, v[{s_}:{a_}] offset:{24576*k+16}")
        A("s_mov_b64 exec, -1")
    for i in range(8):
        A(f"v_mov_b32 v{PB+i}, 0")
        A(f"v_mov_b32 v{SF+i}, 0")
        A(f"v_mov_b32 v{E1+8+i}, 0")
    A(f"""
    s_waitcnt lgkmcnt(0)
    s_barrier
    @stamp 7
    s_mov_b32 s14, s95
    s_cmp_eq_u32 s95, 0
    s_cbranch_scc1 L2_done
    s_cmp_lt_u32 s24, 8
    s_cbranch_scc1 L2_dma0done
    """)
    dma()
    A("L2_dma0done:")
    def a_reads():
        for i in range(4):
            A(f"ds_read_b128 v[{AF+4*i}:{AF+4*i+3}], v{VA} offset:{32*i}")
    A(f"ds_read_b128 v[{XF}:{XF+3}], v{VX}")
    idx_reads(1024)
    A("s_waitcnt vmcnt(0)")
    a_reads()
    A(f"""
    s_waitcnt lgkmcnt(0)
    s_cmp_lt_u32 s95, 2
    s_cbranch_scc1 L2_nodma1
    """)
    dma()
    A("L2_nodma1:")
    A(mf32(T0, AF, ID, None))
    A(mf32(T0, AF+4, ID+4, T0))
    A(mf32(T0, XF, EXT, T0))
    A(mf32(T1, AF+8, ID, None))
    A("s_nop 10")
    A("@stamp 8")
    if "prio" in XF_:
        A("s_cmp_lt_u32 s24, 8")
        A("s_cbranch_scc1 L2_pr")
        A("s_setprio 1")
        A("L2_pr:")
    if "align" in XF_: A.ins.append(I(".p2align 6"))
    A("L2_loop:")
    def run(ops, ins):
        for i, v in enumerate(ops):
            for x in ins.get(i, []):
                if callable(x):
                    if x is a_reads and "noa" in XF_: continue
                    if x.__name__ == "<lambda>" and "noidx" in XF_: continue
                    x()
                elif "nosf" in XF_ and x.startswith(f"ds_read_b128 v[{SF}") or "nosf" in XF_ and x.startswith(f"ds_read_b128 v[{SF+4}"): continue
                elif "nowait" in XF_ and x == "s_waitcnt vmcnt(0)": continue
                elif "noxf" in XF_ and x.startswith(f"ds_read_b128 v[{XF}"): continue
                else: A(x)
            A(v)
    ex = lambda e, t: [f"v_exp_f32 v{e+i}, v{t+i}" for i in range(16)]
    rc = lambda e: [f"v_rcp_f32 v{e+i}, v{e+i}" for i in range(16)]
    mu = lambda e, t: [f"v_pk_mul_f32 v[{e+2*i}:{e+2*i+1}], v[{e+2*i}:{e+2*i+1}], v[{t+2*i}:{t+2*i+1}]" for i in range(8)]
    run(ex(E0, T0), {0: [mf32(T1, AF+12, ID+4, T1)], 4: [mf32(T1, XF, EXT+4, T1)]})
    run(ex(E1, T1), {0: ["s_waitcnt lgkmcnt(0)", mf32(AC1, E1+8, SF, AC1)], 4: [mf32(E0, ON, ON, E0)], 8: [mf32(AC1, E1+12, SF+4, AC1)],
                     12: [f"ds_read_b128 v[{XF}:{XF+3}], v{VX} offset:1024", lambda: idx_reads(2048)]})
    run(rc(E0), {0: [mf32(AC0, PB, SF, AC0)], 2: ["s_waitcnt vmcnt(0)", a_reads], 4: [mf32(E1, ON, ON, E1)], 8: [mf32(AC0, PB+4, SF+4, AC0)]})
    run(mu(E0, T0), {})
    def dma_next():
        if "nodma" in XF_: return
        A("s_cmp_lt_u32 s95, 3")
        A("s_cbranch_scc1 L2_nodma2")
        dma()
        A("L2_nodma2:")
    run([f"v_cvt_pk_bf16_f32 v{PB+i}, v{E0+2*i}, v{E0+2*i+1}" for i in range(8)],
        {0: ["s_waitcnt lgkmcnt(0)", mf32(T0, AF, ID, None)], 2: [dma_next]})
    run(rc(E1), {0: [mf32(T0, AF+4, ID+4, T0)], 4: [mf32(T0, XF, EXT, T0)],
                 8: [f"v_med3_i32 v{SF}, v{VSC}, v{VLO}, v{VHI}", f"v_med3_i32 v{SF+4}, v{VSC}, v{VLO2}, v{VHI2}",
                     f"ds_read_b128 v[{SF}:{SF+3}], v{SF}", f"ds_read_b128 v[{SF+4}:{SF+7}], v{SF+4} offset:128",
                     f"v_add_u32 v{VSC}, 256, v{VSC}", f"v_add_u32 v{VL}, 1024, v{VL}", f"v_add_u32 v{VX}, 1024, v{VX}"]})
    run(mu(E1, T1), {})
    run([f"v_cvt_pk_bf16_f32 v{E1+8+i}, v{E1+2*i}, v{E1+2*i+1}" for i in range(7, -1, -1)],
        {0: [mf32(T1, AF+8, ID, None)], 6: ["s_sub_u32 s95, s95, 1", "s_cmp_lg_u32 s95, 0"]})
    A("s_cbranch_scc1 L2_loop")
    A("s_waitcnt lgkmcnt(0)")
    A(mf32(AC0, PB, SF, AC0))
    A(mf32(AC1, E1+8, SF, AC1))
    A(mf32(AC0, PB+4, SF+4, AC0))
    A(mf32(AC1, E1+12, SF+4, AC1))
    A("s_nop 11")
    A("L2_done:")
    A("@stamp 9")
    A(f"""
    v_mbcnt_lo_u32_b32 v99, -1, 0
    v_mbcnt_hi_u32_b32 v99, -1, v99
    s_cmp_lg_u32 s29, 0
    s_cbranch_scc1 L2_slownext
    L2_flush:
    v_lshrrev_b32 v101, 5, v99
    s_lshl_b32 s72, s25, 7
    v_lshl_add_u32 v1, v101, 3, s72
    """)
    for i in range(8):
        A(f"global_load_dwordx2 v[{2*i+2}:{2*i+3}], v1, s[16:17] offset:{16*i}")
    A(f"""
    s_mul_i32 s73, s2, 10240
    """)
    srd(A, 52, 4, 5, 10240, add="s73")
    srd(A, 56, 20, 21, 10240, add="s73")
    A(f"""
    s_mov_b32 s74, {NLN2}
    s_mov_b32 s75, {NLN2}
    s_lshl_b32 s76, s28, 3
    s_cmp_eq_u32 s27, 0
    s_cselect_b32 s77, s26, 0
    s_lshl_b32 s77, s77, 3
    s_add_u32 s77, s77, s76
    s_mul_i32 s77, s77, {MSTR}
    s_add_u32 s77, s77, {MB}
    s_add_u32 s77, s77, s72
    v_bfe_u32 v20, v99, 2, 3
    v_mul_u32_u24 v20, {MSTR}, v20
    v_lshl_add_u32 v20, v101, 3, v20
    v_add_u32 v20, s77, v20
    s_lshl_b32 s76, s28, 7
    v_and_b32 v21, 31, v99
    v_lshl_add_u32 v21, v21, 2, s76
    """)
    for i in range(16):
        A(f"v_pk_mul_f32 v[{AC0+2*i}:{AC0+2*i+1}], v[{AC0+2*i}:{AC0+2*i+1}], s[74:75]")
    for i in range(16):
        A(f"v_cvt_pk_bf16_f32 v{AC0+i}, v{AC0+2*i}, v{AC0+2*i+1}")
    A("s_mov_b32 exec_lo, 0x11111111")
    A("s_mov_b32 exec_hi, 0x11111111")
    for i in range(8):
        A(f"ds_write_b64 v20, v[{AC0+2*i}:{AC0+2*i+1}] offset:{16*i}")
    A("s_mov_b64 exec, -1")
    A("s_waitcnt vmcnt(0)")
    for i in range(16):
        A(f"v_dot2_f32_bf16 v22, v{AC0+i}, v{2+i}, {'v22' if i else '0'}")
    A(f"ds_add_f32 v21, v22 offset:{CA}")
    A(f"""
    s_cmp_lg_u32 s27, 0
    s_cbranch_scc1 L2_other
    """)
    W, H, D = 0, 64, 112
    A(f"""
    v_lshlrev_b32 v140, 4, v99
    s_lshl_b32 s72, s24, 14
    s_add_u32 s72, s72, {WHP_OFF}
    v_and_b32 v141, 15, v99
    v_lshrrev_b32 v142, 4, v99
    v_lshlrev_b32 v143, 4, v142
    v_lshl_add_u32 v144, v141, 8, v143
    """)
    for k in range(4):
        A(f"s_add_u32 s{78+k}, s24, {k}")
        A(f"s_and_b32 s{78+k}, s{78+k}, 3")
        A(f"s_lshl_b32 s{82+k}, s{78+k}, 6")
        A(f"s_lshl_b32 s{78+k}, s{78+k}, 10")
        A(f"s_add_u32 s{78+k}, s{78+k}, s72")
        A(f"s_add_u32 s{86+k}, s{78+k}, 8192")
    A("v_add_u32 v146, 4096, v144")
    A("v_add_u32 v147, 8192, v144")
    A(f"v_mov_b32 v145, {MB}")
    A(f"v_mul_u32_u24 v148, {MSTR}, v141")
    A("v_add3_u32 v145, v145, v148, v143")
    for k in range(4):
        A(f"buffer_load_dwordx4 v[{W+4*k}:{W+4*k+3}], v140, s[48:51], s{78+k} offen")
        A(f"buffer_load_dwordx4 v[{W+32+4*k}:{W+32+4*k+3}], v140, s[48:51], s{86+k} offen")
        for nt in range(3):
            A(f"buffer_load_dwordx4 v[{H+16*nt+4*k}:{H+16*nt+4*k+3}], v{(144,146,147)[nt]}, s[52:55], s{82+k} offen")
    A("s_add_u32 s73, s72, 4096")
    A("s_add_u32 s74, s72, 12288")
    for k in range(4):
        A(f"buffer_load_dwordx4 v[{W+16+4*k}:{W+16+4*k+3}], v140, s[48:51], s73 offen offset:{1024*k}")
        A(f"buffer_load_dwordx4 v[{W+48+4*k}:{W+48+4*k+3}], v140, s[48:51], s74 offen offset:{1024*k}")
    for k in range(4):
        A(f"s_waitcnt vmcnt({8 + 5*(3-k)})")
        for nt in range(3):
            for ab in range(2):
                d = D + 8 * nt + 4 * ab
                A(mf16(d, W+32*ab+4*k, H+16*nt+4*k, d if k else None))
    MF = [0, 32, 148]
    A(f"""
    s_mov_b32 s78, {NLOG2E}
    s_waitcnt vmcnt(0) lgkmcnt(0)
    @stamp 10
    s_barrier
    @stamp 11
    """)
    for nt in range(3):
        for k in range(4):
            A(f"ds_read_b128 v[{MF[nt]+4*k}:{MF[nt]+4*k+3}], v145 offset:{nt*16*MSTR + 64*k}")
    for nt in range(3):
        for k in range(4):
            A(f"s_waitcnt lgkmcnt({11 - 4*nt - k})")
            for ab in range(2):
                d = D + 8 * nt + 4 * ab
                A(mf16(d, W+16+32*ab+4*k, MF[nt]+4*k, d))
    for nt in range(3):
        d = D + 8 * nt
        tmp = H + 16 * nt + 4
        if nt == 2:
            for i in range(8):
                A(f"v_add_f32_dpp v{d+i}, v{d+i}, v{d+i} row_ror:8 row_mask:0xf bank_mask:0xf")
        for i in range(8):
            A(f"v_mul_f32 v{tmp+i}, s78, v{d+i}")
        for i in range(8):
            A(f"v_exp_f32 v{tmp+i}, v{tmp+i}")
        for i in range(8):
            A(f"v_add_f32 v{tmp+i}, 1.0, v{tmp+i}")
        for i in range(8):
            A(f"v_rcp_f32 v{tmp+i}, v{tmp+i}")
        h = H + 16 * nt
        for i in range(4):
            A(f"v_lshlrev_b32 v{tmp+8}, 16, v{h+i}")
            A(f"v_and_b32 v{tmp+9}, 0xffff0000, v{h+i}")
            A(f"v_fma_f32 v{tmp+8}, v{d+2*i}, v{tmp+2*i}, v{tmp+8}")
            A(f"v_fma_f32 v{tmp+9}, v{d+2*i+1}, v{tmp+2*i+1}, v{tmp+9}")
            A(f"v_cvt_pk_bf16_f32 v{h+i}, v{tmp+8}, v{tmp+9}")
        A(f"buffer_store_dwordx4 v[{h}:{h+3}], v{(144,146,147)[nt]}, s[56:59], s82 offen")
    A(f"""
    @wait
    @stamp 13
    @stamp 14 real
    @dump
    s_endpgm
    L2_other:
    s_mul_i32 s72, s2, 240
    s_add_u32 s73, s72, 2560000
    """)
    srd(A, 52, 6, 7, 240, add="s72")
    srd(A, 56, 20, 21, 240, add="s73")
    A(f"""
    s_sub_u32 s74, s24, 4
    s_lshl_b32 s74, s74, 6
    v_add_u32 v1, s74, v99
    v_lshlrev_b32 v2, 1, v1
    buffer_load_ushort v3, v2, s[52:55], 0 offen
    v_mul_u32_u24 v4, 21846, v1
    v_lshrrev_b32 v4, 16, v4
    v_add_u32 v4, v4, v1
    v_lshlrev_b32 v4, 2, v4
    s_waitcnt lgkmcnt(0)
    @stamp 10
    s_barrier
    @stamp 11
    @stamp 13
    @stamp 14 real
    @dump 8
    s_mov_b64 exec, -1
    s_cmp_gt_u32 s24, 5
    s_cbranch_scc1 L2_exit
    ds_read_b32 v5, v4 offset:{CA+4}
    s_waitcnt vmcnt(0)
    v_lshlrev_b32 v3, 16, v3
    s_waitcnt lgkmcnt(0)
    v_add_f32 v3, v3, v5
    v_cvt_pk_bf16_f32 v3, v3, v3
    buffer_store_short v3, v2, s[56:59], 0 offen
    L2_exit:
    s_endpgm
    """)
    A(f"""
    L2_slownext:
    s_add_u32 s30, s30, 768
    s_cmp_ge_u32 s30, 320000
    s_cbranch_scc1 L2_flush
    L2_goslow:
    s_mov_b32 s29, 1
    s_waitcnt vmcnt(0) lgkmcnt(0)
    s_barrier
    s_lshl_b32 s72, s24, 6
    v_add_u32 v0, s72, v99
    v_lshlrev_b32 v96, 4, v0
    v_lshlrev_b32 v97, 3, v0
    v_and_b32 v100, 31, v99
    v_lshrrev_b32 v101, 5, v99
    s_mul_i32 s76, s2, 5
    s_add_u32 s76, s76, s28
    s_lshl_b32 s76, s76, 11
    s_sub_u32 s77, {EXTC_OFF - AT_OFF}, s76
    v_mul_u32_u24 v102, s77, v101
    v_lshl_add_u32 v102, v100, 4, v102
    s_lshl_b32 s77, s25, 10
    s_add_u32 s76, s76, s77
    s_add_u32 s76, s76, {AT_OFF}
    v_add_u32 v1, s30, v0
    v_min_u32 v3, 319999, v1
    v_lshlrev_b32 v4, 2, v3
    v_lshlrev_b32 v3, 1, v3
    global_load_dword v5, v4, s[12:13]
    global_load_dword v6, v4, s[10:11]
    global_load_ushort v8, v3, s[8:9]
    s_mul_i32 s72, s2, 40
    s_mov_b32 s73, 320000
    v_cmp_gt_u32 s[60:61], s73, v1
    s_waitcnt vmcnt(0)
    v_subrev_u32 v5, s72, v5
    v_cmp_gt_u32 s[62:63], 40, v5
    v_add_u32 v5, 8, v5
    v_lshl_add_u32 v5, v5, 18, v6
    s_and_b64 s[60:61], s[60:61], s[62:63]
    v_cndmask_b32 v2, 0, v5, s[60:61]
    v_mov_b32 v3, 0
    v_mov_b32 v4, 0
    v_mov_b32 v5, 0
    v_mov_b32 v6, 0
    v_mov_b32 v7, 0
    s_branch L2_batch
    """)
    A.check_all_edges()
    return A
```

```python
import sys
from asmlib import Asm

NAME = "gather_scatter__cheap_equivariant_egnn__graph"
REC_OFF = 0
EAC_OFF = 4 << 20
AT_OFF = 8 << 20
EXTC_OFF = AT_OFF + 1280 * 2048
BT_OFF = 12 << 20
WHP_OFF = 16 << 20
WS_SIZE = 32 << 20
NBINWG = 125
NGEMM = 314
NWG1 = NBINWG + NGEMM + 2
LDS1 = 49152
NLOG2E = 0xBFB8AA3B
NLN2 = 0xBF317218

def mf32(d, a, b, c):
    cs = "0" if c is None else f"v[{c}:{c+15}]"
    return f"v_mfma_f32_32x32x16_bf16 v[{d}:{d+15}], v[{a}:{a+3}], v[{b}:{b+3}], {cs}"
def mf16(d, a, b, c):
    cs = "0" if c is None else f"v[{c}:{c+3}]"
    return f"v_mfma_f32_16x16x32_bf16 v[{d}:{d+3}], v[{a}:{a+3}], v[{b}:{b+3}], {cs}"

def srd(A, r, lo, hi, size, add=None, stride=0):
    if add is None:
        A(f"s_mov_b32 s{r}, s{lo}")
        A(f"s_mov_b32 s{r+1}, s{hi}")
    else:
        A(f"s_add_u32 s{r}, s{lo}, {add}")
        A(f"s_addc_u32 s{r+1}, s{hi}, 0")
    if stride:
        A(f"s_or_b32 s{r+1}, s{r+1}, {stride << 16}")
    A(f"s_mov_b32 s{r+2}, {size}")
    A(f"s_mov_b32 s{r+3}, 0x00020000")

import os
STAMP = bool(os.environ.get("STAMP"))
DBG1_OFF = 20 << 20
DBG2_OFF = 24 << 20
def stamp(A, reg, real=False):
    if not STAMP: return
    A(f"s_mem{'real' if real else ''}time s[96:97]")
    A("s_waitcnt lgkmcnt(0)")
    A(f"s_mov_b32 s{reg}, s96")
def dump(A, regs, wslo, off, wreg, vt=0):
    if not STAMP: return
    A(f"s_mov_b64 exec, -1")
    A(f"v_mov_b32 v{vt}, 0")
    for i, r in enumerate(regs):
        A(f"v_writelane_b32 v{vt}, s{r}, {i}")
    A(f"v_mbcnt_lo_u32_b32 v{vt+1}, -1, 0")
    A(f"s_lshl_b32 s96, s2, 4")
    A(f"s_add_u32 s96, s96, s{wreg}")
    A(f"s_lshl_b32 s96, s96, 6")
    A(f"s_add_u32 s96, s96, {off}")
    A(f"v_lshl_add_u32 v{vt+1}, v{vt+1}, 2, s96")
    A(f"s_mov_b64 exec, 0xffff")
    A(f"global_store_dword v{vt+1}, v{vt}, s[{wslo}:{wslo+1}]")

def mk_macro(regs, wslo, off, wreg):
    def macro(A, t):
        if t[0] == "stamp": stamp(A, regs[int(t[1])], len(t) > 2)
        elif t[0] == "wait":
            if STAMP: A("s_waitcnt vmcnt(0)")
        elif t[0] == "dump": dump(A, regs, wslo, off, wreg, int(t[1]) if len(t) > 1 else 0)
    return macro

def gen_k1():
    A = Asm()
    A.macro = mk_macro(list(range(60, 72)), 20, DBG1_OFF, 23)
    A("k1_kernel:")
    A(f"""
    s_load_dwordx16 s[4:19], s[0:1], 0
    s_load_dwordx2 s[20:21], s[0:1], 80
    s_cmp_ge_u32 s2, {NWG1}
    s_cbranch_scc1 L1_exit
    @stamp 0 real
    @stamp 1
    s_cmp_ge_u32 s2, {NBINWG}
    s_cbranch_scc1 L1_gemm
    v_lshlrev_b32 v1, 4, v0
    v_lshlrev_b32 v2, 2, v0
    s_mul_i32 s3, s2, 10240
    v_add_u32 v3, s3, v1
    s_add_u32 s22, s3, 8192
    v_add_u32 v4, s22, v2
    v_lshrrev_b32 v5, 1, v3
    v_lshrrev_b32 v6, 1, v4
    v_mov_b32 v24, 0
    v_mov_b32 v25, 0
    v_mov_b32 v26, 0
    v_mov_b32 v27, 0
    s_waitcnt lgkmcnt(0)
    global_load_dwordx4 v[8:11], v3, s[12:13]
    global_load_dword v12, v4, s[12:13]
    global_load_dwordx4 v[14:17], v3, s[10:11]
    global_load_dword v18, v4, s[10:11]
    global_load_dwordx2 v[20:21], v5, s[8:9]
    global_load_ushort v22, v6, s[8:9]
    ds_write_b128 v1, v[24:27]
    ds_write_b128 v1, v[24:27] offset:8192
    ds_write_b128 v1, v[24:27] offset:16384
    ds_write_b128 v1, v[24:27] offset:24576
    ds_write_b32 v2, v24 offset:32768
    v_mov_b32 v23, 1
    """)
    srd(A, 24, 20, 21, 4000000)
    srd(A, 28, 20, 21, 2000000, add=EAC_OFF)
    A(f"""
    v_lshrrev_b32 v28, 3, v0
    v_and_b32 v29, 7, v0
    v_mul_u32_u24 v28, 16000, v28
    v_lshl_add_u32 v28, v29, 4, v28
    v_lshrrev_b32 v29, 2, v0
    v_and_b32 v30, 3, v0
    v_mul_u32_u24 v29, 8000, v29
    v_lshl_add_u32 v29, v30, 4, v29
    s_lshl_b32 s32, s2, 7
    s_add_u32 s33, s32, 1024000
    s_add_u32 s34, s32, 2048000
    s_add_u32 s35, s32, 3072000
    s_lshl_b32 s36, s2, 6
    s_add_u32 s37, s36, 1024000
    s_mov_b32 s38, 52429
    s_movk_i32 s39, -40
    s_waitcnt lgkmcnt(0)
    s_barrier
    @stamp 2
    s_waitcnt vmcnt(4)
    @stamp 3
    """)
    for j in range(5):
        A(f"v_mul_u32_u24 v{32+j}, s38, v{8+j}")
        A(f"v_lshrrev_b32 v{32+j}, 21, v{32+j}")
        A(f"v_lshlrev_b32 v{38+j}, 2, v{32+j}")
        A(f"ds_add_rtn_u32 v{44+j}, v{38+j}, v23 offset:32000")
    for j in range(5):
        A(f"v_mad_i32_i24 v{8+j}, v{32+j}, s39, v{8+j}")
        A(f"v_add_u32 v{8+j}, 8, v{8+j}")
    A("s_waitcnt vmcnt(2)")
    for j in range(5):
        A(f"v_lshl_add_u32 v{8+j}, v{8+j}, 18, v{14+j}")
    A("s_waitcnt vmcnt(0)")
    for j in range(5):
        A(f"s_waitcnt lgkmcnt({4-j+2*j})")
        A(f"v_min_u32 v{44+j}, 31, v{44+j}")
        A(f"v_lshl_add_u32 v{44+j}, v{32+j}, 5, v{44+j}")
        A(f"v_lshlrev_b32 v{38+j}, 2, v{44+j}")
        A(f"v_lshlrev_b32 v{44+j}, 1, v{44+j}")
        A(f"ds_write_b32 v{38+j}, v{8+j}")
        op = "ds_write_b16_d16_hi" if j in (1, 3) else "ds_write_b16"
        A(f"{op} v{44+j}, v{20 + j//2} offset:33024")
    A(f"""
    s_waitcnt lgkmcnt(0)
    @stamp 4
    s_barrier
    @stamp 5
    ds_read_b128 v[32:35], v1
    ds_read_b128 v[36:39], v1 offset:8192
    ds_read_b128 v[40:43], v1 offset:16384
    ds_read_b128 v[44:47], v1 offset:24576
    ds_read_b128 v[48:51], v1 offset:33024
    ds_read_b128 v[52:55], v1 offset:41216
    s_waitcnt lgkmcnt(5)
    buffer_store_dwordx4 v[32:35], v28, s[24:27], s32 offen
    s_waitcnt lgkmcnt(4)
    buffer_store_dwordx4 v[36:39], v28, s[24:27], s33 offen
    s_waitcnt lgkmcnt(3)
    buffer_store_dwordx4 v[40:43], v28, s[24:27], s34 offen
    s_waitcnt lgkmcnt(2)
    buffer_store_dwordx4 v[44:47], v28, s[24:27], s35 offen
    s_waitcnt lgkmcnt(1)
    buffer_store_dwordx4 v[48:51], v29, s[28:31], s36 offen
    s_waitcnt lgkmcnt(0)
    buffer_store_dwordx4 v[52:55], v29, s[28:31], s37 offen
    @stamp 6
    v_lshrrev_b32 v1, 6, v0
    v_readfirstlane_b32 s23, v1
    @wait
    @stamp 7
    @stamp 8 real
    @dump
    L1_exit:
    s_endpgm
    """)
    A(f"""
    L1_gemm:
    s_sub_u32 s3, s2, {NBINWG}
    v_lshrrev_b32 v1, 6, v0
    v_and_b32 v2, 63, v0
    s_and_b32 s22, s3, 1
    v_readfirstlane_b32 s23, v1
    s_lshr_b32 s3, s3, 1
    s_lshl_b32 s40, s22, 15
    v_lshrrev_b32 v3, 4, v2
    v_and_b32 v4, 15, v2
    v_lshlrev_b32 v5, 2, v3
    v_xor_b32 v5, v5, v4
    v_lshlrev_b32 v5, 4, v5
    v_lshl_add_u32 v5, v3, 8, v5
    s_lshl_b32 s41, s23, 12
    v_add_u32 v5, s41, v5
    s_lshl_b32 s42, s23, 3
    v_add_u32 v6, s42, v3
    v_and_b32 v7, 15, v6
    v_xor_b32 v7, v7, v4
    v_lshlrev_b32 v7, 4, v7
    v_lshl_add_u32 v6, v6, 8, v7
    v_xor_b32 v7, 64, v6
    s_and_b32 s43, s23, 3
    s_lshr_b32 s44, s23, 2
    v_bfe_u32 v8, v2, 2, 2
    v_and_b32 v9, 3, v2
    v_xor_b32 v10, s43, v8
    v_lshlrev_b32 v10, 6, v10
    v_lshl_add_u32 v10, v8, 8, v10
    s_cmp_eq_u32 s3, {NGEMM//2}
    s_waitcnt lgkmcnt(0)
    s_cselect_b32 s24, s18, s14
    s_cselect_b32 s25, s19, s15
    s_add_u32 s24, s24, s40
    s_addc_u32 s25, s25, 0
    s_mov_b32 m0, s41
    s_mov_b32 s26, 32768
    s_mov_b32 s27, 0x00020000
    buffer_load_dwordx4 v5, s[24:27], 0 offen lds
    buffer_load_dwordx4 v5, s[24:27], 0 offen offset:1024 lds
    buffer_load_dwordx4 v5, s[24:27], 0 offen offset:2048 lds
    buffer_load_dwordx4 v5, s[24:27], 0 offen offset:3072 lds
    """)
    srd(A, 32, 20, 21, WS_SIZE)
    A(f"""
    s_cmp_eq_u32 s3, {NGEMM//2}
    s_cbranch_scc1 L1_pack
    """)
    srd(A, 28, 4, 5, 2560000)
    A(f"""
    s_lshl_b32 s45, s23, 11
    s_add_u32 s45, s45, 32768
    s_lshl_b32 s46, s3, 14
    s_mov_b32 m0, s45
    v_lshrrev_b32 v11, 5, v2
    buffer_load_dwordx4 v6, s[28:31], s46 offen lds
    buffer_load_dwordx4 v7, s[28:31], s46 offen offset:1024 lds
    v_lshl_add_u32 v10, v11, 11, v10
    v_bfe_u32 v12, v2, 4, 1
    v_and_b32 v13, 31, v2
    s_lshl_b32 s47, s44, 5
    v_add_u32 v14, s47, v13
    v_xor_b32 v15, v11, v14
    v_and_b32 v15, 15, v15
    v_lshlrev_b32 v15, 4, v15
    v_lshl_add_u32 v15, v14, 8, v15
    s_mov_b32 s48, {NLOG2E}
    s_mov_b32 s49, {NLOG2E}
    s_cmp_eq_u32 s22, 1
    s_cbranch_scc1 L1_matB
    v_lshl_add_u32 v10, v12, 5, v10
    v_lshl_add_u32 v10, v9, 3, v10
    """)
    def frag_reads():
        A("@stamp 2")
        A("s_waitcnt vmcnt(0)")
        A("@stamp 3")
        A("s_barrier")
        A("@stamp 5")
        for s in range(8):
            if s:
                A(f"v_xor_b32 v16, {s*32}, v15")
            A(f"ds_read_b128 v[{64+4*s}:{64+4*s+3}], v{16 if s else 15} offset:32768")
            A(f"ds_read_b64_tr_b16 v[{32+4*s}:{32+4*s+1}], v10 offset:{16*s*256}")
            A(f"ds_read_b64_tr_b16 v[{32+4*s+2}:{32+4*s+3}], v10 offset:{(16*s+4)*256}")
    def scale_cvt():
        for i in range(8):
            A(f"v_pk_mul_f32 v[{96+2*i}:{96+2*i+1}], v[{96+2*i}:{96+2*i+1}], s[48:49]")
        for i in range(8):
            A(f"v_cvt_pk_bf16_f32 v{96+i}, v{96+2*i}, v{96+2*i+1}")
    A(f"""
    s_lshl_b32 s50, s43, 9
    v_lshl_add_u32 v17, v13, 4, s50
    v_lshl_add_u32 v17, v11, 3, v17
    s_lshl_b32 s51, s44, 13
    s_add_u32 s51, s51, s46
    s_add_u32 s51, s51, {AT_OFF}
    s_add_u32 s52, s51, 4096
    """)
    frag_reads()
    for s in range(8):
        A(f"s_waitcnt lgkmcnt({min(15, 3*(7-s))})")
        A(mf32(96, 64+4*s, 32+4*s, 96 if s else None))
    scale_cvt()
    A(f"""
    buffer_store_dwordx2 v[96:97], v17, s[32:35], s51 offen
    buffer_store_dwordx2 v[98:99], v17, s[32:35], s51 offen offset:2048
    buffer_store_dwordx2 v[100:101], v17, s[32:35], s52 offen
    buffer_store_dwordx2 v[102:103], v17, s[32:35], s52 offen offset:2048
    @stamp 6
    @wait
    @stamp 7
    @stamp 8 real
    @dump
    s_endpgm
    L1_matB:
    v_and_b32 v18, 1, v9
    v_lshrrev_b32 v19, 1, v9
    v_lshl_add_u32 v10, v18, 5, v10
    v_lshl_add_u32 v10, v12, 4, v10
    v_lshl_add_u32 v10, v19, 3, v10
    s_lshl_b32 s50, s43, 6
    v_lshl_add_u32 v17, v14, 8, s50
    v_lshl_add_u32 v17, v11, 5, v17
    s_add_u32 s51, s46, {BT_OFF}
    """)
    frag_reads()
    for s in range(8):
        A(f"s_waitcnt lgkmcnt({min(15, 3*(7-s))})")
        A(mf32(96, 32+4*s, 64+4*s, 96 if s else None))
    scale_cvt()
    A(f"""
    buffer_store_dwordx4 v[96:99], v17, s[32:35], s51 offen
    buffer_store_dwordx4 v[100:103], v17, s[32:35], s51 offen offset:16
    @stamp 6
    @wait
    @stamp 7
    @stamp 8 real
    @dump
    s_endpgm
    L1_pack:
    v_and_b32 v20, 127, v0
    v_lshlrev_b32 v21, 1, v20
    v_add_u32 v21, 65536, v21
    global_load_ushort v22, v21, s[14:15]
    global_load_ushort v23, v21, s[14:15] offset:256
    v_lshl_add_u32 v10, v3, 11, v10
    v_lshl_add_u32 v10, v9, 4, v10
    s_lshl_b32 s50, s44, 3
    v_add_u32 v10, s50, v10
    s_lshl_b32 s51, s43, 14
    s_lshl_b32 s52, s44, 13
    s_add_u32 s51, s51, s52
    s_lshl_b32 s52, s22, 12
    s_add_u32 s51, s51, s52
    s_add_u32 s51, s51, {WHP_OFF}
    v_lshlrev_b32 v17, 4, v2
    v_lshlrev_b32 v20, 4, v20
    s_mov_b32 s48, {NLOG2E}
    s_mov_b32 s53, {EXTC_OFF}
    s_waitcnt vmcnt(0)
    s_barrier
    """)
    for ks in range(4):
        A(f"ds_read_b64_tr_b16 v[{32+4*ks}:{32+4*ks+1}], v10 offset:{32*ks*256}")
        A(f"ds_read_b64_tr_b16 v[{32+4*ks+2}:{32+4*ks+3}], v10 offset:{(32*ks+4)*256}")
    A(f"""
    v_lshlrev_b32 v22, 16, v22
    v_lshlrev_b32 v23, 16, v23
    v_mul_f32 v22, s48, v22
    v_mul_f32 v23, s48, v23
    v_cvt_pk_bf16_f32 v24, v22, 0
    v_cvt_pk_bf16_f32 v27, v23, 0
    v_lshlrev_b32 v24, 16, v24
    v_lshlrev_b32 v25, 16, v27
    v_sub_f32 v24, v22, v24
    v_sub_f32 v25, v23, v25
    v_cvt_pk_bf16_f32 v24, v22, v24
    v_cvt_pk_bf16_f32 v25, v25, 0
    v_mov_b32 v26, 0
    buffer_store_dwordx4 v[24:27], v20, s[32:35], s53 offen
    """)
    for ks in range(4):
        A(f"s_waitcnt lgkmcnt({6-2*ks})")
        A(f"buffer_store_dwordx4 v[{32+4*ks}:{32+4*ks+3}], v17, s[32:35], s51 offen offset:{1024*ks}")
    A("s_endpgm")
    A.check_all_edges()
    return A

HEAD = open(f"cdna_kernels/{NAME}.s.ref").read().split("; Override launch")[0]

def kdesc(name, nv):
    return f""".p2align 6
.amdhsa_kernel {name}
  .amdhsa_next_free_vgpr {nv}
  .amdhsa_next_free_sgpr 102
  .amdhsa_accum_offset {nv}
  .amdhsa_group_segment_fixed_size 0
  .amdhsa_kernarg_size 88
  .amdhsa_user_sgpr_count 2
  .amdhsa_user_sgpr_kernarg_segment_ptr 1
  .amdhsa_system_sgpr_workgroup_id_x 1
.end_amdhsa_kernel
"""

def build(kernels):
    s = HEAD
    for (name, A, grid, block, lds, nv) in kernels:
        s += f"; @launch kernel={name} grid=({grid},1,1) block=({block},1,1) lds={lds}\n"
    s += '.amdgcn_target "amdgcn-amd-amdhsa--gfx950"\n.text\n'
    for (name, A, grid, block, lds, nv) in kernels:
        s += f".globl {name}\n.p2align 8\n.type {name},@function\n" + A.text()
    s += '.section .rodata,"a"\n'
    for (name, A, grid, block, lds, nv) in kernels:
        s += kdesc(name, nv)
    return s

if __name__ == "__main__":
    from gen2 import gen_k2, LDS2
    k1 = gen_k1(); k2 = gen_k2()
    out = sys.argv[1] if len(sys.argv) > 1 else f"cdna_kernels/{NAME}.s"
    open(out, "w").write(build([("k1_kernel", k1, NWG1, 512, LDS1, 112), ("k2_kernel", k2, 250, 768, LDS2, 168)]))
    print("written", out, "nops", k1.nops, k2.nops, "instrs", len(k1.ins), len(k2.ins))
```

```python
from g1 import *

CAPT = 48
OH = 0
C1S = CAPT * 512
LIST = C1S + (8 * CAPT + 82) * 64
CNT = LIST + CAPT * 128
CA = CNT + 256
NS = CA + 640
assert NS == 5 * 12288
WX = NS + 1024
P8 = WX + 256
SLOT = 4224
SL0 = P8
MB = P8 + 12 * SLOT
MSTR = 272
HL = P8 + 79 * 1024
LDS2 = HL + 10240
assert LDS2 <= 163840 and MB + 48 * MSTR <= HL and P8 < 65536

T0, T1, E0, E1, AC0, AC1, AF, PB, SF, ID, EXT, XF, ON, IX = 0, 16, 32, 48, 64, 80, 96, 112, 120, 128, 136, 144, 148, 152
LC, VX, VSC, VL, VA, VLO, VHI = 156, 158, 159, 160, 161, 162, 163
LANE, VZ = 164, 108
V16, V1B, TID16 = 165, 166, 167
VM, VKG, VN4, VSB = 144, 145, 146, 147
NSV = 124

class Set:
    def __init__(s, **k): s.__dict__.update(k)
    def mask(s, j): return f"s[{s.m+2*j}:{s.m+2*j+1}]"

def gen_k2():
    A = Asm()
    A.macro = mk_macro([98, 99, 36, 37, 38, 39, 91, 92, 93, 100, 101, 3, 14, 15, 18, 19], 22, DBG2_OFF, 24)
    SA = Set(R=2, EA=6, a=2, a4=16, L=20, p8=24, rk=28, ee=32, ns=40, pp=56, m=60)
    SB = Set(R=10, EA=14, a=10, a4=96, L=100, p8=104, rk=112, ee=116, ns=64, pp=80, m=68)
    A("k2_kernel:")
    A(f"""
    s_load_dwordx2 s[22:23], s[0:1], 80
    s_load_dwordx16 s[4:19], s[0:1], 0
    s_load_dwordx2 s[20:21], s[0:1], 64
    s_cmp_ge_u32 s2, 250
    s_cbranch_scc1 L2_exit
    @stamp 0 real
    @stamp 1
    v_lshrrev_b32 v1, 6, v0
    v_and_b32 v{LANE}, 63, v0
    v_readfirstlane_b32 s24, v1
    v_lshlrev_b32 v{TID16}, 4, v0
    s_mul_i32 s76, s2, 16000
    s_bfe_u32 s26, s24, 0x10001
    s_lshr_b32 s27, s24, 2
    s_cmp_eq_u32 s26, 0
    s_cselect_b32 s77, s76, {OV_OFF}
    s_cselect_b32 s79, 64, 0
    s_cselect_b32 s80, 32, 0
    s_lshl_b32 s78, s26, 7
    s_cmp_eq_u32 s27, 0
    s_cselect_b32 s77, s77, s76
    s_cselect_b32 s78, s78, 256
    s_cselect_b32 s79, s79, 0
    s_cselect_b32 s80, s80, 0
    s_cselect_b32 s81, 0, 2
    s_cselect_b32 s82, 0, 3
    v_subrev_u32 v1, s78, v0
    v_lshrrev_b32 v8, s81, v1
    v_and_b32 v9, s82, v1
    v_lshlrev_b32 v8, 7, v8
    v_lshl_add_u32 v1, v9, 4, v8
    v_lshl_add_u32 v9, v9, 3, v8
    s_waitcnt lgkmcnt(0)
    """)
    srd(A, 32, 22, 23, 16000, add="s77")
    A(f"""
    buffer_load_dwordx4 v[2:5], v1, s[32:35], s79 offen
    buffer_load_dwordx2 v[6:7], v9, s[32:35], s80 offen offset:80
    s_mov_b32 s90, 0
    s_cmp_lg_u32 s27, 0
    s_cbranch_scc1 L2_noaux
    buffer_load_dword v8, v1, s[32:35], 0 offen offset:120
    s_lshl_b32 s79, s26, 4
    s_lshl_b32 s80, s26, 3
    """)
    srd(A, 32, 22, 23, 16000, add=OV_OFF)
    A(f"""
    buffer_load_dwordx4 v[10:13], v1, s[32:35], s79 offen offset:16
    buffer_load_dwordx2 v[14:15], v1, s[32:35], s80 offen offset:88
    s_mov_b32 s90, 1
    L2_noaux:
    s_mov_b32 s29, 0
    s_mov_b32 s30, 0
    s_and_b32 s25, s24, 1
    s_lshl_b32 s28, s26, 1
    s_add_u32 s28, s28, s27
    s_sub_u32 s28, s28, 1
    s_cmp_eq_u32 s27, 0
    s_cselect_b32 s28, 4, s28
    s_mul_i32 s31, s24, {SLOT}
    s_add_u32 s31, s31, {SL0}
    """)
    srd(A, 44, 22, 23, 80000, add=P8_OFF)
    srd(A, 48, 22, 23, WS_SIZE)
    def tab(lo, hi):
        for i in range(lo, hi):
            if i == 4:
                A("s_add_u32 s78, s78, 4096")
                A("s_add_u32 m0, m0, 4096")
            A(f"buffer_load_dwordx4 v9, s[44:47], s78 offen offset:{1024*(i&3)} lds")
    A(f"""
    L2_batch:
    s_cmp_lg_u32 s24, 0
    s_cbranch_scc1 L2_nons
    s_mul_i32 s78, s2, 240
    """)
    srd(A, 32, 6, 7, 240, add="s78")
    A(f"""
    v_mul_u32_u24 v9, 6, v{LANE}
    v_mov_b64 v[{NSV}:{NSV+1}], 0
    v_mov_b32 v{NSV+2}, 0
    buffer_load_short_d16_hi v{NSV}, v9, s[32:35], 0 offen
    buffer_load_short_d16_hi v{NSV+1}, v9, s[32:35], 0 offen offset:2
    buffer_load_short_d16_hi v{NSV+2}, v9, s[32:35], 0 offen offset:4
    L2_nons:
    s_mul_i32 s78, s24, 7168
    s_min_u32 s78, s78, {72*1024}
    v_lshlrev_b32 v9, 4, v{LANE}
    s_add_u32 m0, s78, {P8}
    v_mov_b64 v[{VZ}:{VZ+1}], 0
    v_mov_b64 v[{VZ+2}:{VZ+3}], 0
    """)
    tab(0, 1)
    for i in range(5):
        A(f"ds_write_b128 v{TID16}, v[{VZ}:{VZ+3}] offset:{12288*i}")
    A(f"""
    v_and_b32 v{VM}, 31, v{LANE}
    v_lshrrev_b32 v{VKG}, 5, v{LANE}
    v_lshlrev_b32 v20, 3, v{VKG}
    v_sub_u32 v20, v{VM}, v20
    v_and_b32 v21, 1, v20
    v_lshlrev_b32 v21, 4, v21
    v_mov_b32 v{V1B}, 0x3f80
    v_lshlrev_b32 v21, v21, v{V1B}
    v_ashrrev_i32 v20, 1, v20
    """)
    tab(1, 2)
    for r in range(8):
        A(f"v_cmp_eq_u32 s[{60+2*r}:{61+2*r}], {r if r < 4 else r+4}, v20")
    for r in range(8):
        A(f"v_cndmask_b32 v{ID+r}, 0, v21, s[{60+2*r}:{61+2*r}]")
    tab(2, 3)
    A(f"""
    s_mov_b32 s86, 0x3e803e80
    s_mov_b32 s87, 0x3e803e80
    v_mov_b64 v[{ON}:{ON+1}], s[86:87]
    v_mov_b64 v[{ON+2}:{ON+3}], s[86:87]
    v_mov_b32 v{V16}, 16
    v_and_b32 v20, 7, v{LANE}
    v_bfe_u32 v21, v{LANE}, 4, 1
    v_xor_b32 v22, v20, v21
    v_lshlrev_b32 v{LC}, 4, v22
    v_lshlrev_b32 v{LC+1}, 4, v22
    v_bfe_u32 v22, v{LANE}, 3, 2
    v_lshl_add_u32 v23, v20, 2, v22
    v_mul_u32_u24 v{VX}, {C1S}, v{VKG}
    v_lshl_add_u32 v{VX}, v23, 4, v{VX}
    v_mul_u32_u24 v22, 1056, v22
    v_lshl_add_u32 v22, v20, 7, v22
    v_bfe_u32 v23, v{LANE}, 1, 1
    v_xor_b32 v23, v23, v{VKG}
    v_lshlrev_b32 v23, 4, v23
    v_add3_u32 v{VA}, v22, v23, s31
    """)
    tab(3, 4)
    A(f"""
    v_lshrrev_b32 v{VL}, 3, v{LANE}
    v_lshlrev_b32 v{VL}, 4, v{VL}
    v_and_b32 v22, 3, v{LANE}
    v_lshl_add_u32 v22, v21, 2, v22
    s_lshl_b32 s83, s28, 3
    v_add_lshl_u32 v{VN4}, v22, s83, 2
    v_bfe_u32 v22, v{LANE}, 2, 2
    v_lshl_add_u32 v22, v{VKG}, 2, v22
    v_lshlrev_b32 v{VSB}, 5, v{VN4}
    v_add_u32 v{VSB}, {C1S + 8}, v{VSB}
    v_lshl_add_u32 v{VSC}, v22, 6, v{VSB}
    s_add_u32 s76, s2, 1
    s_lshl_b32 s76, s76, 24
    s_mov_b32 s77, {1 << 24}
    s_mov_b32 s81, 0x01000100
    s_mov_b32 s82, 0x03020302
    s_mov_b32 s79, 0xffff00
    s_waitcnt lgkmcnt(0)
    @stamp 2
    s_barrier
    s_waitcnt vmcnt(4)
    @stamp 3
    """)
    def p1m(S):
        for j in range(4):
            A(f"v_xor_b32 v{S.R+j}, s76, v{S.R+j}")
            A(f"v_cmp_gt_u32 {S.mask(j)}, s77, v{S.R+j}")
    def p1(S):
        for j in range(4):
            A(f"v_and_b32 v{S.L+j}, s79, v{S.R+j}")
            A(f"v_and_b32 v{S.a+j}, 0xfc, v{S.R+j}")
        for j in range(4):
            A(f"s_mov_b64 exec, {S.mask(j)}")
            A(f"ds_add_rtn_u32 v{S.rk+j}, v{S.a+j}, v{V16} offset:{CNT}")
        A("s_mov_b64 exec, -1")
    def p1b(S):
        for j in range(4):
            A(f"v_lshlrev_b32 v{S.a4+j}, 2, v{S.a+j}")
            A(f"v_lshrrev_b32 v{S.p8+j}, 5, v{S.L+j}")
            A(f"v_perm_b32 v{S.ee+2*j+1}, v{S.EA+j//2}, v{S.EA+j//2}, s{81 + (j&1)}")
    def p2r(S):
        for j in range(4):
            A(f"ds_read_b128 v[{S.ns+4*j}:{S.ns+4*j+3}], v{S.a4+j} offset:{NS}")
        for j in range(4):
            A(f"ds_read_b64 v[{S.pp+2*j}:{S.pp+2*j+1}], v{S.p8+j} offset:{P8}")
    def p2l(S, base):
        for j in range(4):
            A(f"s_waitcnt lgkmcnt({base-j})")
            A(f"v_add_u32 v{S.rk+j}, v{S.rk+j}, v{S.ns+4*j+3}")
            A(f"v_and_b32 v{S.a4+j}, -16, v{S.rk+j}")
            A(f"v_lshrrev_b32 v{S.ns+4*j+3}, 2, v{S.a4+j}")
            A(f"s_mov_b64 exec, {S.mask(j)}")
            A(f"ds_write_b32 v{S.ns+4*j+3}, v{S.L+j} offset:{LIST}")
            A("s_mov_b64 exec, -1")
    def p3(S):
        R4 = range(4)
        n_ = lambda j: S.ns + 4 * j
        p_ = lambda j: S.pp + 2 * j
        for j in R4:
            n, p = n_(j), p_(j)
            A(f"v_dot2_f32_bf16 v{n}, v{p}, s81, v{n}")
            A(f"v_dot2_f32_bf16 v{n+1}, v{p}, s82, v{n+1}")
            A(f"v_dot2_f32_bf16 v{n+2}, v{p+1}, s81, v{n+2}")
            A(f"v_lshl_add_u32 v{S.a+j}, v{S.a+j}, 5, v{S.a4+j}")
        for j in R4:
            A(f"v_cvt_pk_bf16_f32 v{p_(j)}, 1.0, v{n_(j)}")
            A(f"v_cvt_pk_bf16_f32 v{p_(j)+1}, v{n_(j)+1}, v{n_(j)+2}")
        for j in R4: A(f"v_dot2_f32_bf16 v{n_(j)}, v{p_(j)}, v{p_(j)}, -1.0")
        for j in R4: A(f"v_dot2_f32_bf16 v{n_(j)}, v{p_(j)+1}, v{p_(j)+1}, v{n_(j)}")
        for j in R4: A(f"v_cvt_pk_bf16_f32 v{S.ee+2*j}, v{n_(j)}, v{n_(j)}")
        for j in R4:
            A(f"s_mov_b64 exec, {S.mask(j)}")
            A(f"ds_write_b16 v{S.rk+j}, v{V1B} offset:{OH}")
            A(f"ds_write_b64 v{S.a+j}, v[{p_(j)}:{p_(j)+1}] offset:{C1S+72}")
            A(f"ds_write_b64 v{S.a4+j}, v[{S.ee+2*j}:{S.ee+2*j+1}] offset:{C1S}")
        A("s_mov_b64 exec, -1")
    p1m(SA); p1(SA)
    A(f"""
    s_cmp_lg_u32 s90, 0
    s_cbranch_scc1 L2_auxp1
    L2_auxp1_done:
    """)
    tab(4, 5)
    p1b(SA)
    A(f"""
    s_waitcnt lgkmcnt(0)
    s_barrier
    @stamp 4
    s_cmp_eq_u32 s24, 0
    s_cbranch_scc1 L2_scan
    """)
    tab(5, 7)
    A(f"""
    L2_scan_done:
    s_mul_i32 s84, s2, 5
    s_add_u32 s84, s84, s28
    s_lshl_b32 s84, s84, 11
    s_sub_u32 s85, {EXTC_OFF - AT_OFF}, s84
    v_mul_u32_u24 v1, s85, v{VKG}
    v_lshl_add_u32 v1, v{VM}, 4, v1
    s_lshl_b32 s85, s25, 10
    s_add_u32 s84, s84, s85
    s_add_u32 s84, s84, {AT_OFF}
    buffer_load_dwordx4 v[{EXT}:{EXT+3}], v1, s[48:51], s84 offen
    buffer_load_dwordx4 v[{EXT+4}:{EXT+7}], v1, s[48:51], s84 offen offset:512
    s_mul_i32 s84, s2, 10240
    """)
    srd(A, 52, 4, 5, 10240, add="s84")
    srd(A, 56, 20, 21, 10240, add="s84")
    A(f"""
    s_cmp_gt_u32 s24, 9
    s_cbranch_scc1 L2_noh1
    s_lshl_b32 s80, s24, 10
    s_lshl_b32 s78, s24, 2
    v_lshrrev_b32 v1, 4, v{LANE}
    v_add_u32 v1, s78, v1
    v_xor_b32 v0, v1, v{LANE}
    v_and_b32 v0, 15, v0
    v_lshlrev_b32 v0, 4, v0
    s_add_u32 m0, s80, {HL}
    v_lshl_add_u32 v1, v1, 8, v0
    buffer_load_dwordx4 v1, s[52:55], 0 offen lds
    s_branch L2_noh2
    L2_noh1:
    s_mov_b32 m0, {WX}
    s_mov_b64 exec, 0xffff
    global_load_lds_dwordx4 v9, s[16:17]
    s_mov_b64 exec, -1
    L2_noh2:
    s_lshl_b32 s85, s25, 7
    s_add_u32 s85, s85, {BT_OFF - 4096}
    """)
    srd(A, 40, 22, 23, 2560000 + 4096 - 128, add="s85")
    A(f"""
    s_mov_b32 s84, 4096
    s_mov_b32 s85, {4096-1056}
    s_mov_b32 s86, {4096-2112}
    s_mov_b32 s87, {4096-3168}
    s_mov_b32 s88, 512
    s_mov_b32 s89, 512
    s_mov_b32 s81, 0x0000bf80
    s_mov_b32 s82, 0xbf800000
    s_mov_b32 m0, s31
    s_add_u32 s78, s83, 8
    v_lshlrev_b32 v1, 2, v{VN4}
    @stamp 5
    s_waitcnt vmcnt(3) lgkmcnt(0)
    s_barrier
    @stamp 6
    ds_read_b32 v0, v9 offset:{NS+12}
    """)
    p2r(SA)
    A(f"""
    ds_read_b32 v1, v1 offset:{NS+12}
    ds_read_b32 v8, v{VN4} offset:{CNT}
    s_waitcnt lgkmcnt(10)
    v_readlane_b32 s80, v0, 41
    v_readlane_b32 s94, v0, s83
    v_readlane_b32 s95, v0, s78
    v_readlane_b32 s78, v0, 16
    s_cmp_lg_u32 s80, 0
    s_cbranch_scc1 L2_goslow
    """)
    p2l(SA, 9)
    A(f"""
    s_cmp_lg_u32 s90, 0
    s_cbranch_scc1 L2_auxp2
    L2_auxp2_done:
    s_sub_u32 s95, s95, s94
    s_cmp_lg_u32 s27, 0
    s_cbranch_scc1 L2_nosplit
    s_add_u32 s80, s95, s94
    s_sub_u32 s80, s80, s78
    s_sub_u32 s80, s80, s78
    s_add_u32 s80, s80, 512
    s_ashr_i32 s80, s80, 1
    s_and_b32 s80, s80, -512
    s_max_i32 s80, s80, 0
    s_min_i32 s80, s80, s95
    s_sub_u32 s78, s95, s80
    s_cmp_eq_u32 s26, 0
    s_cselect_b32 s95, s80, s78
    s_cselect_b32 s80, 0, s80
    s_add_u32 s94, s94, s80
    L2_nosplit:
    s_lshr_b32 s95, s95, 9
    {"s_min_u32 s95, s95, 64" if "clamp" in XF_ else ""}
    s_lshr_b32 s80, s94, 2
    s_add_u32 s80, s80, {LIST}
    v_add_u32 v{VL}, s80, v{VL}
    v_add_u32 v{VX}, s94, v{VX}
    s_add_u32 s80, s94, 64
    v_add_u32 v{VSC}, s80, v{VSC}
    s_waitcnt lgkmcnt(0)
    s_barrier
    @stamp 7
    ds_read_b128 v[{IX}:{IX+3}], v{VL}
    v_and_b32 v1, -16, v1
    v_add3_u32 v8, v1, v8, -16
    v_and_b32 v1, -64, v1
    v_and_b32 v8, -64, v8
    v_add_u32 v{VLO}, v1, v{VSB}
    v_add_u32 v{VHI}, v8, v{VSB}
    v_add_u32 v{VHI}, 128, v{VHI}
    """)
    def ixadd():
        A(f"v_lshl_add_u64 v[{IX}:{IX+1}], v[{IX}:{IX+1}], 0, v[{LC}:{LC+1}]")
        A(f"v_lshl_add_u64 v[{IX+2}:{IX+3}], v[{IX+2}:{IX+3}], 0, v[{LC}:{LC+1}]")
    def dma():
        for i in range(4):
            A(f"buffer_load_dwordx4 v{IX+i}, s[40:43], s{84+i} offen offset:{1056*i} lds")
    A("s_waitcnt lgkmcnt(0)")
    ixadd()
    dma()
    A(f"ds_read_b128 v[{IX}:{IX+3}], v{VL} offset:128")
    p3(SA)
    A(f"""
    s_cmp_lg_u32 s90, 0
    s_cbranch_scc1 L2_auxp3
    L2_auxp3_done:
    s_cmp_gt_u32 s29, 1
    s_cbranch_scc1 L2_noz
    """)
    A(mf32(AC0, VZ, VZ, None))
    A(mf32(AC1, VZ, VZ, None))
    A("L2_noz:")
    A(mf32(PB, VZ, VZ, None))
    A("s_waitcnt lgkmcnt(0)")
    A(mf32(E1, VZ, VZ, None))
    ixadd()
    A(f"""
    s_waitcnt vmcnt(0)
    s_barrier
    @stamp 8
    s_mov_b32 s14, s95
    s_cmp_eq_u32 s95, 0
    s_cbranch_scc1 L2_done
    """)
    def a_reads():
        for i in range(4):
            A(f"ds_read_b128 v[{AF+4*i}:{AF+4*i+3}], v{VA} offset:{32*i}")
    a_reads()
    A(f"ds_read_b128 v[{XF}:{XF+3}], v{VX}")
    if "noprio" not in XF_:
        A("s_setprio 3")
    A(f"""
    s_cmp_eq_u32 s27, 0
    s_cselect_b32 s80, 0, 4
    s_waitcnt lgkmcnt(0)
    s_cmp_lt_u32 s95, 2
    s_cbranch_scc1 L2_nodma1
    """)
    dma()
    A("L2_nodma1:")
    A(mf32(T0, AF, ID, None))
    A(mf32(T0, AF+4, ID+4, T0))
    A(mf32(T0, XF, EXT, T0))
    A(mf32(T1, AF+8, ID, None))
    A("s_nop 10")
    A.ins.append(I(".p2align 6"))
    A("L2_loop:")
    def run(ops, ins):
        for i, v in enumerate(ops):
            for x in ins.get(i, []):
                if callable(x): x()
                else: A(x)
            A(v)
    ex = lambda e, t: [f"v_exp_f32 v{e+i}, v{t+i}" for i in range(16)]
    rc = lambda e: [f"v_rcp_f32 v{e+i}, v{e+i}" for i in range(16)]
    mu = lambda e, t: [f"v_pk_mul_f32 v[{e+2*i}:{e+2*i+1}], v[{e+2*i}:{e+2*i+1}], v[{t+2*i}:{t+2*i+1}]" for i in range(8)]
    run(ex(E0, T0), {0: [mf32(T1, AF+12, ID+4, T1)], 4: [mf32(T1, XF, EXT+4, T1)]})
    run(ex(E1, T1), {0: ["s_waitcnt lgkmcnt(0)", mf32(AC1, E1+8, SF, AC1)], 4: [mf32(E0, ON, ON, E0)], 8: [mf32(AC1, E1+12, SF+4, AC1)],
                     12: [f"ds_read_b128 v[{XF}:{XF+3}], v{VX} offset:512", f"ds_read_b128 v[{IX}:{IX+3}], v{VL} offset:256"]})
    run(rc(E0), {0: [mf32(AC0, PB, SF, AC0)], 2: ["s_waitcnt vmcnt(0)", a_reads], 4: [mf32(E1, ON, ON, E1)], 8: [mf32(AC0, PB+4, SF+4, AC0)],
                 12: ["s_waitcnt lgkmcnt(4)", ixadd]})
    run(mu(E0, T0), {})
    def dma_next():
        A("s_cmp_lt_u32 s95, 3")
        A("s_cbranch_scc1 L2_nodma2")
        dma()
        A("L2_nodma2:")
    run([f"v_cvt_pk_bf16_f32 v{PB+i}, v{E0+2*i}, v{E0+2*i+1}" for i in range(8)],
        {0: ["s_waitcnt lgkmcnt(0)", mf32(T0, AF, ID, None)], 2: [dma_next]})
    run(rc(E1), {0: [mf32(T0, AF+4, ID+4, T0)], 4: [mf32(T0, XF, EXT, T0)],
                 8: [f"v_med3_i32 v{SF+6}, v{VSC}, v{VLO}, v{VHI}"] +
                    [f"ds_read_b64_tr_b16 v[{SF+2*r}:{SF+2*r+1}], v{SF+6} offset:{16*r}" for r in range(4)] +
                    [f"v_lshl_add_u64 v[{VX}:{VX+1}], v[{VX}:{VX+1}], 0, s[88:89]", f"v_add_u32 v{VL}, 128, v{VL}"]})
    run(mu(E1, T1), {})
    def prio():
        if "noprio" in XF_: return
        A(f"""
        s_cmp_gt_u32 s95, s80
        s_cbranch_scc1 L2_prd
        s_setprio 2
        s_cmp_eq_u32 s95, 4
        s_cbranch_scc1 L2_prd
        s_setprio 1
        s_cmp_eq_u32 s95, 3
        s_cbranch_scc1 L2_prd
        s_setprio 0
        L2_prd:
        """)
    run([f"v_cvt_pk_bf16_f32 v{E1+8+i}, v{E1+2*i}, v{E1+2*i+1}" for i in range(7, -1, -1)],
        {0: [mf32(T1, AF+8, ID, None)], 2: [prio], 6: ["s_sub_u32 s95, s95, 1", "s_cmp_lg_u32 s95, 0"]})
    A("s_cbranch_scc1 L2_loop")
    if "noprio" not in XF_:
        A("s_setprio 3")
    A("s_waitcnt lgkmcnt(0)")
    A(mf32(AC0, PB, SF, AC0))
    A(mf32(AC1, E1+8, SF, AC1))
    A(mf32(AC0, PB+4, SF+4, AC0))
    A(mf32(AC1, E1+12, SF+4, AC1))
    A("L2_done:")
    A("@stamp 9")
    A(f"""
    s_cmp_lg_u32 s29, 0
    s_cbranch_scc1 L2_slownext
    L2_flush:
    v_lshrrev_b32 v{VKG}, 5, v{LANE}
    s_lshl_b32 s72, s25, 7
    s_add_u32 s73, s72, {WX}
    v_lshl_add_u32 v{VM}, v{VKG}, 3, s73
    """)
    for i in range(4):
        A(f"ds_read2_b64 v[{AF+4*i}:{AF+4*i+3}], v{VM} offset0:{4*i} offset1:{4*i+2}")
    A(f"""
    s_lshl_b32 s76, s28, 3
    s_cmp_eq_u32 s27, 0
    s_cselect_b32 s77, s26, 0
    s_lshl_b32 s77, s77, 3
    s_add_u32 s77, s77, s76
    s_mul_i32 s77, s77, {MSTR}
    s_add_u32 s77, s77, {MB}
    s_add_u32 s77, s77, s72
    v_bfe_u32 v{ID}, v{LANE}, 2, 3
    v_mul_u32_u24 v{ID}, {MSTR}, v{ID}
    v_lshl_add_u32 v{ID}, v{VKG}, 3, v{ID}
    v_add_u32 v{ID}, s77, v{ID}
    s_lshl_b32 s76, s28, 7
    v_and_b32 v{ID+1}, 31, v{LANE}
    v_lshl_add_u32 v{ID+1}, v{ID+1}, 2, s76
    """)
    for i in range(16):
        A(f"v_cvt_pk_bf16_f32 v{AC0+i}, v{AC0+2*i}, v{AC0+2*i+1}")
    A("s_mov_b32 exec_lo, 0x11111111")
    A("s_mov_b32 exec_hi, 0x11111111")
    for i in range(8):
        A(f"ds_write_b64 v{ID}, v[{AC0+2*i}:{AC0+2*i+1}] offset:{16*i}")
    A("s_mov_b64 exec, -1")
    A("s_waitcnt lgkmcnt(8)")
    for i in range(16):
        A(f"v_dot2_f32_bf16 v{ID+2}, v{AC0+i}, v{AF+i}, {f'v{ID+2}' if i else '0'}")
    A(f"ds_add_f32 v{ID+1}, v{ID+2} offset:{CA}")
    A(f"""
    s_cmp_lg_u32 s27, 0
    s_cbranch_scc1 L2_other
    """)
    W, H, D = 0, 64, 112
    A(f"""
    s_setprio 0
    v_lshlrev_b32 v140, 4, v{LANE}
    s_lshl_b32 s72, s24, 14
    s_add_u32 s72, s72, {WHP_OFF}
    v_and_b32 v141, 15, v{LANE}
    v_lshrrev_b32 v142, 4, v{LANE}
    v_lshlrev_b32 v143, 4, v142
    v_lshl_add_u32 v144, v141, 8, v143
    """)
    for k in range(4):
        A(f"s_add_u32 s{78+k}, s24, {k}")
        A(f"s_and_b32 s{78+k}, s{78+k}, 3")
        A(f"s_lshl_b32 s{82+k}, s{78+k}, 6")
        A(f"s_lshl_b32 s{78+k}, s{78+k}, 10")
        A(f"s_add_u32 s{78+k}, s{78+k}, s72")
        A(f"s_add_u32 s{86+k}, s{78+k}, 8192")
    for k in range(4):
        A(f"buffer_load_dwordx4 v[{W+4*k}:{W+4*k+3}], v140, s[48:51], s{78+k} offen")
        A(f"buffer_load_dwordx4 v[{W+32+4*k}:{W+32+4*k+3}], v140, s[48:51], s{86+k} offen")
    A("s_add_u32 s73, s72, 4096")
    A("s_add_u32 s74, s72, 12288")
    for k in range(4):
        A(f"buffer_load_dwordx4 v[{W+16+4*k}:{W+16+4*k+3}], v140, s[48:51], s73 offen offset:{1024*k}")
        A(f"buffer_load_dwordx4 v[{W+48+4*k}:{W+48+4*k+3}], v140, s[48:51], s74 offen offset:{1024*k}")
    A(f"""
    v_add_u32 v146, 4096, v144
    v_add_u32 v147, 8192, v144
    v_mov_b32 v145, {MB}
    v_mul_u32_u24 v148, {MSTR}, v141
    v_add3_u32 v145, v145, v148, v143
    v_lshlrev_b32 v148, 4, v141
    v_xor_b32 v148, v148, v144
    v_add_u32 v148, {HL}, v148
    s_waitcnt lgkmcnt(0)
    """)
    for i in range(8):
        A(f"v_mov_b64 v[{H+32+2*i}:{H+33+2*i}], 0")
    assert HL % 256 == 0
    for k in range(4):
        A(f"v_xor_b32 v{149+k}, s{82+k}, v148")
        A(f"ds_read_b128 v[{H+4*k}:{H+4*k+3}], v{149+k}")
        A(f"ds_read_b128 v[{H+16+4*k}:{H+16+4*k+3}], v{149+k} offset:4096")
    A("s_mov_b32 exec_lo, 0x00ff00ff")
    A("s_mov_b32 exec_hi, 0x00ff00ff")
    for k in range(4):
        A(f"ds_read_b128 v[{H+32+4*k}:{H+32+4*k+3}], v{149+k} offset:8192")
    A("s_mov_b64 exec, -1")
    A("s_waitcnt lgkmcnt(0)")
    for k in range(4):
        A(f"s_waitcnt vmcnt({8 + 2*(3-k)})")
        for nt in range(3):
            for ab in range(2):
                d = D + 8 * nt + 4 * ab
                A(mf16(d, W+32*ab+4*k, H+16*nt+4*k, d if k else None))
    MF = [0, 32, 148]
    A(f"""
    s_mov_b32 s78, {NLOG2E}
    s_mov_b32 s79, {NLOG2E}
    s_mov_b32 s80, {NLN2}
    s_mov_b32 s81, {NLN2}
    """)
    for i in range(12):
        A(f"v_pk_mul_f32 v[{D+2*i}:{D+2*i+1}], v[{D+2*i}:{D+2*i+1}], s[78:79]")
    for nt in range(3):
        h = H + 16 * nt
        for i in range(4):
            A(f"v_lshlrev_b32 v{h+4+2*i}, 16, v{h+i}")
            A(f"v_and_b32 v{h+5+2*i}, 0xffff0000, v{h+i}")
    A(f"""
    s_waitcnt vmcnt(0) lgkmcnt(0)
    @stamp 10
    s_barrier
    @stamp 11
    """)
    for nt in range(3):
        for k in range(4):
            A(f"ds_read_b128 v[{MF[nt]+4*k}:{MF[nt]+4*k+3}], v145 offset:{nt*16*MSTR + 64*k}")
    def mm(nt):
        o = []
        for k in range(4):
            o.append(f"s_waitcnt lgkmcnt({11 - 4*nt - k})")
            for ab in range(2):
                d = D + 8 * nt + 4 * ab
                o.append(mf16(d, W+16+32*ab+4*k, MF[nt]+4*k, d))
        return o
    def fin(nt):
        d = D + 8 * nt; tmp = MF[nt]; h = H + 16 * nt
        o = []
        if nt == 2:
            o += [f"v_add_f32_dpp v{d+i}, v{d+i}, v{d+i} row_ror:8 row_mask:0xf bank_mask:0xf" for i in range(8)]
        o += [f"v_exp_f32 v{tmp+i}, v{d+i}" for i in range(8)]
        o += [f"v_pk_add_f32 v[{tmp+2*i}:{tmp+2*i+1}], v[{tmp+2*i}:{tmp+2*i+1}], 1.0 op_sel_hi:[1,0]" for i in range(4)]
        o += [f"v_rcp_f32 v{tmp+i}, v{tmp+i}" for i in range(8)]
        o += [f"v_pk_mul_f32 v[{tmp+2*i}:{tmp+2*i+1}], v[{tmp+2*i}:{tmp+2*i+1}], v[{d+2*i}:{d+2*i+1}]" for i in range(4)]
        o += [f"v_pk_fma_f32 v[{tmp+2*i}:{tmp+2*i+1}], v[{tmp+2*i}:{tmp+2*i+1}], s[80:81], v[{h+4+2*i}:{h+5+2*i}]" for i in range(4)]
        o += [f"v_cvt_pk_bf16_f32 v{h+i}, v{tmp+2*i}, v{tmp+2*i+1}" for i in range(4)]
        o += [f"buffer_store_dwordx4 v[{h}:{h+3}], v{(144,146,147)[nt]}, s[56:59], s82 offen"]
        return o
    for x in mm(0): A(x)
    for x in mm(1): A(x)
    f0 = fin(0); m2 = mm(2)
    for i, x in enumerate(f0):
        A(x)
        if i < 8 and i % 2 == 1:
            for y in m2[3*(i//2):3*(i//2)+3]: A(y)
    for x in fin(1): A(x)
    for x in fin(2): A(x)
    A(f"""
    @wait
    @stamp 13
    @stamp 14 real
    @dump
    s_endpgm
    L2_other:
    s_mul_i32 s72, s2, 240
    s_add_u32 s73, s72, 2560000
    """)
    srd(A, 56, 20, 21, 240, add="s73")
    A(f"""
    s_sub_u32 s74, s24, 4
    s_lshl_b32 s74, s74, 6
    v_add_u32 v1, s74, v{LANE}
    v_lshlrev_b32 v2, 1, v1
    v_mul_u32_u24 v4, 21846, v1
    v_lshrrev_b32 v4, 16, v4
    v_add_lshl_u32 v4, v4, v1, 2
    s_mov_b32 s74, {NLN2}
    s_waitcnt lgkmcnt(0)
    @stamp 10
    s_barrier
    @stamp 11
    @stamp 13
    @stamp 14 real
    @dump 8
    s_mov_b64 exec, -1
    s_cmp_gt_u32 s24, 5
    s_cbranch_scc1 L2_exit
    ds_read_b32 v5, v4 offset:{CA+4}
    ds_read_b32 v3, v4 offset:{NS}
    s_waitcnt lgkmcnt(0)
    v_fma_f32 v3, v5, s74, v3
    v_cvt_pk_bf16_f32 v3, v3, v3
    buffer_store_short v3, v2, s[56:59], 0 offen
    L2_exit:
    s_endpgm
    """)
    A(f"""
    L2_scan:
    v_lshlrev_b32 v1, 2, v{LANE}
    ds_read_b32 v40, v1 offset:{CNT}
    """)
    tab(5, 7)
    A(f"""
    v_and_b32 v42, 7, v{LANE}
    v_lshlrev_b32 v42, 1, v42
    s_waitcnt lgkmcnt(0)
    v_add_u32_dpp v41, v40, v40 row_shr:1 row_mask:0xf bank_mask:0xf bound_ctrl:0
    v_readlane_b32 s85, v40, 63
    v_sub_u32 v42, v42, v40
    v_add_u32_dpp v41, v41, v41 row_shr:2 row_mask:0xf bank_mask:0xf bound_ctrl:0
    v_add_u32_dpp v41, v41, v41 row_shr:4 row_mask:0xf bank_mask:0xf bound_ctrl:0
    v_add_u32_dpp v41, v41, v41 row_shr:8 row_mask:0xf bank_mask:0xf bound_ctrl:0
    v_add_u32_dpp v41, v41, v41 row_bcast:15 row_mask:0xa bank_mask:0xf
    v_add_u32_dpp v41, v41, v41 row_bcast:31 row_mask:0xc bank_mask:0xf
    v_readlane_b32 s86, v41, 7
    v_readlane_b32 s87, v41, 15
    v_readlane_b32 s88, v41, 23
    v_readlane_b32 s89, v41, 31
    v_readlane_b32 s84, v41, 39
    v_add_u32 v{NSV+3}, v41, v42
    s_mov_b32 s80, 0
    """)
    for g, r in enumerate((86, 87, 88, 89, 84)):
        A(f"s_add_u32 s{r}, s{r}, s80")
        A(f"s_sub_u32 s78, 0, s{r}")
        A(f"s_and_b32 s78, s78, 511")
        A(f"s_lshl_b64 exec, -1, {8*(g+1)}")
        A(f"s_add_u32 s80, s80, s78")
        A(f"v_add_u32 v{NSV+3}, s78, v{NSV+3}")
    A(f"""
    s_mov_b64 exec, -1
    s_cmp_gt_u32 s84, {CAPT*512}
    s_cselect_b32 s85, 1, s85
    v_writelane_b32 v{NSV+3}, s85, 41
    ds_write_b128 v9, v[{NSV}:{NSV+3}] offset:{NS}
    s_branch L2_scan_done
    """)
    A(f"""
    L2_auxp1:
    v_cmp_ne_u32 vcc, 0, v8
    s_cbranch_vccz L2_nolost
    ds_write_b32 v{VZ}, v{V16} offset:{CNT+252}
    L2_nolost:
    """)
    p1m(SB)
    A(f"""
    s_or_b64 s[84:85], s[68:69], s[70:71]
    s_or_b64 s[86:87], s[72:73], s[74:75]
    s_or_b64 s[84:85], s[84:85], s[86:87]
    s_cselect_b32 s90, 1, 0
    s_cbranch_scc0 L2_auxp1_done
    """)
    p1(SB); p1b(SB)
    A("s_branch L2_auxp1_done")
    A("L2_auxp2:")
    p2r(SB); p2l(SB, 7)
    A("s_branch L2_auxp2_done")
    A("L2_auxp3:")
    p3(SB)
    A("s_waitcnt lgkmcnt(0)")
    A("s_branch L2_auxp3_done")
    A(f"""
    L2_slownext:
    s_mov_b32 s29, 1
    s_add_u32 s30, s30, 768
    s_cmp_ge_u32 s30, 320000
    s_cbranch_scc1 L2_flush
    L2_goslow:
    s_add_u32 s29, s29, 1
    s_mov_b32 s90, 0
    s_waitcnt vmcnt(0) lgkmcnt(0)
    s_barrier
    v_lshrrev_b32 v1, 4, v{TID16}
    v_add_u32 v1, s30, v1
    v_min_u32 v3, 319999, v1
    v_lshlrev_b32 v4, 2, v3
    v_lshlrev_b32 v3, 1, v3
    global_load_dword v5, v4, s[12:13]
    global_load_dword v8, v4, s[10:11]
    global_load_ushort v6, v3, s[8:9]
    s_mul_i32 s72, s2, 40
    s_mov_b32 s73, 320000
    s_add_u32 s76, s2, 1
    s_lshl_b32 s76, s76, 24
    v_cmp_gt_u32 s[60:61], s73, v1
    s_waitcnt vmcnt(0)
    v_subrev_u32 v5, s72, v5
    v_cmp_gt_u32 s[62:63], 40, v5
    v_lshl_add_u32 v5, v8, 6, v5
    v_lshl_add_u32 v5, v5, 2, s76
    s_and_b64 s[60:61], s[60:61], s[62:63]
    v_cndmask_b32 v2, 0, v5, s[60:61]
    v_mov_b32 v3, 0
    v_mov_b32 v4, 0
    v_mov_b32 v5, 0
    v_mov_b32 v7, 0
    s_branch L2_batch
    """)
    A.check_all_edges()
    return A
```

```python
import sys, os
from asmlib import Asm, I

NAME = "gather_scatter__cheap_equivariant_egnn__graph"
REC_OFF = 0
OV_OFF = 250 * 16000
P8_OFF = 5 << 20
AT_OFF = 8 << 20
EXTC_OFF = AT_OFF + 1280 * 2048
BT_OFF = 12 << 20
WHP_OFF = 16 << 20
WS_SIZE = 32 << 20
NBINWG = 125
NGEMM = 314
NWG1 = NBINWG + NGEMM + 2
LDS1 = 49152
NLOG2E = 0xBFB8AA3B
NLN2 = 0xBF317218
CSTR = 144
KCNT = 252 * CSTR
OVCAP = 12

def mf32(d, a, b, c):
    cs = "0" if c is None else f"v[{c}:{c+15}]"
    return f"v_mfma_f32_32x32x16_bf16 v[{d}:{d+15}], v[{a}:{a+3}], v[{b}:{b+3}], {cs}"
def mf16(d, a, b, c):
    cs = "0" if c is None else f"v[{c}:{c+3}]"
    return f"v_mfma_f32_16x16x32_bf16 v[{d}:{d+3}], v[{a}:{a+3}], v[{b}:{b+3}], {cs}"

def srd(A, r, lo, hi, size, add=None):
    if add is None:
        A(f"s_mov_b32 s{r}, s{lo}")
        A(f"s_mov_b32 s{r+1}, s{hi}")
    else:
        A(f"s_add_u32 s{r}, s{lo}, {add}")
        A(f"s_addc_u32 s{r+1}, s{hi}, 0")
    A(f"s_mov_b32 s{r+2}, {size}")
    A(f"s_mov_b32 s{r+3}, 0x00020000")

STAMP = bool(os.environ.get("STAMP"))
XF_ = set(os.environ.get("X", "").split(","))
DBG1_OFF = 20 << 20
DBG2_OFF = 24 << 20
def stamp(A, reg, real=False):
    if not STAMP: return
    A(f"s_mem{'real' if real else ''}time s[96:97]")
    A("s_waitcnt lgkmcnt(0)")
    A(f"s_mov_b32 s{reg}, s96")
def dump(A, regs, wslo, off, wreg, vt=0):
    if not STAMP: return
    A(f"s_mov_b64 exec, -1")
    A(f"v_mov_b32 v{vt}, 0")
    for i, r in enumerate(regs):
        A(f"v_writelane_b32 v{vt}, s{r}, {i}")
    A(f"v_mbcnt_lo_u32_b32 v{vt+1}, -1, 0")
    A(f"s_lshl_b32 s96, s2, 4")
    A(f"s_add_u32 s96, s96, s{wreg}")
    A(f"s_lshl_b32 s96, s96, 6")
    A(f"s_add_u32 s96, s96, {off}")
    A(f"v_lshl_add_u32 v{vt+1}, v{vt+1}, 2, s96")
    A(f"s_mov_b64 exec, 0xffff")
    A(f"global_store_dword v{vt+1}, v{vt}, s[{wslo}:{wslo+1}]")

def mk_macro(regs, wslo, off, wreg):
    def macro(A, t):
        if t[0] == "stamp": stamp(A, regs[int(t[1])], len(t) > 2)
        elif t[0] == "wait":
            if STAMP: A("s_waitcnt vmcnt(0)")
        elif t[0] == "dump": dump(A, regs, wslo, off, wreg, int(t[1]) if len(t) > 1 else 0)
    return macro

def gen_k1():
    A = Asm()
    A.macro = mk_macro(list(range(60, 72)), 20, DBG1_OFF, 23)
    A("k1_kernel:")
    A(f"""
    s_load_dwordx16 s[4:19], s[0:1], 0
    s_load_dwordx2 s[20:21], s[0:1], 80
    s_cmp_ge_u32 s2, {NWG1}
    s_cbranch_scc1 L1_exit
    @stamp 0 real
    @stamp 1
    s_cmp_ge_u32 s2, {NBINWG}
    s_cbranch_scc1 L1_gemm
    v_lshlrev_b32 v1, 4, v0
    v_lshlrev_b32 v2, 2, v0
    s_mul_i32 s3, s2, 10240
    v_add_u32 v3, s3, v1
    s_add_u32 s22, s3, 8192
    v_add_u32 v4, s22, v2
    v_lshrrev_b32 v5, 1, v3
    v_lshrrev_b32 v6, 1, v4
    v_mov_b64 v[24:25], 0
    v_mov_b64 v[26:27], 0
    s_waitcnt lgkmcnt(0)
    global_load_dwordx4 v[8:11], v3, s[12:13]
    global_load_dword v12, v4, s[12:13]
    global_load_dwordx4 v[14:17], v3, s[10:11]
    global_load_dword v18, v4, s[10:11]
    global_load_dwordx2 v[20:21], v5, s[8:9]
    global_load_ushort v22, v6, s[8:9]
    ds_write_b128 v1, v[24:27]
    ds_write_b128 v1, v[24:27] offset:8192
    ds_write_b128 v1, v[24:27] offset:16384
    ds_write_b128 v1, v[24:27] offset:24576
    ds_write_b128 v1, v[24:27] offset:32768
    v_mov_b32 v23, 1
    """)
    srd(A, 24, 20, 21, 251 * 16000)
    A(f"""
    v_lshrrev_b32 v28, 3, v0
    v_and_b32 v29, 7, v0
    v_lshlrev_b32 v29, 4, v29
    v_mul_u32_u24 v30, {CSTR}, v28
    v_mul_u32_u24 v28, 16000, v28
    v_add_u32 v28, v28, v29
    v_add_u32 v30, v30, v29
    v_add_u32 v29, 3072000, v28
    s_lshl_b32 s32, s2, 7
    s_add_u32 s33, s32, 1024000
    s_add_u32 s34, s32, 2048000
    s_mov_b32 s38, 52429
    s_mov_b32 s39, {(1 << 22) - 40}
    s_mov_b32 s40, {1 << 24}
    s_waitcnt lgkmcnt(0)
    s_barrier
    @stamp 2
    s_waitcnt vmcnt(4)
    @stamp 3
    """)
    for j in range(5):
        A(f"v_mul_u32_u24 v{32+j}, s38, v{8+j}")
        A(f"v_lshrrev_b32 v{32+j}, 21, v{32+j}")
        A(f"v_lshlrev_b32 v{38+j}, 2, v{32+j}")
        A(f"ds_add_rtn_u32 v{44+j}, v{38+j}, v23 offset:{KCNT}")
    for j in range(5):
        A(f"v_mad_u32_u24 v{8+j}, v{32+j}, s39, v{8+j}")
        A(f"v_mul_u32_u24 v{32+j}, {CSTR}, v{32+j}")
    A("s_waitcnt vmcnt(2)")
    for j in range(5):
        A(f"v_lshl_add_u32 v{8+j}, v{14+j}, 6, v{8+j}")
        A(f"v_lshl_add_u32 v{8+j}, v{8+j}, 2, s40")
    A(f"""
    s_waitcnt lgkmcnt(0)
    v_max3_u32 v50, v44, v45, v46
    v_max3_u32 v50, v50, v47, v48
    v_cmp_lt_u32 vcc, 19, v50
    s_cbranch_vccnz L1_ovf
    L1_ovf_done:
    s_waitcnt vmcnt(0)
    """)
    for j in range(5):
        A(f"v_lshl_add_u32 v{38+j}, v{44+j}, 2, v{32+j}")
        A(f"v_lshl_add_u32 v{44+j}, v{44+j}, 1, v{32+j}")
        A(f"ds_write_b32 v{38+j}, v{8+j}")
        op = "ds_write_b16_d16_hi" if j in (1, 3) else "ds_write_b16"
        A(f"{op} v{44+j}, v{20 + j//2} offset:80")
    A(f"""
    s_waitcnt lgkmcnt(0)
    @stamp 4
    s_barrier
    @stamp 5
    ds_read_b128 v[32:35], v30
    ds_read_b128 v[36:39], v30 offset:{64*CSTR}
    ds_read_b128 v[40:43], v30 offset:{128*CSTR}
    ds_read_b128 v[44:47], v30 offset:{192*CSTR}
    s_waitcnt lgkmcnt(3)
    buffer_store_dwordx4 v[32:35], v28, s[24:27], s32 offen
    s_waitcnt lgkmcnt(2)
    buffer_store_dwordx4 v[36:39], v28, s[24:27], s33 offen
    s_waitcnt lgkmcnt(1)
    buffer_store_dwordx4 v[40:43], v28, s[24:27], s34 offen
    s_waitcnt lgkmcnt(0)
    buffer_store_dwordx4 v[44:47], v29, s[24:27], s32 offen
    @stamp 6
    v_lshrrev_b32 v1, 6, v0
    v_readfirstlane_b32 s23, v1
    @wait
    @stamp 7
    @stamp 8 real
    @dump
    L1_exit:
    s_endpgm
    L1_ovf:
    v_mov_b32 v51, {250*4}
    """)
    for j in range(5):
        A(f"""
        v_cmp_lt_u32 vcc, 19, v{44+j}
        s_cbranch_vccz L1_ovf{j}
        s_mov_b64 exec, vcc
        ds_add_rtn_u32 v{44+j}, v51, v23 offset:{KCNT}
        s_waitcnt lgkmcnt(0)
        v_cmp_le_u32 vcc, {OVCAP}, v{44+j}
        v_min_u32 v{44+j}, 19, v{44+j}
        v_mov_b32 v50, v{32+j}
        v_mov_b32 v{32+j}, {250*CSTR}
        s_cbranch_vccz L1_ovg{j}
        s_mov_b64 exec, vcc
        ds_write_b32 v50, v23 offset:120
        L1_ovg{j}:
        s_mov_b64 exec, -1
        L1_ovf{j}:
        """)
    A("s_branch L1_ovf_done")
    A(f"""
    L1_gemm:
    s_sub_u32 s3, s2, {NBINWG}
    v_lshrrev_b32 v1, 6, v0
    v_and_b32 v2, 63, v0
    s_and_b32 s22, s3, 1
    v_readfirstlane_b32 s23, v1
    s_lshr_b32 s3, s3, 1
    s_lshl_b32 s40, s22, 15
    v_lshrrev_b32 v3, 4, v2
    v_and_b32 v4, 15, v2
    v_lshlrev_b32 v5, 2, v3
    v_xor_b32 v5, v5, v4
    v_lshlrev_b32 v5, 4, v5
    v_lshl_add_u32 v5, v3, 8, v5
    s_lshl_b32 s41, s23, 12
    v_add_u32 v5, s41, v5
    s_lshl_b32 s42, s23, 3
    v_add_u32 v6, s42, v3
    v_and_b32 v7, 15, v6
    v_xor_b32 v7, v7, v4
    v_lshlrev_b32 v7, 4, v7
    v_lshl_add_u32 v6, v6, 8, v7
    v_xor_b32 v7, 64, v6
    s_and_b32 s43, s23, 3
    s_lshr_b32 s44, s23, 2
    v_bfe_u32 v8, v2, 2, 2
    v_and_b32 v9, 3, v2
    v_xor_b32 v10, s43, v8
    v_lshlrev_b32 v10, 6, v10
    v_lshl_add_u32 v10, v8, 8, v10
    s_cmp_eq_u32 s3, {NGEMM//2}
    s_waitcnt lgkmcnt(0)
    s_cselect_b32 s24, s18, s14
    s_cselect_b32 s25, s19, s15
    s_add_u32 s24, s24, s40
    s_addc_u32 s25, s25, 0
    s_mov_b32 m0, s41
    s_mov_b32 s26, 32768
    s_mov_b32 s27, 0x00020000
    buffer_load_dwordx4 v5, s[24:27], 0 offen lds
    buffer_load_dwordx4 v5, s[24:27], 0 offen offset:1024 lds
    buffer_load_dwordx4 v5, s[24:27], 0 offen offset:2048 lds
    buffer_load_dwordx4 v5, s[24:27], 0 offen offset:3072 lds
    """)
    srd(A, 32, 20, 21, WS_SIZE)
    A(f"""
    s_cmp_eq_u32 s3, {NGEMM//2}
    s_cbranch_scc1 L1_pack
    """)
    srd(A, 28, 4, 5, 2560000)
    A(f"""
    s_lshl_b32 s45, s23, 11
    s_add_u32 s45, s45, 32768
    s_lshl_b32 s46, s3, 14
    s_mov_b32 m0, s45
    v_lshrrev_b32 v11, 5, v2
    v_add_u32 v6, s46, v6
    v_add_u32 v7, s46, v7
    buffer_load_dwordx4 v6, s[28:31], 0 offen lds
    buffer_load_dwordx4 v7, s[28:31], 0 offen offset:1024 lds
    v_lshl_add_u32 v10, v11, 11, v10
    v_bfe_u32 v12, v2, 4, 1
    v_and_b32 v13, 31, v2
    s_lshl_b32 s47, s44, 5
    v_add_u32 v14, s47, v13
    v_xor_b32 v15, v11, v14
    v_and_b32 v15, 15, v15
    v_lshlrev_b32 v15, 4, v15
    v_lshl_add_u32 v15, v14, 8, v15
    s_mov_b32 s48, {NLOG2E}
    s_mov_b32 s49, {NLOG2E}
    s_cmp_eq_u32 s22, 1
    s_cbranch_scc1 L1_matB
    v_lshl_add_u32 v10, v12, 5, v10
    v_lshl_add_u32 v10, v9, 3, v10
    """)
    def frag_reads():
        A("@stamp 2")
        A("s_waitcnt vmcnt(0)")
        A("@stamp 3")
        A("s_barrier")
        A("@stamp 5")
        for s in range(8):
            if s:
                A(f"v_xor_b32 v16, {s*32}, v15")
            A(f"ds_read_b128 v[{64+4*s}:{64+4*s+3}], v{16 if s else 15} offset:32768")
            A(f"ds_read_b64_tr_b16 v[{32+4*s}:{32+4*s+1}], v10 offset:{16*s*256}")
            A(f"ds_read_b64_tr_b16 v[{32+4*s+2}:{32+4*s+3}], v10 offset:{(16*s+4)*256}")
    def scale_cvt():
        for i in range(8):
            A(f"v_pk_mul_f32 v[{96+2*i}:{96+2*i+1}], v[{96+2*i}:{96+2*i+1}], s[48:49]")
        for i in range(8):
            A(f"v_cvt_pk_bf16_f32 v{96+i}, v{96+2*i}, v{96+2*i+1}")
    A(f"""
    s_lshl_b32 s50, s43, 9
    v_lshl_add_u32 v17, v13, 4, s50
    v_lshl_add_u32 v17, v11, 3, v17
    s_lshl_b32 s51, s44, 13
    s_add_u32 s51, s51, s46
    s_add_u32 s51, s51, {AT_OFF}
    s_add_u32 s52, s51, 4096
    """)
    frag_reads()
    for s in range(8):
        A(f"s_waitcnt lgkmcnt({min(15, 3*(7-s))})")
        A(mf32(96, 64+4*s, 32+4*s, 96 if s else None))
    scale_cvt()
    A(f"""
    buffer_store_dwordx2 v[96:97], v17, s[32:35], s51 offen
    buffer_store_dwordx2 v[98:99], v17, s[32:35], s51 offen offset:2048
    buffer_store_dwordx2 v[100:101], v17, s[32:35], s52 offen
    buffer_store_dwordx2 v[102:103], v17, s[32:35], s52 offen offset:2048
    @stamp 6
    @wait
    @stamp 7
    @stamp 8 real
    @dump
    s_endpgm
    L1_matB:
    s_lshl_b32 s53, s3, 6
    v_add_u32 v20, s53, v2
    v_mul_u32_u24 v21, 6, v20
    v_lshlrev_b32 v20, 3, v20
    s_mov_b32 s53, {P8_OFF}
    s_cmp_lg_u32 s23, 7
    s_cbranch_scc1 L1_nop8
    """)
    srd(A, 36, 6, 7, 60000)
    A(f"""
    buffer_load_ushort v22, v21, s[36:39], 0 offen
    buffer_load_ushort v24, v21, s[36:39], 0 offen offset:2
    buffer_load_ushort v23, v21, s[36:39], 0 offen offset:4
    L1_nop8:
    v_and_b32 v18, 1, v9
    v_lshrrev_b32 v19, 1, v9
    v_lshl_add_u32 v10, v18, 5, v10
    v_lshl_add_u32 v10, v12, 4, v10
    v_lshl_add_u32 v10, v19, 3, v10
    s_lshl_b32 s50, s43, 6
    v_lshl_add_u32 v17, v14, 8, s50
    v_lshl_add_u32 v17, v11, 5, v17
    s_add_u32 s51, s46, {BT_OFF}
    """)
    frag_reads()
    A(f"""
    s_cmp_lg_u32 s23, 7
    s_cbranch_scc1 L1_nop8b
    v_lshl_or_b32 v22, v24, 16, v22
    buffer_store_dwordx2 v[22:23], v20, s[32:35], s53 offen
    L1_nop8b:
    """)
    for s in range(8):
        A(f"s_waitcnt lgkmcnt({min(15, 3*(7-s))})")
        A(mf32(96, 32+4*s, 64+4*s, 96 if s else None))
    scale_cvt()
    A(f"""
    buffer_store_dwordx4 v[96:99], v17, s[32:35], s51 offen
    buffer_store_dwordx4 v[100:103], v17, s[32:35], s51 offen offset:16
    @stamp 6
    @wait
    @stamp 7
    @stamp 8 real
    @dump
    s_endpgm
    L1_pack:
    v_and_b32 v20, 127, v0
    v_lshlrev_b32 v21, 1, v20
    v_add_u32 v21, 65536, v21
    global_load_ushort v22, v21, s[14:15]
    global_load_ushort v23, v21, s[14:15] offset:256
    v_lshl_add_u32 v10, v3, 11, v10
    v_lshl_add_u32 v10, v9, 4, v10
    s_lshl_b32 s50, s44, 3
    v_add_u32 v10, s50, v10
    s_lshl_b32 s51, s43, 14
    s_lshl_b32 s52, s44, 13
    s_add_u32 s51, s51, s52
    s_lshl_b32 s52, s22, 12
    s_add_u32 s51, s51, s52
    s_add_u32 s51, s51, {WHP_OFF}
    v_lshlrev_b32 v17, 4, v2
    v_lshlrev_b32 v20, 4, v20
    s_mov_b32 s48, {NLOG2E}
    s_mov_b32 s53, {EXTC_OFF}
    s_waitcnt vmcnt(0)
    s_barrier
    """)
    for ks in range(4):
        A(f"ds_read_b64_tr_b16 v[{32+4*ks}:{32+4*ks+1}], v10 offset:{32*ks*256}")
        A(f"ds_read_b64_tr_b16 v[{32+4*ks+2}:{32+4*ks+3}], v10 offset:{(32*ks+4)*256}")
    A(f"""
    v_lshlrev_b32 v22, 16, v22
    v_lshlrev_b32 v23, 16, v23
    v_mul_f32 v22, s48, v22
    v_mul_f32 v23, s48, v23
    v_cvt_pk_bf16_f32 v24, v22, 0
    v_cvt_pk_bf16_f32 v25, v23, 0
    v_lshlrev_b32 v24, 16, v24
    v_lshlrev_b32 v25, 16, v25
    v_sub_f32 v24, v22, v24
    v_sub_f32 v25, v23, v25
    v_cvt_pk_bf16_f32 v24, v22, v24
    v_cvt_pk_bf16_f32 v25, v23, v25
    v_mov_b64 v[26:27], 0
    buffer_store_dwordx4 v[24:27], v20, s[32:35], s53 offen
    """)
    for ks in range(4):
        A(f"s_waitcnt lgkmcnt({6-2*ks})")
        A(f"buffer_store_dwordx4 v[{32+4*ks}:{32+4*ks+3}], v17, s[32:35], s51 offen offset:{1024*ks}")
    A("s_endpgm")
    A.check_all_edges()
    fl = os.environ.get("K1ST")
    if fl:
        for x in A.ins:
            if x.op.startswith("buffer_store"): x.text += " " + fl.replace("_", " ")
    return A

HEAD = open(f"cdna_kernels/{NAME}.s.ref").read().split("; Override launch")[0]

def kdesc(name, nv):
    return f""".p2align 6
.amdhsa_kernel {name}
  .amdhsa_next_free_vgpr {nv}
  .amdhsa_next_free_sgpr 102
  .amdhsa_accum_offset {nv}
  .amdhsa_group_segment_fixed_size 0
  .amdhsa_kernarg_size 88
  .amdhsa_user_sgpr_count 2
  .amdhsa_user_sgpr_kernarg_segment_ptr 1
  .amdhsa_system_sgpr_workgroup_id_x 1
.end_amdhsa_kernel
"""

def build(kernels):
    s = HEAD
    for (name, A, grid, block, lds, nv) in kernels:
        s += f"; @launch kernel={name} grid=({grid},1,1) block=({block},1,1) lds={lds}\n"
    s += '.amdgcn_target "amdgcn-amd-amdhsa--gfx950"\n.text\n'
    for (name, A, grid, block, lds, nv) in kernels:
        s += f".globl {name}\n.p2align 8\n.type {name},@function\n" + A.text()
    s += '.section .rodata,"a"\n'
    for (name, A, grid, block, lds, nv) in kernels:
        s += kdesc(name, nv)
    return s

if __name__ == "__main__":
    from g2 import gen_k2, LDS2
    k1 = gen_k1(); k2 = gen_k2()
    out = sys.argv[1]
    open(out, "w").write(build([("k1_kernel", k1, NWG1, 512, LDS1, 112), ("k2_kernel", k2, 250, 768, LDS2, 168)]))
    print("written", out, "nops", k1.nops, k2.nops, "instrs", len(k1.ins), len(k2.ins))
```

```python
import sys, os
from asmlib import Asm, I

NAME = "gather_scatter__cheap_equivariant_egnn__graph"
REC_OFF = 0
OV_OFF = 250 * 16000
P8_OFF = 5 << 20
AT_OFF = 8 << 20
EXTC_OFF = AT_OFF + 1280 * 2048
BT_OFF = 12 << 20
WHP_OFF = 16 << 20
WS_SIZE = 32 << 20
NBINWG = 125
NGEMM = 314
NWG1 = NBINWG + NGEMM + 2
LDS1 = 49152
NLOG2E = 0xBFB8AA3B
NLN2 = 0xBF317218
CSTR = 144
KCNT = 252 * CSTR
OVCAP = 12

def mf32(d, a, b, c):
    cs = "0" if c is None else f"v[{c}:{c+15}]"
    return f"v_mfma_f32_32x32x16_bf16 v[{d}:{d+15}], v[{a}:{a+3}], v[{b}:{b+3}], {cs}"
def mf16(d, a, b, c):
    cs = "0" if c is None else f"v[{c}:{c+3}]"
    return f"v_mfma_f32_16x16x32_bf16 v[{d}:{d+3}], v[{a}:{a+3}], v[{b}:{b+3}], {cs}"

def srd(A, r, lo, hi, size, add=None):
    if add is None:
        A(f"s_mov_b32 s{r}, s{lo}")
        A(f"s_mov_b32 s{r+1}, s{hi}")
    else:
        A(f"s_add_u32 s{r}, s{lo}, {add}")
        A(f"s_addc_u32 s{r+1}, s{hi}, 0")
    A(f"s_mov_b32 s{r+2}, {size}")
    A(f"s_mov_b32 s{r+3}, 0x00020000")

STAMP = bool(os.environ.get("STAMP"))
XF_ = set(os.environ.get("X", "").split(","))
DBG1_OFF = 20 << 20
DBG2_OFF = 24 << 20
def stamp(A, reg, real=False):
    if not STAMP: return
    A(f"s_mem{'real' if real else ''}time s[96:97]")
    A("s_waitcnt lgkmcnt(0)")
    A(f"s_mov_b32 s{reg}, s96")
def dump(A, regs, wslo, off, wreg, vt=0):
    if not STAMP: return
    A(f"s_mov_b64 exec, -1")
    A(f"v_mov_b32 v{vt}, 0")
    for i, r in enumerate(regs):
        A(f"v_writelane_b32 v{vt}, s{r}, {i}")
    A(f"v_mbcnt_lo_u32_b32 v{vt+1}, -1, 0")
    A(f"s_lshl_b32 s96, s2, 4")
    A(f"s_add_u32 s96, s96, s{wreg}")
    A(f"s_lshl_b32 s96, s96, 6")
    A(f"s_add_u32 s96, s96, {off}")
    A(f"v_lshl_add_u32 v{vt+1}, v{vt+1}, 2, s96")
    A(f"s_mov_b64 exec, 0xffff")
    A(f"global_store_dword v{vt+1}, v{vt}, s[{wslo}:{wslo+1}]")

SSET = os.environ.get("SSET")
def mk_macro(regs, wslo, off, wreg, named=False):
    def macro(A, t):
        if t[0] == "stamp":
            i = int(t[1])
            if named and SSET and 2 <= i <= 11:
                names = SSET.split(",")
                if str(i) in names: stamp(A, regs[2 + names.index(str(i))])
                return
            stamp(A, regs[i], len(t) > 2)
        elif t[0] == "st":
            if SSET and t[1] in SSET.split(","): stamp(A, regs[2 + SSET.split(",").index(t[1])])
        elif t[0] == "wait":
            if STAMP: A("s_waitcnt vmcnt(0)")
        elif t[0] == "dump": dump(A, regs, wslo, off, wreg, int(t[1]) if len(t) > 1 else 0)
    return macro

def gen_k1():
    A = Asm()
    A.macro = mk_macro(list(range(60, 72)), 20, DBG1_OFF, 23)
    A("k1_kernel:")
    A(f"""
    s_load_dwordx16 s[4:19], s[0:1], 0
    s_load_dwordx2 s[20:21], s[0:1], 80
    s_cmp_ge_u32 s2, {NWG1}
    s_cbranch_scc1 L1_exit
    @stamp 0 real
    @stamp 1
    s_cmp_ge_u32 s2, {NBINWG}
    s_cbranch_scc1 L1_gemm
    v_lshlrev_b32 v1, 4, v0
    v_lshlrev_b32 v2, 2, v0
    s_mul_i32 s3, s2, 10240
    v_add_u32 v3, s3, v1
    s_add_u32 s22, s3, 8192
    v_add_u32 v4, s22, v2
    v_lshrrev_b32 v5, 1, v3
    v_lshrrev_b32 v6, 1, v4
    v_mov_b64 v[24:25], 0
    v_mov_b64 v[26:27], 0
    s_waitcnt lgkmcnt(0)
    global_load_dwordx4 v[8:11], v3, s[12:13]
    global_load_dword v12, v4, s[12:13]
    global_load_dwordx4 v[14:17], v3, s[10:11]
    global_load_dword v18, v4, s[10:11]
    global_load_dwordx2 v[20:21], v5, s[8:9]
    global_load_ushort v22, v6, s[8:9]
    ds_write_b128 v1, v[24:27]
    ds_write_b128 v1, v[24:27] offset:8192
    ds_write_b128 v1, v[24:27] offset:16384
    ds_write_b128 v1, v[24:27] offset:24576
    ds_write_b128 v1, v[24:27] offset:32768
    v_mov_b32 v23, 1
    """)
    srd(A, 24, 20, 21, 251 * 16000)
    A(f"""
    v_lshrrev_b32 v28, 3, v0
    v_and_b32 v29, 7, v0
    v_lshlrev_b32 v29, 4, v29
    v_mul_u32_u24 v30, {CSTR}, v28
    v_mul_u32_u24 v28, 16000, v28
    v_add_u32 v28, v28, v29
    v_add_u32 v30, v30, v29
    v_add_u32 v29, 3072000, v28
    s_lshl_b32 s32, s2, 7
    s_add_u32 s33, s32, 1024000
    s_add_u32 s34, s32, 2048000
    s_mov_b32 s38, 52429
    s_mov_b32 s39, {(1 << 22) - 40}
    s_mov_b32 s40, {1 << 24}
    s_waitcnt lgkmcnt(0)
    s_barrier
    @stamp 2
    s_waitcnt vmcnt(4)
    @stamp 3
    """)
    for j in range(5):
        A(f"v_mul_u32_u24 v{32+j}, s38, v{8+j}")
        A(f"v_lshrrev_b32 v{32+j}, 21, v{32+j}")
        A(f"v_lshlrev_b32 v{38+j}, 2, v{32+j}")
        A(f"ds_add_rtn_u32 v{44+j}, v{38+j}, v23 offset:{KCNT}")
    for j in range(5):
        A(f"v_mad_u32_u24 v{8+j}, v{32+j}, s39, v{8+j}")
        A(f"v_mul_u32_u24 v{32+j}, {CSTR}, v{32+j}")
    A("s_waitcnt vmcnt(2)")
    for j in range(5):
        A(f"v_lshl_add_u32 v{8+j}, v{14+j}, 6, v{8+j}")
        A(f"v_lshl_add_u32 v{8+j}, v{8+j}, 2, s40")
    A(f"""
    s_waitcnt lgkmcnt(0)
    v_max3_u32 v50, v44, v45, v46
    v_max3_u32 v50, v50, v47, v48
    v_cmp_lt_u32 vcc, 19, v50
    s_cbranch_vccnz L1_ovf
    L1_ovf_done:
    s_waitcnt vmcnt(0)
    """)
    for j in range(5):
        A(f"v_lshl_add_u32 v{38+j}, v{44+j}, 2, v{32+j}")
        A(f"v_lshl_add_u32 v{44+j}, v{44+j}, 1, v{32+j}")
        A(f"ds_write_b32 v{38+j}, v{8+j}")
        op = "ds_write_b16_d16_hi" if j in (1, 3) else "ds_write_b16"
        A(f"{op} v{44+j}, v{20 + j//2} offset:80")
    A(f"""
    s_waitcnt lgkmcnt(0)
    @stamp 4
    s_barrier
    @stamp 5
    ds_read_b128 v[32:35], v30
    ds_read_b128 v[36:39], v30 offset:{64*CSTR}
    ds_read_b128 v[40:43], v30 offset:{128*CSTR}
    ds_read_b128 v[44:47], v30 offset:{192*CSTR}
    s_waitcnt lgkmcnt(3)
    buffer_store_dwordx4 v[32:35], v28, s[24:27], s32 offen
    s_waitcnt lgkmcnt(2)
    buffer_store_dwordx4 v[36:39], v28, s[24:27], s33 offen
    s_waitcnt lgkmcnt(1)
    buffer_store_dwordx4 v[40:43], v28, s[24:27], s34 offen
    s_waitcnt lgkmcnt(0)
    buffer_store_dwordx4 v[44:47], v29, s[24:27], s32 offen
    @stamp 6
    v_lshrrev_b32 v1, 6, v0
    v_readfirstlane_b32 s23, v1
    @wait
    @stamp 7
    @stamp 8 real
    @dump
    L1_exit:
    s_endpgm
    L1_ovf:
    v_mov_b32 v51, {250*4}
    """)
    for j in range(5):
        A(f"""
        v_cmp_lt_u32 vcc, 19, v{44+j}
        s_cbranch_vccz L1_ovf{j}
        s_mov_b64 exec, vcc
        ds_add_rtn_u32 v{44+j}, v51, v23 offset:{KCNT}
        s_waitcnt lgkmcnt(0)
        v_cmp_le_u32 vcc, {OVCAP}, v{44+j}
        v_min_u32 v{44+j}, 19, v{44+j}
        v_mov_b32 v50, v{32+j}
        v_mov_b32 v{32+j}, {250*CSTR}
        s_cbranch_vccz L1_ovg{j}
        s_mov_b64 exec, vcc
        ds_write_b32 v50, v23 offset:120
        L1_ovg{j}:
        s_mov_b64 exec, -1
        L1_ovf{j}:
        """)
    A("s_branch L1_ovf_done")
    A(f"""
    L1_gemm:
    s_sub_u32 s3, s2, {NBINWG}
    v_lshrrev_b32 v1, 6, v0
    v_and_b32 v2, 63, v0
    s_and_b32 s22, s3, 1
    v_readfirstlane_b32 s23, v1
    s_lshr_b32 s3, s3, 1
    s_lshl_b32 s40, s22, 15
    v_lshrrev_b32 v3, 4, v2
    v_and_b32 v4, 15, v2
    v_lshlrev_b32 v5, 2, v3
    v_xor_b32 v5, v5, v4
    v_lshlrev_b32 v5, 4, v5
    v_lshl_add_u32 v5, v3, 8, v5
    s_lshl_b32 s41, s23, 12
    v_add_u32 v5, s41, v5
    s_lshl_b32 s42, s23, 3
    v_add_u32 v6, s42, v3
    v_and_b32 v7, 15, v6
    v_xor_b32 v7, v7, v4
    v_lshlrev_b32 v7, 4, v7
    v_lshl_add_u32 v6, v6, 8, v7
    v_xor_b32 v7, 64, v6
    s_and_b32 s43, s23, 3
    s_lshr_b32 s44, s23, 2
    v_bfe_u32 v8, v2, 2, 2
    v_and_b32 v9, 3, v2
    v_xor_b32 v10, s43, v8
    v_lshlrev_b32 v10, 6, v10
    v_lshl_add_u32 v10, v8, 8, v10
    s_cmp_eq_u32 s3, {NGEMM//2}
    s_waitcnt lgkmcnt(0)
    s_cselect_b32 s24, s18, s14
    s_cselect_b32 s25, s19, s15
    s_add_u32 s24, s24, s40
    s_addc_u32 s25, s25, 0
    s_mov_b32 m0, s41
    s_mov_b32 s26, 32768
    s_mov_b32 s27, 0x00020000
    buffer_load_dwordx4 v5, s[24:27], 0 offen lds
    buffer_load_dwordx4 v5, s[24:27], 0 offen offset:1024 lds
    buffer_load_dwordx4 v5, s[24:27], 0 offen offset:2048 lds
    buffer_load_dwordx4 v5, s[24:27], 0 offen offset:3072 lds
    """)
    srd(A, 32, 20, 21, WS_SIZE)
    A(f"""
    s_cmp_eq_u32 s3, {NGEMM//2}
    s_cbranch_scc1 L1_pack
    """)
    srd(A, 28, 4, 5, 2560000)
    A(f"""
    s_lshl_b32 s45, s23, 11
    s_add_u32 s45, s45, 32768
    s_lshl_b32 s46, s3, 14
    s_mov_b32 m0, s45
    v_lshrrev_b32 v11, 5, v2
    v_add_u32 v6, s46, v6
    v_add_u32 v7, s46, v7
    buffer_load_dwordx4 v6, s[28:31], 0 offen lds
    buffer_load_dwordx4 v7, s[28:31], 0 offen offset:1024 lds
    v_lshl_add_u32 v10, v11, 11, v10
    v_bfe_u32 v12, v2, 4, 1
    v_and_b32 v13, 31, v2
    s_lshl_b32 s47, s44, 5
    v_add_u32 v14, s47, v13
    v_xor_b32 v15, v11, v14
    v_and_b32 v15, 15, v15
    v_lshlrev_b32 v15, 4, v15
    v_lshl_add_u32 v15, v14, 8, v15
    s_mov_b32 s48, {NLOG2E}
    s_mov_b32 s49, {NLOG2E}
    s_cmp_eq_u32 s22, 1
    s_cbranch_scc1 L1_matB
    v_lshl_add_u32 v10, v12, 5, v10
    v_lshl_add_u32 v10, v9, 3, v10
    """)
    def frag_reads():
        A("@stamp 2")
        A("s_waitcnt vmcnt(0)")
        A("@stamp 3")
        A("s_barrier")
        A("@stamp 5")
        for s in range(8):
            if s:
                A(f"v_xor_b32 v16, {s*32}, v15")
            A(f"ds_read_b128 v[{64+4*s}:{64+4*s+3}], v{16 if s else 15} offset:32768")
            A(f"ds_read_b64_tr_b16 v[{32+4*s}:{32+4*s+1}], v10 offset:{16*s*256}")
            A(f"ds_read_b64_tr_b16 v[{32+4*s+2}:{32+4*s+3}], v10 offset:{(16*s+4)*256}")
    def scale_cvt():
        for i in range(8):
            A(f"v_pk_mul_f32 v[{96+2*i}:{96+2*i+1}], v[{96+2*i}:{96+2*i+1}], s[48:49]")
        for i in range(8):
            A(f"v_cvt_pk_bf16_f32 v{96+i}, v{96+2*i}, v{96+2*i+1}")
    A(f"""
    s_lshl_b32 s50, s43, 9
    v_lshl_add_u32 v17, v13, 4, s50
    v_lshl_add_u32 v17, v11, 3, v17
    s_lshl_b32 s51, s44, 13
    s_add_u32 s51, s51, s46
    s_add_u32 s51, s51, {AT_OFF}
    s_add_u32 s52, s51, 4096
    """)
    frag_reads()
    for s in range(8):
        A(f"s_waitcnt lgkmcnt({min(15, 3*(7-s))})")
        A(mf32(96, 64+4*s, 32+4*s, 96 if s else None))
    scale_cvt()
    A(f"""
    buffer_store_dwordx2 v[96:97], v17, s[32:35], s51 offen
    buffer_store_dwordx2 v[98:99], v17, s[32:35], s51 offen offset:2048
    buffer_store_dwordx2 v[100:101], v17, s[32:35], s52 offen
    buffer_store_dwordx2 v[102:103], v17, s[32:35], s52 offen offset:2048
    @stamp 6
    @wait
    @stamp 7
    @stamp 8 real
    @dump
    s_endpgm
    L1_matB:
    s_lshl_b32 s53, s3, 6
    v_add_u32 v20, s53, v2
    v_mul_u32_u24 v21, 6, v20
    v_lshlrev_b32 v20, 3, v20
    s_mov_b32 s53, {P8_OFF}
    s_cmp_lg_u32 s23, 7
    s_cbranch_scc1 L1_nop8
    """)
    srd(A, 36, 6, 7, 60000)
    A(f"""
    buffer_load_ushort v22, v21, s[36:39], 0 offen
    buffer_load_ushort v24, v21, s[36:39], 0 offen offset:2
    buffer_load_ushort v23, v21, s[36:39], 0 offen offset:4
    L1_nop8:
    v_and_b32 v18, 1, v9
    v_lshrrev_b32 v19, 1, v9
    v_lshl_add_u32 v10, v18, 5, v10
    v_lshl_add_u32 v10, v12, 4, v10
    v_lshl_add_u32 v10, v19, 3, v10
    s_lshl_b32 s50, s43, 6
    v_lshl_add_u32 v17, v14, 8, s50
    v_lshl_add_u32 v17, v11, 5, v17
    s_add_u32 s51, s46, {BT_OFF}
    """)
    frag_reads()
    A(f"""
    s_cmp_lg_u32 s23, 7
    s_cbranch_scc1 L1_nop8b
    v_lshl_or_b32 v22, v24, 16, v22
    buffer_store_dwordx2 v[22:23], v20, s[32:35], s53 offen
    L1_nop8b:
    """)
    for s in range(8):
        A(f"s_waitcnt lgkmcnt({min(15, 3*(7-s))})")
        A(mf32(96, 32+4*s, 64+4*s, 96 if s else None))
    scale_cvt()
    A(f"""
    buffer_store_dwordx4 v[96:99], v17, s[32:35], s51 offen
    buffer_store_dwordx4 v[100:103], v17, s[32:35], s51 offen offset:16
    @stamp 6
    @wait
    @stamp 7
    @stamp 8 real
    @dump
    s_endpgm
    L1_pack:
    v_and_b32 v20, 127, v0
    v_lshlrev_b32 v21, 1, v20
    v_add_u32 v21, 65536, v21
    global_load_ushort v22, v21, s[14:15]
    global_load_ushort v23, v21, s[14:15] offset:256
    v_lshl_add_u32 v10, v3, 11, v10
    v_lshl_add_u32 v10, v9, 4, v10
    s_lshl_b32 s50, s44, 3
    v_add_u32 v10, s50, v10
    s_lshl_b32 s51, s43, 14
    s_lshl_b32 s52, s44, 13
    s_add_u32 s51, s51, s52
    s_lshl_b32 s52, s22, 12
    s_add_u32 s51, s51, s52
    s_add_u32 s51, s51, {WHP_OFF}
    v_lshlrev_b32 v17, 4, v2
    v_lshlrev_b32 v20, 4, v20
    s_mov_b32 s48, {NLOG2E}
    s_mov_b32 s53, {EXTC_OFF}
    s_waitcnt vmcnt(0)
    s_barrier
    """)
    for ks in range(4):
        A(f"ds_read_b64_tr_b16 v[{32+4*ks}:{32+4*ks+1}], v10 offset:{32*ks*256}")
        A(f"ds_read_b64_tr_b16 v[{32+4*ks+2}:{32+4*ks+3}], v10 offset:{(32*ks+4)*256}")
    A(f"""
    v_lshlrev_b32 v22, 16, v22
    v_lshlrev_b32 v23, 16, v23
    v_mul_f32 v22, s48, v22
    v_mul_f32 v23, s48, v23
    v_cvt_pk_bf16_f32 v24, v22, 0
    v_cvt_pk_bf16_f32 v25, v23, 0
    v_lshlrev_b32 v24, 16, v24
    v_lshlrev_b32 v25, 16, v25
    v_sub_f32 v24, v22, v24
    v_sub_f32 v25, v23, v25
    v_cvt_pk_bf16_f32 v24, v22, v24
    v_cvt_pk_bf16_f32 v25, v23, v25
    v_mov_b64 v[26:27], 0
    buffer_store_dwordx4 v[24:27], v20, s[32:35], s53 offen
    """)
    for ks in range(4):
        A(f"s_waitcnt lgkmcnt({6-2*ks})")
        A(f"buffer_store_dwordx4 v[{32+4*ks}:{32+4*ks+3}], v17, s[32:35], s51 offen offset:{1024*ks}")
    A("s_endpgm")
    A.check_all_edges()
    fl = os.environ.get("K1ST")
    if fl:
        for x in A.ins:
            if x.op.startswith("buffer_store"): x.text += " " + fl.replace("_", " ")
    return A

HEAD = open(f"cdna_kernels/{NAME}.s.ref").read().split("; Override launch")[0]

def kdesc(name, nv):
    return f""".p2align 6
.amdhsa_kernel {name}
  .amdhsa_next_free_vgpr {nv}
  .amdhsa_next_free_sgpr 102
  .amdhsa_accum_offset {nv}
  .amdhsa_group_segment_fixed_size 0
  .amdhsa_kernarg_size 88
  .amdhsa_user_sgpr_count 2
  .amdhsa_user_sgpr_kernarg_segment_ptr 1
  .amdhsa_system_sgpr_workgroup_id_x 1
.end_amdhsa_kernel
"""

def build(kernels):
    s = HEAD
    for (name, A, grid, block, lds, nv) in kernels:
        s += f"; @launch kernel={name} grid=({grid},1,1) block=({block},1,1) lds={lds}\n"
    s += '.amdgcn_target "amdgcn-amd-amdhsa--gfx950"\n.text\n'
    for (name, A, grid, block, lds, nv) in kernels:
        s += f".globl {name}\n.p2align 8\n.type {name},@function\n" + A.text()
    s += '.section .rodata,"a"\n'
    for (name, A, grid, block, lds, nv) in kernels:
        s += kdesc(name, nv)
    return s

if __name__ == "__main__":
    from g2 import gen_k2, LDS2
    k1 = gen_k1(); k2 = gen_k2()
    out = sys.argv[1]
    open(out, "w").write(build([("k1_kernel", k1, NWG1, 512, LDS1, 112), ("k2_kernel", k2, 250, 768, LDS2, 168)]))
    print("written", out, "nops", k1.nops, k2.nops, "instrs", len(k1.ins), len(k2.ins))
```

```python
from g1 import *

CAPT = 48
OH = 0
C1S = CAPT * 512
LIST = C1S + (8 * CAPT + 82) * 64
CNT = LIST + CAPT * 128
CA = CNT + 256
NS = CA + 640
assert NS == 5 * 12288
WX = NS + 1024
P8 = WX + 256
SLOT = 4224
SL0 = P8
MB = P8 + 12 * SLOT
MSTR = 272
HL = P8 + 79 * 1024
LDS2 = HL + 10240
assert LDS2 <= 163840 and MB + 48 * MSTR <= HL and P8 < 65536

T0, T1, E0, E1, AC0, AC1, AF, PB, SF, ID, EXT, XF, ON, IX = 0, 16, 32, 48, 64, 80, 96, 112, 120, 128, 136, 144, 148, 152
LC, VX, VSC, VL, VA, VLO, VHI = 156, 158, 159, 160, 161, 162, 163
LANE, VZ = 164, 108
V16, V1B, TID16 = 165, 166, 167
VM, VKG, VN4, VSB = 144, 145, 146, 147
NSV = 124

class Set:
    def __init__(s, **k): s.__dict__.update(k)
    def mask(s, j): return f"s[{s.m+2*j}:{s.m+2*j+1}]"

def gen_k2():
    A = Asm()
    A.macro = mk_macro([98, 99, 36, 37, 38, 39, 91, 92, 93, 100, 101, 3, 14, 15, 18, 19], 22, DBG2_OFF, 24, True)
    SA = Set(R=2, EA=6, a=2, a4=16, L=20, p8=24, rk=28, ee=32, ns=40, pp=56, m=60)
    SB = Set(R=10, EA=14, a=10, a4=96, L=100, p8=104, rk=112, ee=116, ns=64, pp=80, m=68)
    A("k2_kernel:")
    A(f"""
    s_load_dwordx2 s[22:23], s[0:1], 80
    s_load_dwordx16 s[4:19], s[0:1], 0
    s_load_dwordx2 s[20:21], s[0:1], 64
    s_cmp_ge_u32 s2, 250
    s_cbranch_scc1 L2_exit
    @stamp 0 real
    @stamp 1
    v_lshrrev_b32 v1, 6, v0
    v_and_b32 v{LANE}, 63, v0
    v_readfirstlane_b32 s24, v1
    v_lshlrev_b32 v{TID16}, 4, v0
    s_mul_i32 s76, s2, 16000
    s_bfe_u32 s26, s24, 0x10001
    s_lshr_b32 s27, s24, 2
    s_cmp_eq_u32 s26, 0
    s_cselect_b32 s77, s76, {OV_OFF}
    s_cselect_b32 s79, 64, 0
    s_cselect_b32 s80, 32, 0
    s_lshl_b32 s78, s26, 7
    s_cmp_eq_u32 s27, 0
    s_cselect_b32 s77, s77, s76
    s_cselect_b32 s78, s78, 256
    s_cselect_b32 s79, s79, 0
    s_cselect_b32 s80, s80, 0
    s_cselect_b32 s81, 0, 2
    s_cselect_b32 s82, 0, 3
    v_subrev_u32 v1, s78, v0
    v_lshrrev_b32 v8, s81, v1
    v_and_b32 v9, s82, v1
    v_lshlrev_b32 v8, 7, v8
    v_lshl_add_u32 v1, v9, 4, v8
    v_lshl_add_u32 v9, v9, 3, v8
    s_waitcnt lgkmcnt(0)
    """)
    srd(A, 32, 22, 23, 16000, add="s77")
    A(f"""
    buffer_load_dwordx4 v[2:5], v1, s[32:35], s79 offen
    buffer_load_dwordx2 v[6:7], v9, s[32:35], s80 offen offset:80
    s_mov_b32 s90, 0
    s_cmp_lg_u32 s27, 0
    s_cbranch_scc1 L2_noaux
    buffer_load_dword v8, v1, s[32:35], 0 offen offset:120
    s_lshl_b32 s79, s26, 4
    s_lshl_b32 s80, s26, 3
    """)
    srd(A, 32, 22, 23, 16000, add=OV_OFF)
    A(f"""
    buffer_load_dwordx4 v[10:13], v1, s[32:35], s79 offen offset:16
    buffer_load_dwordx2 v[14:15], v1, s[32:35], s80 offen offset:88
    s_mov_b32 s90, 1
    L2_noaux:
    @st a
    s_mov_b32 s29, 0
    s_mov_b32 s30, 0
    s_and_b32 s25, s24, 1
    s_lshl_b32 s28, s26, 1
    s_add_u32 s28, s28, s27
    s_sub_u32 s28, s28, 1
    s_cmp_eq_u32 s27, 0
    s_cselect_b32 s28, 4, s28
    s_mul_i32 s31, s24, {SLOT}
    s_add_u32 s31, s31, {SL0}
    """)
    srd(A, 44, 22, 23, 80000, add=P8_OFF)
    srd(A, 48, 22, 23, WS_SIZE)
    def tab(lo, hi):
        if "notab" in XF_: return
        for i in range(lo, hi):
            if i == 4:
                A("s_add_u32 s78, s78, 4096")
                A("s_add_u32 m0, m0, 4096")
            A(f"buffer_load_dwordx4 v9, s[44:47], s78 offen offset:{1024*(i&3)} lds")
    A(f"""
    L2_batch:
    s_cmp_lg_u32 s24, 0
    s_cbranch_scc1 L2_nons
    s_mul_i32 s78, s2, 240
    """)
    srd(A, 32, 6, 7, 240, add="s78")
    A(f"""
    v_mul_u32_u24 v9, 6, v{LANE}
    v_mov_b64 v[{NSV}:{NSV+1}], 0
    v_mov_b32 v{NSV+2}, 0
    buffer_load_short_d16_hi v{NSV}, v9, s[32:35], 0 offen
    buffer_load_short_d16_hi v{NSV+1}, v9, s[32:35], 0 offen offset:2
    buffer_load_short_d16_hi v{NSV+2}, v9, s[32:35], 0 offen offset:4
    L2_nons:
    s_mul_i32 s78, s24, 7168
    s_min_u32 s78, s78, {72*1024}
    v_lshlrev_b32 v9, 4, v{LANE}
    s_add_u32 m0, s78, {P8}
    v_mov_b64 v[{VZ}:{VZ+1}], 0
    v_mov_b64 v[{VZ+2}:{VZ+3}], 0
    """)
    A("@st b")
    tab(0, 1)
    A("@st c")
    for i in range(5):
        A(f"ds_write_b128 v{TID16}, v[{VZ}:{VZ+3}] offset:{12288*i}")
    A(f"""
    v_and_b32 v{VM}, 31, v{LANE}
    v_lshrrev_b32 v{VKG}, 5, v{LANE}
    v_lshlrev_b32 v20, 3, v{VKG}
    v_sub_u32 v20, v{VM}, v20
    v_and_b32 v21, 1, v20
    v_lshlrev_b32 v21, 4, v21
    v_mov_b32 v{V1B}, 0x3f80
    v_lshlrev_b32 v21, v21, v{V1B}
    v_ashrrev_i32 v20, 1, v20
    """)
    A("@st d")
    tab(1, 2)
    A("@st e")
    for r in range(8):
        A(f"v_cmp_eq_u32 s[{60+2*r}:{61+2*r}], {r if r < 4 else r+4}, v20")
    for r in range(8):
        A(f"v_cndmask_b32 v{ID+r}, 0, v21, s[{60+2*r}:{61+2*r}]")
    tab(2, 3)
    A("@st f")
    A(f"""
    s_mov_b32 s86, 0x3e803e80
    s_mov_b32 s87, 0x3e803e80
    v_mov_b64 v[{ON}:{ON+1}], s[86:87]
    v_mov_b64 v[{ON+2}:{ON+3}], s[86:87]
    v_mov_b32 v{V16}, 16
    v_and_b32 v20, 7, v{LANE}
    v_bfe_u32 v21, v{LANE}, 4, 1
    v_xor_b32 v22, v20, v21
    v_lshlrev_b32 v{LC}, 4, v22
    v_lshlrev_b32 v{LC+1}, 4, v22
    v_bfe_u32 v22, v{LANE}, 3, 2
    v_lshl_add_u32 v23, v20, 2, v22
    v_mul_u32_u24 v{VX}, {C1S}, v{VKG}
    v_lshl_add_u32 v{VX}, v23, 4, v{VX}
    v_mul_u32_u24 v22, 1056, v22
    v_lshl_add_u32 v22, v20, 7, v22
    v_bfe_u32 v23, v{LANE}, 1, 1
    v_xor_b32 v23, v23, v{VKG}
    v_lshlrev_b32 v23, 4, v23
    v_add3_u32 v{VA}, v22, v23, s31
    """)
    tab(3, 4)
    A("@st g")
    A(f"""
    v_lshrrev_b32 v{VL}, 3, v{LANE}
    v_lshlrev_b32 v{VL}, 4, v{VL}
    v_and_b32 v22, 3, v{LANE}
    v_lshl_add_u32 v22, v21, 2, v22
    s_lshl_b32 s83, s28, 3
    v_add_lshl_u32 v{VN4}, v22, s83, 2
    v_bfe_u32 v22, v{LANE}, 2, 2
    v_lshl_add_u32 v22, v{VKG}, 2, v22
    v_lshlrev_b32 v{VSB}, 5, v{VN4}
    v_add_u32 v{VSB}, {C1S + 8}, v{VSB}
    v_lshl_add_u32 v{VSC}, v22, 6, v{VSB}
    s_add_u32 s76, s2, 1
    s_lshl_b32 s76, s76, 24
    s_mov_b32 s77, {1 << 24}
    s_mov_b32 s81, 0x01000100
    s_mov_b32 s82, 0x03020302
    s_mov_b32 s79, 0xffff00
    s_waitcnt lgkmcnt(0)
    @stamp 2
    s_barrier
    s_waitcnt vmcnt({0 if "notab" in XF_ else 4})
    @stamp 3
    """)
    def p1m(S):
        for j in range(4):
            A(f"v_xor_b32 v{S.R+j}, s76, v{S.R+j}")
            A(f"v_cmp_gt_u32 {S.mask(j)}, s77, v{S.R+j}")
    def p1(S):
        for j in range(4):
            A(f"v_and_b32 v{S.L+j}, s79, v{S.R+j}")
            A(f"v_and_b32 v{S.a+j}, 0xfc, v{S.R+j}")
        for j in range(4):
            A(f"s_mov_b64 exec, {S.mask(j)}")
            A(f"ds_add_rtn_u32 v{S.rk+j}, v{S.a+j}, v{V16} offset:{CNT}")
        A("s_mov_b64 exec, -1")
    def p1b(S):
        for j in range(4):
            A(f"v_lshlrev_b32 v{S.a4+j}, 2, v{S.a+j}")
            A(f"v_lshrrev_b32 v{S.p8+j}, 5, v{S.L+j}")
            A(f"v_perm_b32 v{S.ee+2*j+1}, v{S.EA+j//2}, v{S.EA+j//2}, s{81 + (j&1)}")
    def p2r(S):
        for j in range(4):
            A(f"ds_read_b128 v[{S.ns+4*j}:{S.ns+4*j+3}], v{S.a4+j} offset:{NS}")
        for j in range(4):
            A(f"ds_read_b64 v[{S.pp+2*j}:{S.pp+2*j+1}], v{S.p8+j} offset:{P8}")
    def p2l(S, base):
        for j in range(4):
            A(f"s_waitcnt lgkmcnt({base-j})")
            A(f"v_add_u32 v{S.rk+j}, v{S.rk+j}, v{S.ns+4*j+3}")
            A(f"v_and_b32 v{S.a4+j}, -16, v{S.rk+j}")
            A(f"v_lshrrev_b32 v{S.ns+4*j+3}, 2, v{S.a4+j}")
            A(f"s_mov_b64 exec, {S.mask(j)}")
            A(f"ds_write_b32 v{S.ns+4*j+3}, v{S.L+j} offset:{LIST}")
            A("s_mov_b64 exec, -1")
    def p3(S):
        R4 = range(4)
        n_ = lambda j: S.ns + 4 * j
        p_ = lambda j: S.pp + 2 * j
        for j in R4:
            n, p = n_(j), p_(j)
            A(f"v_dot2_f32_bf16 v{n}, v{p}, s81, v{n}")
            A(f"v_dot2_f32_bf16 v{n+1}, v{p}, s82, v{n+1}")
            A(f"v_dot2_f32_bf16 v{n+2}, v{p+1}, s81, v{n+2}")
            A(f"v_lshl_add_u32 v{S.a+j}, v{S.a+j}, 5, v{S.a4+j}")
        for j in R4:
            A(f"v_cvt_pk_bf16_f32 v{p_(j)}, 1.0, v{n_(j)}")
            A(f"v_cvt_pk_bf16_f32 v{p_(j)+1}, v{n_(j)+1}, v{n_(j)+2}")
        for j in R4: A(f"v_dot2_f32_bf16 v{n_(j)}, v{p_(j)}, v{p_(j)}, -1.0")
        for j in R4: A(f"v_dot2_f32_bf16 v{n_(j)}, v{p_(j)+1}, v{p_(j)+1}, v{n_(j)}")
        for j in R4: A(f"v_cvt_pk_bf16_f32 v{S.ee+2*j}, v{n_(j)}, v{n_(j)}")
        for j in R4:
            A(f"s_mov_b64 exec, {S.mask(j)}")
            A(f"ds_write_b16 v{S.rk+j}, v{V1B} offset:{OH}")
            A(f"ds_write_b64 v{S.a+j}, v[{p_(j)}:{p_(j)+1}] offset:{C1S+72}")
            A(f"ds_write_b64 v{S.a4+j}, v[{S.ee+2*j}:{S.ee+2*j+1}] offset:{C1S}")
        A("s_mov_b64 exec, -1")
    p1m(SA); p1(SA)
    A(f"""
    s_cmp_lg_u32 s90, 0
    s_cbranch_scc1 L2_auxp1
    L2_auxp1_done:
    """)
    tab(4, 5)
    p1b(SA)
    A(f"""
    s_waitcnt lgkmcnt(0)
    s_barrier
    @stamp 4
    s_cmp_eq_u32 s24, 0
    s_cbranch_scc1 L2_scan
    """)
    tab(5, 7)
    A(f"""
    L2_scan_done:
    s_mul_i32 s84, s2, 5
    s_add_u32 s84, s84, s28
    s_lshl_b32 s84, s84, 11
    s_sub_u32 s85, {EXTC_OFF - AT_OFF}, s84
    v_mul_u32_u24 v1, s85, v{VKG}
    v_lshl_add_u32 v1, v{VM}, 4, v1
    s_lshl_b32 s85, s25, 10
    s_add_u32 s84, s84, s85
    s_add_u32 s84, s84, {AT_OFF}
    buffer_load_dwordx4 v[{EXT}:{EXT+3}], v1, s[48:51], s84 offen
    buffer_load_dwordx4 v[{EXT+4}:{EXT+7}], v1, s[48:51], s84 offen offset:512
    s_mul_i32 s84, s2, 10240
    """)
    srd(A, 52, 4, 5, 10240, add="s84")
    srd(A, 56, 20, 21, 10240, add="s84")
    A(f"""
    s_cmp_gt_u32 s24, 9
    s_cbranch_scc1 L2_noh1
    s_lshl_b32 s80, s24, 10
    s_lshl_b32 s78, s24, 2
    v_lshrrev_b32 v1, 4, v{LANE}
    v_add_u32 v1, s78, v1
    v_xor_b32 v0, v1, v{LANE}
    v_and_b32 v0, 15, v0
    v_lshlrev_b32 v0, 4, v0
    s_add_u32 m0, s80, {HL}
    v_lshl_add_u32 v1, v1, 8, v0
    buffer_load_dwordx4 v1, s[52:55], 0 offen lds
    s_branch L2_noh2
    L2_noh1:
    s_mov_b32 m0, {WX}
    s_mov_b64 exec, 0xffff
    global_load_lds_dwordx4 v9, s[16:17]
    s_mov_b64 exec, -1
    L2_noh2:
    s_lshl_b32 s85, s25, 7
    s_add_u32 s85, s85, {BT_OFF - 4096}
    """)
    srd(A, 40, 22, 23, 2560000 + 4096 - 128, add="s85")
    A(f"""
    s_mov_b32 s84, 4096
    s_mov_b32 s85, {4096-1056}
    s_mov_b32 s86, {4096-2112}
    s_mov_b32 s87, {4096-3168}
    s_mov_b32 s88, 512
    s_mov_b32 s89, 512
    s_mov_b32 s81, 0x0000bf80
    s_mov_b32 s82, 0xbf800000
    s_mov_b32 m0, s31
    s_add_u32 s78, s83, 8
    v_lshlrev_b32 v1, 2, v{VN4}
    @stamp 5
    s_waitcnt vmcnt(3) lgkmcnt(0)
    s_barrier
    @stamp 6
    ds_read_b32 v0, v9 offset:{NS+12}
    """)
    p2r(SA)
    A(f"""
    ds_read_b32 v1, v1 offset:{NS+12}
    ds_read_b32 v8, v{VN4} offset:{CNT}
    s_waitcnt lgkmcnt(10)
    v_readlane_b32 s80, v0, 41
    v_readlane_b32 s94, v0, s83
    v_readlane_b32 s95, v0, s78
    v_readlane_b32 s78, v0, 16
    s_cmp_lg_u32 s80, 0
    s_cbranch_scc1 L2_goslow
    """)
    p2l(SA, 9)
    A(f"""
    s_cmp_lg_u32 s90, 0
    s_cbranch_scc1 L2_auxp2
    L2_auxp2_done:
    s_sub_u32 s95, s95, s94
    s_cmp_lg_u32 s27, 0
    s_cbranch_scc1 L2_nosplit
    s_add_u32 s80, s95, s94
    s_sub_u32 s80, s80, s78
    s_sub_u32 s80, s80, s78
    s_add_u32 s80, s80, 512
    s_ashr_i32 s80, s80, 1
    s_and_b32 s80, s80, -512
    s_max_i32 s80, s80, 0
    s_min_i32 s80, s80, s95
    s_sub_u32 s78, s95, s80
    s_cmp_eq_u32 s26, 0
    s_cselect_b32 s95, s80, s78
    s_cselect_b32 s80, 0, s80
    s_add_u32 s94, s94, s80
    L2_nosplit:
    s_lshr_b32 s95, s95, 9
    {"s_min_u32 s95, s95, 64" if "clamp" in XF_ else ""}
    s_lshr_b32 s80, s94, 2
    s_add_u32 s80, s80, {LIST}
    v_add_u32 v{VL}, s80, v{VL}
    v_add_u32 v{VX}, s94, v{VX}
    s_add_u32 s80, s94, 64
    v_add_u32 v{VSC}, s80, v{VSC}
    s_waitcnt lgkmcnt(0)
    s_barrier
    @stamp 7
    ds_read_b128 v[{IX}:{IX+3}], v{VL}
    v_and_b32 v1, -16, v1
    v_add3_u32 v8, v1, v8, -16
    v_and_b32 v1, -64, v1
    v_and_b32 v8, -64, v8
    v_add_u32 v{VLO}, v1, v{VSB}
    v_add_u32 v{VHI}, v8, v{VSB}
    v_add_u32 v{VHI}, 128, v{VHI}
    """)
    def ixadd():
        A(f"v_lshl_add_u64 v[{IX}:{IX+1}], v[{IX}:{IX+1}], 0, v[{LC}:{LC+1}]")
        A(f"v_lshl_add_u64 v[{IX+2}:{IX+3}], v[{IX+2}:{IX+3}], 0, v[{LC}:{LC+1}]")
    def dma():
        for i in range(4):
            A(f"buffer_load_dwordx4 v{IX+i}, s[40:43], s{84+i} offen offset:{1056*i} lds")
    A("s_waitcnt lgkmcnt(0)")
    ixadd()
    dma()
    A(f"ds_read_b128 v[{IX}:{IX+3}], v{VL} offset:128")
    p3(SA)
    A(f"""
    s_cmp_lg_u32 s90, 0
    s_cbranch_scc1 L2_auxp3
    L2_auxp3_done:
    s_cmp_gt_u32 s29, 1
    s_cbranch_scc1 L2_noz
    """)
    A(mf32(AC0, VZ, VZ, None))
    A(mf32(AC1, VZ, VZ, None))
    A("L2_noz:")
    A(mf32(PB, VZ, VZ, None))
    A("s_waitcnt lgkmcnt(0)")
    A(mf32(E1, VZ, VZ, None))
    ixadd()
    A(f"""
    s_waitcnt vmcnt(0)
    s_barrier
    @stamp 8
    s_mov_b32 s14, s95
    s_cmp_eq_u32 s95, 0
    s_cbranch_scc1 L2_done
    """)
    def a_reads():
        for i in range(4):
            A(f"ds_read_b128 v[{AF+4*i}:{AF+4*i+3}], v{VA} offset:{32*i}")
    a_reads()
    A(f"ds_read_b128 v[{XF}:{XF+3}], v{VX}")
    if "noprio" not in XF_:
        A("s_setprio 3")
    A(f"""
    s_cmp_eq_u32 s27, 0
    s_cselect_b32 s80, 0, 4
    s_waitcnt lgkmcnt(0)
    s_cmp_lt_u32 s95, 2
    s_cbranch_scc1 L2_nodma1
    """)
    dma()
    A("L2_nodma1:")
    A(mf32(T0, AF, ID, None))
    A(mf32(T0, AF+4, ID+4, T0))
    A(mf32(T0, XF, EXT, T0))
    A(mf32(T1, AF+8, ID, None))
    A("s_nop 10")
    A.ins.append(I(".p2align 6"))
    A("L2_loop:")
    def run(ops, ins):
        for i, v in enumerate(ops):
            for x in ins.get(i, []):
                if callable(x): x()
                else: A(x)
            A(v)
    ex = lambda e, t: [f"v_exp_f32 v{e+i}, v{t+i}" for i in range(16)]
    rc = lambda e: [f"v_rcp_f32 v{e+i}, v{e+i}" for i in range(16)]
    mu = lambda e, t: [f"v_pk_mul_f32 v[{e+2*i}:{e+2*i+1}], v[{e+2*i}:{e+2*i+1}], v[{t+2*i}:{t+2*i+1}]" for i in range(8)]
    run(ex(E0, T0), {0: [mf32(T1, AF+12, ID+4, T1)], 4: [mf32(T1, XF, EXT+4, T1)]})
    run(ex(E1, T1), {0: ["s_waitcnt lgkmcnt(0)", mf32(AC1, E1+8, SF, AC1)], 4: [mf32(E0, ON, ON, E0)], 8: [mf32(AC1, E1+12, SF+4, AC1)],
                     12: [f"ds_read_b128 v[{XF}:{XF+3}], v{VX} offset:512", f"ds_read_b128 v[{IX}:{IX+3}], v{VL} offset:256"]})
    run(rc(E0), {0: [mf32(AC0, PB, SF, AC0)], 2: ["s_waitcnt vmcnt(0)", a_reads], 4: [mf32(E1, ON, ON, E1)], 8: [mf32(AC0, PB+4, SF+4, AC0)],
                 12: ["s_waitcnt lgkmcnt(4)", ixadd]})
    run(mu(E0, T0), {})
    def dma_next():
        A("s_cmp_lt_u32 s95, 3")
        A("s_cbranch_scc1 L2_nodma2")
        dma()
        A("L2_nodma2:")
    run([f"v_cvt_pk_bf16_f32 v{PB+i}, v{E0+2*i}, v{E0+2*i+1}" for i in range(8)],
        {0: ["s_waitcnt lgkmcnt(0)", mf32(T0, AF, ID, None)], 2: [dma_next]})
    run(rc(E1), {0: [mf32(T0, AF+4, ID+4, T0)], 4: [mf32(T0, XF, EXT, T0)],
                 8: [f"v_med3_i32 v{SF+6}, v{VSC}, v{VLO}, v{VHI}"] +
                    [f"ds_read_b64_tr_b16 v[{SF+2*r}:{SF+2*r+1}], v{SF+6} offset:{16*r}" for r in range(4)] +
                    [f"v_lshl_add_u64 v[{VX}:{VX+1}], v[{VX}:{VX+1}], 0, s[88:89]", f"v_add_u32 v{VL}, 128, v{VL}"]})
    run(mu(E1, T1), {})
    def prio():
        if "noprio" in XF_: return
        A(f"""
        s_cmp_gt_u32 s95, s80
        s_cbranch_scc1 L2_prd
        s_setprio 2
        s_cmp_eq_u32 s95, 4
        s_cbranch_scc1 L2_prd
        s_setprio 1
        s_cmp_eq_u32 s95, 3
        s_cbranch_scc1 L2_prd
        s_setprio 0
        L2_prd:
        """)
    run([f"v_cvt_pk_bf16_f32 v{E1+8+i}, v{E1+2*i}, v{E1+2*i+1}" for i in range(7, -1, -1)],
        {0: [mf32(T1, AF+8, ID, None)], 2: [prio], 6: ["s_sub_u32 s95, s95, 1", "s_cmp_lg_u32 s95, 0"]})
    A("s_cbranch_scc1 L2_loop")
    if "noprio" not in XF_:
        A("s_setprio 3")
    A("s_waitcnt lgkmcnt(0)")
    A(mf32(AC0, PB, SF, AC0))
    A(mf32(AC1, E1+8, SF, AC1))
    A(mf32(AC0, PB+4, SF+4, AC0))
    A(mf32(AC1, E1+12, SF+4, AC1))
    A("L2_done:")
    A("@stamp 9")
    A(f"""
    s_cmp_lg_u32 s29, 0
    s_cbranch_scc1 L2_slownext
    L2_flush:
    v_lshrrev_b32 v{VKG}, 5, v{LANE}
    s_lshl_b32 s72, s25, 7
    s_add_u32 s73, s72, {WX}
    v_lshl_add_u32 v{VM}, v{VKG}, 3, s73
    """)
    for i in range(4):
        A(f"ds_read2_b64 v[{AF+4*i}:{AF+4*i+3}], v{VM} offset0:{4*i} offset1:{4*i+2}")
    A(f"""
    s_lshl_b32 s76, s28, 3
    s_cmp_eq_u32 s27, 0
    s_cselect_b32 s77, s26, 0
    s_lshl_b32 s77, s77, 3
    s_add_u32 s77, s77, s76
    s_mul_i32 s77, s77, {MSTR}
    s_add_u32 s77, s77, {MB}
    s_add_u32 s77, s77, s72
    v_bfe_u32 v{ID}, v{LANE}, 2, 3
    v_mul_u32_u24 v{ID}, {MSTR}, v{ID}
    v_lshl_add_u32 v{ID}, v{VKG}, 3, v{ID}
    v_add_u32 v{ID}, s77, v{ID}
    s_lshl_b32 s76, s28, 7
    v_and_b32 v{ID+1}, 31, v{LANE}
    v_lshl_add_u32 v{ID+1}, v{ID+1}, 2, s76
    """)
    for i in range(16):
        A(f"v_cvt_pk_bf16_f32 v{AC0+i}, v{AC0+2*i}, v{AC0+2*i+1}")
    A("s_mov_b32 exec_lo, 0x11111111")
    A("s_mov_b32 exec_hi, 0x11111111")
    for i in range(8):
        A(f"ds_write_b64 v{ID}, v[{AC0+2*i}:{AC0+2*i+1}] offset:{16*i}")
    A("s_mov_b64 exec, -1")
    A("s_waitcnt lgkmcnt(8)")
    for i in range(16):
        A(f"v_dot2_f32_bf16 v{ID+2}, v{AC0+i}, v{AF+i}, {f'v{ID+2}' if i else '0'}")
    A(f"ds_add_f32 v{ID+1}, v{ID+2} offset:{CA}")
    A(f"""
    s_cmp_lg_u32 s27, 0
    s_cbranch_scc1 L2_other
    """)
    W, H, D = 0, 64, 112
    A(f"""
    s_setprio 0
    v_lshlrev_b32 v140, 4, v{LANE}
    s_lshl_b32 s72, s24, 14
    s_add_u32 s72, s72, {WHP_OFF}
    v_and_b32 v141, 15, v{LANE}
    v_lshrrev_b32 v142, 4, v{LANE}
    v_lshlrev_b32 v143, 4, v142
    v_lshl_add_u32 v144, v141, 8, v143
    """)
    for k in range(4):
        A(f"s_add_u32 s{78+k}, s24, {k}")
        A(f"s_and_b32 s{78+k}, s{78+k}, 3")
        A(f"s_lshl_b32 s{82+k}, s{78+k}, 6")
        A(f"s_lshl_b32 s{78+k}, s{78+k}, 10")
        A(f"s_add_u32 s{78+k}, s{78+k}, s72")
        A(f"s_add_u32 s{86+k}, s{78+k}, 8192")
    for k in range(4):
        A(f"buffer_load_dwordx4 v[{W+4*k}:{W+4*k+3}], v140, s[48:51], s{78+k} offen")
        A(f"buffer_load_dwordx4 v[{W+32+4*k}:{W+32+4*k+3}], v140, s[48:51], s{86+k} offen")
    A("s_add_u32 s73, s72, 4096")
    A("s_add_u32 s74, s72, 12288")
    for k in range(4):
        A(f"buffer_load_dwordx4 v[{W+16+4*k}:{W+16+4*k+3}], v140, s[48:51], s73 offen offset:{1024*k}")
        A(f"buffer_load_dwordx4 v[{W+48+4*k}:{W+48+4*k+3}], v140, s[48:51], s74 offen offset:{1024*k}")
    A(f"""
    v_add_u32 v146, 4096, v144
    v_add_u32 v147, 8192, v144
    v_mov_b32 v145, {MB}
    v_mul_u32_u24 v148, {MSTR}, v141
    v_add3_u32 v145, v145, v148, v143
    v_lshlrev_b32 v148, 4, v141
    v_xor_b32 v148, v148, v144
    v_add_u32 v148, {HL}, v148
    s_waitcnt lgkmcnt(0)
    """)
    for i in range(8):
        A(f"v_mov_b64 v[{H+32+2*i}:{H+33+2*i}], 0")
    assert HL % 256 == 0
    for k in range(4):
        A(f"v_xor_b32 v{149+k}, s{82+k}, v148")
        A(f"ds_read_b128 v[{H+4*k}:{H+4*k+3}], v{149+k}")
        A(f"ds_read_b128 v[{H+16+4*k}:{H+16+4*k+3}], v{149+k} offset:4096")
    A("s_mov_b32 exec_lo, 0x00ff00ff")
    A("s_mov_b32 exec_hi, 0x00ff00ff")
    for k in range(4):
        A(f"ds_read_b128 v[{H+32+4*k}:{H+32+4*k+3}], v{149+k} offset:8192")
    A("s_mov_b64 exec, -1")
    A("s_waitcnt lgkmcnt(0)")
    for k in range(4):
        A(f"s_waitcnt vmcnt({8 + 2*(3-k)})")
        for nt in range(3):
            for ab in range(2):
                d = D + 8 * nt + 4 * ab
                A(mf16(d, W+32*ab+4*k, H+16*nt+4*k, d if k else None))
    MF = [0, 32, 148]
    A(f"""
    s_mov_b32 s78, {NLOG2E}
    s_mov_b32 s79, {NLOG2E}
    s_mov_b32 s80, {NLN2}
    s_mov_b32 s81, {NLN2}
    """)
    for i in range(12):
        A(f"v_pk_mul_f32 v[{D+2*i}:{D+2*i+1}], v[{D+2*i}:{D+2*i+1}], s[78:79]")
    for nt in range(3):
        h = H + 16 * nt
        for i in range(4):
            A(f"v_lshlrev_b32 v{h+4+2*i}, 16, v{h+i}")
            A(f"v_and_b32 v{h+5+2*i}, 0xffff0000, v{h+i}")
    A(f"""
    s_waitcnt vmcnt(0) lgkmcnt(0)
    @stamp 10
    s_barrier
    @stamp 11
    """)
    for nt in range(3):
        for k in range(4):
            A(f"ds_read_b128 v[{MF[nt]+4*k}:{MF[nt]+4*k+3}], v145 offset:{nt*16*MSTR + 64*k}")
    def mm(nt):
        o = []
        for k in range(4):
            o.append(f"s_waitcnt lgkmcnt({11 - 4*nt - k})")
            for ab in range(2):
                d = D + 8 * nt + 4 * ab
                o.append(mf16(d, W+16+32*ab+4*k, MF[nt]+4*k, d))
        return o
    def fin(nt):
        d = D + 8 * nt; tmp = MF[nt]; h = H + 16 * nt
        o = []
        if nt == 2:
            o += [f"v_add_f32_dpp v{d+i}, v{d+i}, v{d+i} row_ror:8 row_mask:0xf bank_mask:0xf" for i in range(8)]
        o += [f"v_exp_f32 v{tmp+i}, v{d+i}" for i in range(8)]
        o += [f"v_pk_add_f32 v[{tmp+2*i}:{tmp+2*i+1}], v[{tmp+2*i}:{tmp+2*i+1}], 1.0 op_sel_hi:[1,0]" for i in range(4)]
        o += [f"v_rcp_f32 v{tmp+i}, v{tmp+i}" for i in range(8)]
        o += [f"v_pk_mul_f32 v[{tmp+2*i}:{tmp+2*i+1}], v[{tmp+2*i}:{tmp+2*i+1}], v[{d+2*i}:{d+2*i+1}]" for i in range(4)]
        o += [f"v_pk_fma_f32 v[{tmp+2*i}:{tmp+2*i+1}], v[{tmp+2*i}:{tmp+2*i+1}], s[80:81], v[{h+4+2*i}:{h+5+2*i}]" for i in range(4)]
        o += [f"v_cvt_pk_bf16_f32 v{h+i}, v{tmp+2*i}, v{tmp+2*i+1}" for i in range(4)]
        o += [f"buffer_store_dwordx4 v[{h}:{h+3}], v{(144,146,147)[nt]}, s[56:59], s82 offen"]
        return o
    for x in mm(0): A(x)
    for x in mm(1): A(x)
    f0 = fin(0); m2 = mm(2)
    for i, x in enumerate(f0):
        A(x)
        if i < 8 and i % 2 == 1:
            for y in m2[3*(i//2):3*(i//2)+3]: A(y)
    for x in fin(1): A(x)
    for x in fin(2): A(x)
    A(f"""
    @wait
    @stamp 13
    @stamp 14 real
    @dump
    s_endpgm
    L2_other:
    s_mul_i32 s72, s2, 240
    s_add_u32 s73, s72, 2560000
    """)
    srd(A, 56, 20, 21, 240, add="s73")
    A(f"""
    s_sub_u32 s74, s24, 4
    s_lshl_b32 s74, s74, 6
    v_add_u32 v1, s74, v{LANE}
    v_lshlrev_b32 v2, 1, v1
    v_mul_u32_u24 v4, 21846, v1
    v_lshrrev_b32 v4, 16, v4
    v_add_lshl_u32 v4, v4, v1, 2
    s_mov_b32 s74, {NLN2}
    s_waitcnt lgkmcnt(0)
    @stamp 10
    s_barrier
    @stamp 11
    @stamp 13
    @stamp 14 real
    @dump 8
    s_mov_b64 exec, -1
    s_cmp_gt_u32 s24, 5
    s_cbranch_scc1 L2_exit
    ds_read_b32 v5, v4 offset:{CA+4}
    ds_read_b32 v3, v4 offset:{NS}
    s_waitcnt lgkmcnt(0)
    v_fma_f32 v3, v5, s74, v3
    v_cvt_pk_bf16_f32 v3, v3, v3
    buffer_store_short v3, v2, s[56:59], 0 offen
    L2_exit:
    s_endpgm
    """)
    A(f"""
    L2_scan:
    v_lshlrev_b32 v1, 2, v{LANE}
    ds_read_b32 v40, v1 offset:{CNT}
    """)
    tab(5, 7)
    A(f"""
    v_and_b32 v42, 7, v{LANE}
    v_lshlrev_b32 v42, 1, v42
    s_waitcnt lgkmcnt(0)
    v_add_u32_dpp v41, v40, v40 row_shr:1 row_mask:0xf bank_mask:0xf bound_ctrl:0
    v_readlane_b32 s85, v40, 63
    v_sub_u32 v42, v42, v40
    v_add_u32_dpp v41, v41, v41 row_shr:2 row_mask:0xf bank_mask:0xf bound_ctrl:0
    v_add_u32_dpp v41, v41, v41 row_shr:4 row_mask:0xf bank_mask:0xf bound_ctrl:0
    v_add_u32_dpp v41, v41, v41 row_shr:8 row_mask:0xf bank_mask:0xf bound_ctrl:0
    v_add_u32_dpp v41, v41, v41 row_bcast:15 row_mask:0xa bank_mask:0xf
    v_add_u32_dpp v41, v41, v41 row_bcast:31 row_mask:0xc bank_mask:0xf
    v_readlane_b32 s86, v41, 7
    v_readlane_b32 s87, v41, 15
    v_readlane_b32 s88, v41, 23
    v_readlane_b32 s89, v41, 31
    v_readlane_b32 s84, v41, 39
    v_add_u32 v{NSV+3}, v41, v42
    s_mov_b32 s80, 0
    """)
    for g, r in enumerate((86, 87, 88, 89, 84)):
        A(f"s_add_u32 s{r}, s{r}, s80")
        A(f"s_sub_u32 s78, 0, s{r}")
        A(f"s_and_b32 s78, s78, 511")
        A(f"s_lshl_b64 exec, -1, {8*(g+1)}")
        A(f"s_add_u32 s80, s80, s78")
        A(f"v_add_u32 v{NSV+3}, s78, v{NSV+3}")
    A(f"""
    s_mov_b64 exec, -1
    s_cmp_gt_u32 s84, {CAPT*512}
    s_cselect_b32 s85, 1, s85
    v_writelane_b32 v{NSV+3}, s85, 41
    ds_write_b128 v9, v[{NSV}:{NSV+3}] offset:{NS}
    s_branch L2_scan_done
    """)
    A(f"""
    L2_auxp1:
    v_cmp_ne_u32 vcc, 0, v8
    s_cbranch_vccz L2_nolost
    ds_write_b32 v{VZ}, v{V16} offset:{CNT+252}
    L2_nolost:
    """)
    p1m(SB)
    A(f"""
    s_or_b64 s[84:85], s[68:69], s[70:71]
    s_or_b64 s[86:87], s[72:73], s[74:75]
    s_or_b64 s[84:85], s[84:85], s[86:87]
    s_cselect_b32 s90, 1, 0
    s_cbranch_scc0 L2_auxp1_done
    """)
    p1(SB); p1b(SB)
    A("s_branch L2_auxp1_done")
    A("L2_auxp2:")
    p2r(SB); p2l(SB, 7)
    A("s_branch L2_auxp2_done")
    A("L2_auxp3:")
    p3(SB)
    A("s_waitcnt lgkmcnt(0)")
    A("s_branch L2_auxp3_done")
    A(f"""
    L2_slownext:
    s_mov_b32 s29, 1
    s_add_u32 s30, s30, 768
    s_cmp_ge_u32 s30, 320000
    s_cbranch_scc1 L2_flush
    L2_goslow:
    s_add_u32 s29, s29, 1
    s_mov_b32 s90, 0
    s_waitcnt vmcnt(0) lgkmcnt(0)
    s_barrier
    v_lshrrev_b32 v1, 4, v{TID16}
    v_add_u32 v1, s30, v1
    v_min_u32 v3, 319999, v1
    v_lshlrev_b32 v4, 2, v3
    v_lshlrev_b32 v3, 1, v3
    global_load_dword v5, v4, s[12:13]
    global_load_dword v8, v4, s[10:11]
    global_load_ushort v6, v3, s[8:9]
    s_mul_i32 s72, s2, 40
    s_mov_b32 s73, 320000
    s_add_u32 s76, s2, 1
    s_lshl_b32 s76, s76, 24
    v_cmp_gt_u32 s[60:61], s73, v1
    s_waitcnt vmcnt(0)
    v_subrev_u32 v5, s72, v5
    v_cmp_gt_u32 s[62:63], 40, v5
    v_lshl_add_u32 v5, v8, 6, v5
    v_lshl_add_u32 v5, v5, 2, s76
    s_and_b64 s[60:61], s[60:61], s[62:63]
    v_cndmask_b32 v2, 0, v5, s[60:61]
    v_mov_b32 v3, 0
    v_mov_b32 v4, 0
    v_mov_b32 v5, 0
    v_mov_b32 v7, 0
    s_branch L2_batch
    """)
    A.check_all_edges()
    return A
```

```python
import re

TRANS = ("v_exp_f32", "v_rcp_f32", "v_log_f32", "v_rsq_f32", "v_sqrt_f32", "v_exp_f16", "v_rcp_f16")

def regs_of(tok):
    tok = tok.strip()
    tok = tok.lstrip("-").strip("|")
    m = re.fullmatch(r"([vsa])\[(\d+):(\d+)\]", tok)
    if m:
        return {(m.group(1), i) for i in range(int(m.group(2)), int(m.group(3)) + 1)}
    m = re.fullmatch(r"([vsa])(\d+)", tok)
    if m:
        return {(m.group(1), int(m.group(2)))}
    if tok == "vcc":
        return {("s", 106), ("s", 107)}
    if tok == "m0":
        return {("m", 0)}
    if tok == "exec":
        return {("x", 0)}
    return set()

class I:
    def __init__(self, text):
        self.text = text
        t = text.split(";")[0].strip()
        self.label = t.endswith(":")
        self.op = t.split()[0] if t and not self.label else ""
        rest = t[len(self.op):].strip()
        ops, depth, cur = [], 0, ""
        for ch in rest:
            if ch == "[": depth += 1
            if ch == "]": depth -= 1
            if ch == "," and depth == 0:
                ops.append(cur.strip()); cur = ""
            else:
                cur += ch
        if cur.strip():
            ops.append(cur.strip())
        mods = ""
        if ops:
            parts = ops[-1].split(None, 1)
            ops[-1] = parts[0]
            mods = parts[1] if len(parts) > 1 else ""
        self.ops, self.mods = ops, mods
        op = self.op
        self.mfma = op.startswith("v_mfma") or op.startswith("v_smfmac")
        self.valu = op.startswith("v_") and not self.mfma
        self.trans = op.replace("_e32", "").replace("_e64", "") in TRANS
        self.dot = op.startswith("v_dot")
        self.ds = op.startswith("ds_")
        self.vmem = op.startswith("buffer_") or op.startswith("global_")
        self.salu = op.startswith("s_")
        self.dpp = "_dpp" in op or "row_" in mods or "quad_perm" in mods
        self.ldsdma = self.vmem and (" lds" in (" " + mods) or "_lds_" in op)
        self.wr, self.rd = set(), set()
        R = [regs_of(o) for o in ops]
        if self.mfma:
            self.wr = R[0]; self.a = R[1]; self.b = R[2]; self.c = R[3] if len(R) > 3 else set()
            if op.startswith("v_smfmac"):
                self.a = self.a | self.c; self.c = R[0]
            self.rd = self.a | self.b | self.c
            self.passes = 8 if "32x32x16" in op or "32x32x8" in op else (4 if "16x16x32" in op else 16)
        elif self.valu:
            if op == "v_nop":
                pass
            else:
                self.wr = R[0]
                for r in R[1:]: self.rd |= r
                if "fmac" in op or "dot2c" in op or self.dpp or "writelane" in op: self.rd |= R[0]
                if "_swap" in op: self.rd |= R[0]; self.wr |= R[1]
        elif self.ds:
            if op.startswith("ds_read") or "_rtn" in op or "permute" in op:
                self.wr = R[0]
                for r in R[1:]: self.rd |= r
            else:
                for r in R: self.rd |= r
        elif self.vmem:
            if "store" in op or self.ldsdma:
                for r in R: self.rd |= r
            else:
                self.wr = R[0]
                for r in R[1:]: self.rd |= r
        elif self.salu:
            if op.startswith("s_cmp") or op.startswith("s_cbranch") or op in ("s_waitcnt", "s_nop", "s_barrier", "s_branch", "s_endpgm", "s_setprio"):
                for r in R: self.rd |= r
            elif R:
                self.wr = R[0]
                for r in R[1:]: self.rd |= r
        self.states = 0 if (self.label or not op) else 1
        if op == "s_nop":
            self.states = int(ops[0]) + 1

def need(p, c):
    n = 0
    vw = {r for r in p.wr if r[0] in "va"}
    sw = {r for r in p.wr if r[0] == "s"}
    if p.valu:
        if c.mfma and (vw & c.rd): n = max(n, 2)
        if p.trans and c.valu and not c.trans and (vw & (c.rd | c.wr)): n = max(n, 1)
        if p.trans and (c.ds or c.vmem) and (vw & c.rd): n = max(n, 1)
        if c.valu and (sw & c.rd):
            n = max(n, 2)
            if ("readlane" in c.op or "writelane" in c.op) and (sw & regs_of(c.ops[-1])): n = max(n, 4)
        if c.vmem and (sw & c.rd): n = max(n, 5)
        if c.valu and ("readlane" in c.op or "readfirstlane" in c.op) and (vw & c.rd): n = max(n, 1)
        if c.valu and (c.dpp or "permlane" in c.op) and (vw & c.rd): n = max(n, 2)
        if p.dot and (vw & (c.rd | c.wr)):
            if c.op == p.op and not (vw & (regs_of(c.ops[1]) | regs_of(c.ops[2]))): pass
            else: n = max(n, 3)
        if ("op_sel" in p.mods and not p.op.startswith("v_pk")) or "sdwa" in p.op:
            if c.valu and (vw & (c.rd | c.wr)): n = max(n, 1)
    if p.mfma:
        big = {4: 8, 8: 12, 16: 20}[p.passes]
        if c.mfma:
            if vw & (c.a | c.b): n = max(n, big)
            if vw & c.c:
                if not (c.c == vw and c.passes == p.passes): n = max(n, big - 2)
            elif vw & c.wr: n = max(n, big - 2)
        elif (c.valu or c.ds or c.vmem) and (vw & (c.rd | c.wr)): n = max(n, big)
        if c.valu and (p.c & c.wr): n = max(n, p.passes - 1)
    if p.salu and ("m", 0) in p.wr and c.ldsdma: n = max(n, 1)
    if p.vmem and "store" in p.op and ("x4" in p.op or "x3" in p.op):
        data = regs_of(p.ops[0]) if p.op.startswith("buffer") else regs_of(p.ops[1])
        if data & c.wr: n = max(n, 2)
    return n

class Asm:
    def __init__(self):
        self.ins = []
        self.nops = 0
    def __call__(self, text):
        for line in text.strip().split("\n"):
            line = line.strip()
            if not line or line.startswith(";"):
                continue
            if line.startswith("@"):
                self.macro(self, line[1:].split())
                continue
            self.add(I(line))
    def add(self, c):
        if c.op and not c.label:
            dist, worst = 0, 0
            for p in reversed(self.ins[-40:]):
                if dist >= 20: break
                if p.op in ("s_branch", "s_endpgm"): break
                worst = max(worst, need(p, c) - dist)
                dist += p.states
            if worst > 0:
                self.ins.append(I(f"s_nop {worst-1}"))
                self.nops += 1
        self.ins.append(c)
    def check_edge(self, frm_idx, label):
        tgt = next(i for i, x in enumerate(self.ins) if x.label and x.text.split(":")[0].strip() == label)
        seq = self.ins[max(0, frm_idx - 30): frm_idx + 1]
        n0 = len(seq)
        seq = seq + self.ins[tgt: tgt + 30]
        for j in range(n0, len(seq)):
            dist = 0
            if seq[j].op in ("s_branch",): break
            for i in range(j - 1, -1, -1):
                if i < n0 and need(seq[i], seq[j]) > dist:
                    raise AssertionError(f"hazard across edge {label}: {seq[i].text} -> {seq[j].text}")
                dist += seq[i].states
    def check_all_edges(self):
        for i, x in enumerate(self.ins):
            if x.op.startswith("s_cbranch") or x.op == "s_branch":
                self.check_edge(i, x.ops[0])
    def text(self):
        return "\n".join((x.text if x.label else "    " + x.text) for x in self.ins) + "\n"
```

```python
from g1 import *

CAPT = 48
C1S = 0
OH = (32 * CAPT + 336) * 16
CNT = OH + CAPT * 512
NS = 55296
assert CNT + 256 <= NS
SLOT = 4192
SLE = NS + 1024
AL = SLE + 8 * SLOT
assert AL % 256 == 0
TAB = AL + 11264
WX = TAB + 61440
LDS2 = WX + 256
assert LDS2 <= 163840
MB = TAB
MSTR = 272
SLL = MB + 13056
PP = SLL + 4 * SLOT
assert PP + 1536 <= WX and SLL % 16 == 0 and PP % 16 == 0

T0, T1, E0, E1, AC0, AC1, AF, PB, SF, ID, EXT, XF, ON, IX = 0, 16, 32, 48, 64, 80, 96, 112, 120, 128, 136, 144, 148, 152
LC, VX, VSC, VL, VA, VLO, VHI = 156, 158, 159, 160, 161, 162, 163
LANE, VZ = 164, 108
V16, V1B, TID16 = 165, 166, 167
VKG, VJS, VJE, VEO = 144, 145, 146, 147
INC, EXC = 20, 21
NSV = 124
GW = AC0
GD = [96, 100, 104, 112, 116, 120]
GH = [[116, 120, 32, 36], [40, 52, 56, 60], [136, 140, 152, 148]]

def gen_k2():
    A = Asm()
    A.macro = mk_macro([98, 99, 36, 37, 38, 39, 91, 92, 93, 100, 101, 74, 75, 59, 18, 19], 22, DBG2_OFF, 24, True)
    RD = [2, 3, 4, 6, 8]; RH = [5, 5, 5, 7, 9]; SEL = [81, 82, 83, 81, 81]
    RA, RK, RL = 10, 15, 22
    mask = lambda j: f"s[{60+2*j}:{61+2*j}]"
    A("k2_kernel:")
    A(f"""
    s_load_dwordx2 s[22:23], s[0:1], 80
    s_load_dwordx16 s[4:19], s[0:1], 0
    s_load_dwordx2 s[20:21], s[0:1], 64
    s_cmp_ge_u32 s2, {NB}
    s_cbranch_scc1 L2_exit
    @stamp 0 real
    @stamp 1
    v_lshrrev_b32 v1, 6, v0
    v_lshlrev_b32 v{TID16}, 4, v0
    v_readfirstlane_b32 s24, v1
    v_and_b32 v{LANE}, 63, v0
    s_mul_i32 s76, s2, {ROWB}
    s_add_u32 s76, s76, {REC_OFF}
    s_mul_i32 s3, s2, 625
    s_add_u32 s70, s3, {625+15}
    s_add_u32 s3, s3, 15
    s_lshr_b32 s3, s3, 4
    s_lshr_b32 s70, s70, 4
    s_sub_u32 s70, s70, s3
    s_lshl_b32 s71, s3, 8
    s_lshl_b32 s54, s70, 8
    s_mov_b32 s55, 0x00020000
    v_lshrrev_b32 v39, 4, v0
    v_xor_b32 v40, v39, v0
    v_and_b32 v40, 15, v40
    v_lshlrev_b32 v40, 4, v40
    v_lshl_add_u32 v39, v39, 8, v40
    s_mov_b32 s29, 0
    s_mov_b32 s30, 0
    s_lshl_b32 s78, s24, 10
    s_add_u32 m0, s78, {AL}
    v_lshlrev_b32 v30, 4, v{LANE}
    s_waitcnt lgkmcnt(0)
    s_add_u32 s32, s22, s76
    s_addc_u32 s33, s23, 0
    global_load_dwordx4 v[2:5], v{TID16}, s[32:33]
    global_load_dwordx4 v[6:9], v{TID16}, s[22:23]
    s_add_u32 s52, s4, s71
    s_addc_u32 s53, s5, 0
    s_cmp_gt_u32 s24, 9
    s_cbranch_scc1 L2_spec
    buffer_load_dwordx4 v39, s[52:55], 0 offen lds
    L2_spec_done:
    s_and_b32 s25, s24, 1
    s_bfe_u32 s26, s24, 0x10001
    s_lshr_b32 s27, s24, 2
    s_mul_i32 s31, s24, {SLOT}
    s_mov_b32 s77, {SLL}
    s_cmp_eq_u32 s27, 0
    s_cselect_b32 s77, s77, {SLE - 4*SLOT}
    s_cselect_b32 s57, 1, 0
    s_add_u32 s31, s31, s77
    s_mov_b32 s44, s6
    s_mov_b32 s45, s7
    s_mov_b32 s46, 60000
    s_mov_b32 s47, 0x00020000
    """)
    srd(A, 48, 22, 23, 4 * 32768, add=PK_OFF)
    A(f"""
    @st a
    s_cmp_lg_u32 s27, 0
    s_cbranch_scc1 L2_batch
    s_lshl_b32 s78, s24, 15
    s_add_u32 s78, s78, 8192
    s_add_u32 s79, s78, 16384
    """)
    for k in range(4):
        A(f"buffer_load_dwordx4 v[{GW+4*k}:{GW+4*k+3}], v30, s[48:51], s78 offen offset:{1024*k}")
        A(f"buffer_load_dwordx4 v[{GW+16+4*k}:{GW+16+4*k+3}], v30, s[48:51], s79 offen offset:{1024*k}")
    A(f"""
    s_sub_u32 s78, s3, 1
    v_add_u32 v1, s78, v{LANE}
    v_mul_u32_u24 v1, 6, v1
    v_mov_b64 v[{NSV}:{NSV+1}], 0
    v_mov_b32 v{NSV+2}, 0
    buffer_load_short_d16_hi v{NSV}, v1, s[44:47], 0 offen
    buffer_load_short_d16_hi v{NSV+1}, v1, s[44:47], 0 offen offset:2
    buffer_load_short_d16_hi v{NSV+2}, v1, s[44:47], 0 offen offset:4
    L2_batch:
    s_mul_i32 s78, s24, 5120
    s_add_u32 m0, s78, {TAB}
    v_mov_b64 v[{VZ}:{VZ+1}], 0
    v_mov_b64 v[{VZ+2}:{VZ+3}], 0
    """)
    for i in range(4):
        A(f"buffer_load_dwordx4 v30, s[44:47], s78 offen offset:{1024*i} lds")
    A(f"""
    s_add_u32 s78, s78, 4096
    s_add_u32 m0, m0, 4096
    v_lshrrev_b32 v1, 1, v{TID16}
    v_add_u32 v31, s78, v30
    buffer_load_dwordx4 v31, s[44:47], 0 offen lds
    @st b
    ds_write_b64 v1, v[{VZ}:{VZ+1}] offset:49152
    """)
    for i in range(4):
        A(f"ds_write_b128 v{TID16}, v[{VZ}:{VZ+3}] offset:{12288*i}")
    A(f"""
    @st c
    v_and_b32 v32, 31, v{LANE}
    v_lshrrev_b32 v{VKG}, 5, v{LANE}
    v_lshlrev_b32 v33, 3, v{VKG}
    v_sub_u32 v32, v32, v33
    v_and_b32 v33, 1, v32
    v_lshlrev_b32 v33, 4, v33
    v_mov_b32 v{V1B}, 0x3f80
    v_lshlrev_b32 v33, v33, v{V1B}
    v_ashrrev_i32 v32, 1, v32
    """)
    for h in range(2):
        for r in range(4):
            A(f"v_cmp_eq_u32 s[{60+2*r}:{61+2*r}], {r + 8*h}, v32")
        for r in range(4):
            A(f"v_cndmask_b32 v{ID+4*h+r}, 0, v33, s[{60+2*r}:{61+2*r}]")
    A(f"""
    v_mov_b32 v{V16}, 16
    v_and_b32 v32, 7, v{LANE}
    v_xor_b32 v33, v32, v{VKG}
    v_lshlrev_b32 v{LC}, 4, v33
    v_lshlrev_b32 v{LC+1}, 4, v33
    v_bfe_u32 v34, v{LANE}, 3, 2
    v_lshl_add_u32 v35, v32, 2, v34
    v_xor_b32 v36, 1, v{VKG}
    v_mul_u32_u24 v{VX}, {OH}, v36
    v_lshl_add_u32 v{VX}, v35, 4, v{VX}
    v_lshrrev_b32 v36, 3, v35
    v_mul_u32_u24 v36, 1056, v36
    v_and_b32 v35, 7, v35
    v_lshl_add_u32 v36, v35, 7, v36
    v_and_b32 v33, 1, v33
    v_lshlrev_b32 v33, 4, v33
    v_add3_u32 v{VA}, v36, v33, s31
    v_lshrrev_b32 v{VL}, 3, v{LANE}
    v_lshlrev_b32 v{VL}, 4, v{VL}
    v_and_b32 v32, 3, v{LANE}
    v_bfe_u32 v33, v{LANE}, 4, 1
    v_lshl_add_u32 v{VJS}, v33, 2, v32
    v_bfe_u32 v{VJE}, v{LANE}, 2, 2
    v_lshl_add_u32 v34, v{VKG}, 2, v{VJE}
    v_lshl_add_u32 v{VSC}, v34, 6, 8
    s_lshl_b32 s78, s25, 7
    s_add_u32 s78, s78, {AL}
    v_lshl_add_u32 v{VEO}, v{VJS}, 3, s78
    v_lshlrev_b32 v29, 2, v{LANE}
    s_sub_u32 s78, 23, s24
    s_lshl_b32 s72, s78, 10
    v_add_u32 v28, s72, v30
    v_mov_b64 v[44:45], 0
    v_mov_b64 v[46:47], 0
    v_mov_b64 v[48:49], 0
    s_add_u32 s76, s2, 1
    s_lshl_b32 s76, s76, 8
    s_movk_i32 s77, 256
    s_mov_b32 s81, 0x0c04010c
    s_mov_b32 s82, 0x0c05010c
    s_mov_b32 s83, 0x0c06010c
    s_mov_b32 s79, 0xffffff
    s_lshl_b32 s85, s25, 7
    s_add_u32 s85, s85, {BT_OFF - 4096}
    v_and_b32 v32, 15, v{LANE}
    v_lshrrev_b32 v33, 4, v{LANE}
    v_xor_b32 v34, v32, v33
    v_lshlrev_b32 v34, 4, v34
    v_lshl_add_u32 v34, v32, 8, v34
    v_add_u32 v50, {AL}, v34
    v_and_b32 v34, 3, v{LANE}
    v_xor_b32 v34, s24, v34
    v_lshlrev_b32 v34, 2, v34
    v_add_lshl_u32 v34, v34, v33, 4
    v_lshl_add_u32 v34, v32, 8, v34
    v_add_u32 v31, {AL}, v34
    """)
    srd(A, 40, 22, 23, 2560000 + 4096 - 128, add="s85")
    A(f"""
    s_mov_b32 m0, s31
    s_waitcnt lgkmcnt(0)
    @stamp 2
    s_barrier
    s_waitcnt vmcnt(16)
    s_cmp_eq_u32 s27, 0
    s_cbranch_scc1 L2_recw
    s_waitcnt vmcnt(5)
    L2_recw:
    @stamp 3
    """)
    def p1(js):
        for j in js:
            A(f"v_and_b32 v{RA+j}, 0xfc, v{RD[j]}")
            A(f"v_mov_b32 v{RK+j}, 0")
        for j in js:
            A(f"s_mov_b64 exec, {mask(j)}")
            A(f"ds_add_rtn_u32 v{RK+j}, v{RA+j}, v{V16} offset:{CNT}")
        A("s_mov_b64 exec, -1")
    def pL(js):
        for j in js:
            A(f"v_perm_b32 v{RL+j}, v{RH[j]}, v{RD[j]}, s{SEL[j]}")
    for j in range(3):
        A(f"v_cmp_ne_u32 {mask(j)}, 0, v{RD[j]}")
    p1(range(3))
    A(f"""
    v_xor_b32 v7, s76, v7
    v_xor_b32 v9, s76, v9
    v_cmp_gt_u32 {mask(3)}, s77, v7
    v_cmp_gt_u32 {mask(4)}, s77, v9
    v_cmp_lt_u32 vcc, s79, v5
    """)
    pL(range(3))
    A(f"""
    s_or_b64 s[84:85], {mask(3)}, {mask(4)}
    s_cselect_b32 s90, 1, 0
    s_or_b64 s[84:85], s[84:85], vcc
    s_cbranch_scc1 L2_ov1
    L2_ov1_done:
    s_mov_b32 s84, 4096
    s_mov_b32 s85, {4096-1056}
    s_mov_b32 s86, {4096-2112}
    s_mov_b32 s87, {4096-3168}
    s_mov_b32 s88, 512
    s_mov_b32 s89, 512
    s_cmp_lg_u32 s57, 0
    s_waitcnt lgkmcnt(0)
    s_barrier
    @stamp 4
    ds_read_b32 v{EXC}, v29 offset:{CNT}
    s_cbranch_scc1 L2_secG
    """)
    def ixrd(reg, t):
        A(f"ds_read2_b32 v[{IX}:{IX+1}], v{reg} offset0:{128*t} offset1:{128*t+32}")
        A(f"ds_read2_b32 v[{IX+2}:{IX+3}], v{reg} offset0:{128*t+64} offset1:{128*t+96}")
    def ixadd():
        A(f"v_lshl_add_u64 v[{IX}:{IX+1}], v[{IX}:{IX+1}], 0, v[{LC}:{LC+1}]")
        A(f"v_lshl_add_u64 v[{IX+2}:{IX+3}], v[{IX+2}:{IX+3}], 0, v[{LC}:{LC+1}]")
    def dma():
        for i in range(4):
            A(f"buffer_load_dwordx4 v{IX+i}, s[40:43], s{84+i} offen offset:{1056*i} {os.environ.get('BTLD','').replace('_',' ')} lds")
    def p2(js, base):
        A(f"s_waitcnt lgkmcnt(0)")
        for n, j in enumerate(js):
            A(f"s_mov_b64 exec, {mask(j)}")
            A(f"v_add_u32 v{RK+j}, v{RK+j}, v{RA+j}")
            A(f"ds_write2_b32 v{RK+j}, v{RL+j}, v{RD[j]} offset0:0 offset1:1")
        A("s_mov_b64 exec, -1")
    class D: pass
    DS = []
    for k in range(2):
        d = D(); d.pos = TID16 if k == 0 else 28
        d.e = 2 + 2 * k; d.ta = 6 + 2 * k; d.a = 7 + 2 * k; d.P = 44 + 3 * k; d.N = 10 + 4 * k; d.m = mask(k)
        DS.append(d)
    OOL = []

    def section(G):
        sx = "G" if G else ""
        ex = []
        if G:
            for nt in range(3):
                for k in range(4):
                    for ab in range(2):
                        d = GD[2*nt+ab]
                        ex.append(mf16(d, GW+16*ab+4*k, GH[nt][k], d if k else None))
        def X(n=1):
            for _ in range(n):
                if ex: A(ex.pop(0))
        def d_rd(d):
            A(f"v_mad_u32_u24 v{d.ta}, v{d.e}, 3, s79")
            A(f"v_lshrrev_b32 v{d.ta}, 7, v{d.ta}")
            A(f"v_and_b32 v{d.a}, 0xfc, v{d.e+1}")
            X()
            for c in range(3):
                A(f"ds_read_u16_d16_hi v{d.P+c}, v{d.ta} offset:{2*c}")
            X()
            A(f"ds_read2st64_b32 v[{d.N}:{d.N+1}], v{d.a} offset0:{NS//256+1} offset1:{NS//256+2}")
            A(f"ds_read_b32 v{d.N+2}, v{d.a} offset:{NS+768}")
        def d_ad(d):
            A(f"v_cmp_ne_u32 {d.m}, 0, v{d.e+1}")
            A(f"v_bfe_u32 v{d.ta}, v{d.e+1}, 1, 4")
            A(f"v_add_u32 v{d.ta}, v{d.ta}, v{d.pos}")
            A(f"v_lshl_add_u32 v{d.a}, v{d.a}, 5, v{d.pos}")
        def d_math(d):
            for c in range(3):
                A(f"v_sub_f32 v{d.N+c}, v{d.N+c}, v{d.P+c}")
            A(f"v_cvt_pk_bf16_f32 v{d.e}, 1.0, v{d.N}")
            A(f"v_cvt_pk_bf16_f32 v{d.e+1}, v{d.N+1}, v{d.N+2}")
            A(f"v_dot2_f32_bf16 v{d.N}, v{d.e}, v{d.e}, -1.0")
            A(f"v_dot2_f32_bf16 v{d.N}, v{d.e+1}, v{d.e+1}, v{d.N}")
            A(f"s_mov_b64 exec, {d.m}")
            A(f"ds_write_b16 v{d.ta}, v{V1B} offset:{OH}")
            A(f"ds_write_b64 v{d.a}, v[{d.e}:{d.e+1}] offset:8")
            A(f"v_mul_f32 v{d.N}, {NLOG2E}, v{d.N}")
            A(f"v_cvt_pk_bf16_f32 v{d.N}, v{d.N}, v{d.N}")
            A(f"ds_write_b16 v{d.pos}, v{d.N} offset:4")
            A("s_mov_b64 exec, -1")
        if G:
            A("L2_secG:")
            for k in range(4):
                if k: A(f"v_xor_b32 v51, {64*k}, v50")
                for nt in range(3):
                    h = GH[nt][k]
                    A(f"ds_read_b128 v[{h}:{h+3}], v{51 if k else 50} offset:{4096*nt}")
        A(f"""
        s_waitcnt lgkmcnt({12 if G else 0})
        v_add_u32_dpp v{INC}, v{EXC}, v{EXC} row_shr:1 row_mask:0xf bank_mask:0xf bound_ctrl:0
        v_add_u32_dpp v{INC}, v{INC}, v{INC} row_shr:2 row_mask:0xf bank_mask:0xf bound_ctrl:0
        v_add_u32_dpp v{INC}, v{INC}, v{INC} row_shr:4 row_mask:0xf bank_mask:0xf bound_ctrl:0
        v_add_u32_dpp v{INC}, v{INC}, v{INC} row_shr:8 row_mask:0xf bank_mask:0xf bound_ctrl:0
        v_add_u32_dpp v{INC}, v{INC}, v{INC} row_bcast:15 row_mask:0xa bank_mask:0xf
        v_add_u32_dpp v{INC}, v{INC}, v{INC} row_bcast:31 row_mask:0xc bank_mask:0xf
        v_sub_u32 v{EXC}, v{INC}, v{EXC}
        """)
        for j in range(3):
            A(f"ds_bpermute_b32 v{RA+j}, v{RA+j}, v{EXC}")
        A(f"""
        v_readlane_b32 s80, v{INC}, 63
        v_readlane_b32 s81, v{INC}, 16
        v_readlane_b32 s82, v{INC}, 24
        s_cmp_gt_u32 s80, {CAPT*512}
        s_cbranch_scc1 L2_goslow
        s_add_u32 s83, s80, 1023
        s_lshr_b32 s83, s83, 10
        s_lshl_b32 s83, s83, 9
        s_add_u32 s79, s80, 511
        s_andn2_b32 s79, s79, 511
        s_cmp_eq_u32 s26, 0
        s_cselect_b32 s76, 0, s83
        s_cselect_b32 s77, s83, s79
        v_cmp_ge_u32 vcc, s76, v{INC}
        s_min_u32 s78, s83, s80
        s_cmp_lt_u32 s82, s78
        s_cselect_b32 s73, 1, s29
        s_cmp_gt_u32 s81, s83
        s_cselect_b32 s73, 1, s73
        {"s_mov_b32 s73, 1" if "fixed" in XF_ else ""}
        s_min_u32 s78, s77, s80
        s_bcnt1_i32_b64 s28, vcc
        s_min_u32 s28, s28, 41
        s_add_u32 s79, s28, 7
        s_cmp_lg_u32 s73, 0
        v_readlane_b32 s81, v{INC}, s79
        s_cbranch_scc1 L2_fixed{sx}
        s_andn2_b32 s82, s81, 511
        s_min_u32 s82, s82, s77
        s_max_u32 s82, s82, s76
        s_cmp_eq_u32 s27, 1
        s_cselect_b32 s94, s76, s82
        L2_fixed_done{sx}:
        """)
        p2(range(3), 2)
        A(f"""
        s_cmp_lg_u32 s90, 0
        s_cbranch_scc1 L2_ov2{sx}
        L2_ov2_done{sx}:
        v_add_u32 v27, s94, v{VL}
        s_mov_b32 s79, {TAB*128}
        """)
        if G:
            A(f"""
            s_waitcnt vmcnt(5)
            ds_write2st64_b32 v29, v{NSV}, v{NSV+1} offset0:{NS//256+1} offset1:{NS//256+2}
            ds_write_b32 v29, v{NSV+2} offset:{NS+768}
            """)
            X(int(os.environ.get("GPRE", "4")))
        A(f"""
        @stamp 5
        s_waitcnt vmcnt(0) lgkmcnt(0)
        s_barrier
        @stamp 6
        """)
        if not G: ixrd(27, 0)
        A(f"ds_read_b64 v[2:3], v{TID16}")
        A(f"ds_read_b64 v[4:5], v28")
        if not G:
            A(f"""
            s_cmp_eq_u32 s27, 0
            s_cbranch_scc1 L2_late0
            s_waitcnt lgkmcnt(2)
            """)
            ixadd()
            dma()
            A("L2_late0:")
        X(4)
        A("s_waitcnt lgkmcnt(1)")
        d_rd(DS[0])
        X(1)
        A(f"""
        s_cmp_ge_u32 s72, s80
        s_cbranch_scc1 L2_nod1{sx}
        s_waitcnt lgkmcnt(5)
        """)
        sv = ex[:]; ex.clear()
        d_rd(DS[1])
        ex.extend(sv)
        A(f"L2_nod1{sx}:")
        A(f"v_cmp_ge_u32 vcc, s82, v{INC}")
        X(1)
        d_ad(DS[0])
        X(len(ex) - 6)
        A(f"""
        s_cmp_lg_u32 s73, 0
        s_cbranch_scc1 L2_chdone{sx}
        s_bcnt1_i32_b64 s83, vcc
        s_min_u32 s83, s83, 41
        s_add_u32 s79, s83, 7
        v_readlane_b32 s64, v{INC}, s79
        s_andn2_b32 s65, s64, 511
        s_min_u32 s65, s65, s77
        s_max_u32 s65, s65, s82
        v_cmp_ge_u32 vcc, s65, v{INC}
        s_mov_b32 s66, s82
        s_mov_b32 s67, s65
        s_bcnt1_i32_b64 s68, vcc
        s_min_u32 s68, s68, 41
        s_add_u32 s79, s68, 7
        v_readlane_b32 s69, v{INC}, s79
        s_cmp_lt_u32 s69, s78
        s_cbranch_scc1 L2_chfix{sx}
        L2_chsel{sx}:
        s_cmp_eq_u32 s27, 1
        s_cselect_b32 s95, s66, s67
        s_cselect_b32 s28, s28, s83
        s_cmp_eq_u32 s27, 0
        s_cselect_b32 s94, s65, s94
        s_cselect_b32 s95, s77, s95
        s_cselect_b32 s28, s68, s28
        L2_chdone{sx}:
        """)
        X(2)
        A(f"""
        s_mov_b32 s58, s95
        s_sub_u32 s95, s95, s94
        s_lshr_b32 s95, s95, 9
        {"s_min_u32 s95, s95, 64" if "clamp" in XF_ else ""}
        v_add_u32 v{VL}, s94, v{VL}
        v_subrev_u32 v22, s28, v{VJS}
        v_and_b32 v22, 7, v22
        """)
        X(2)
        A(f"""
        v_add_u32 v22, s28, v22
        v_min_u32 v22, 41, v22
        v_lshlrev_b32 v23, 2, v22
        """)
        X(2)
        assert not ex
        A(f"""
        s_waitcnt lgkmcnt(0)
        ds_bpermute_b32 v{VLO}, v23, v{EXC}
        ds_bpermute_b32 v{VHI}, v23, v{INC}
        s_cmp_lg_u32 s27, 0
        s_cselect_b32 s79, 512, 0
        v_add_u32 v27, s79, v{VL}
        """)
        ixrd(27, 0)
        d_math(DS[0])
        if G:
            A(f"s_mov_b32 s64, {NLOG2E}")
            A(f"s_mov_b32 s65, {NLOG2E}")
            for nt in range(3):
                for ab in range(2):
                    d = GD[2*nt+ab]
                    A(f"v_pk_mul_f32 v[{d}:{d+1}], v[{d}:{d+1}], s[64:65]")
                    A(f"v_pk_mul_f32 v[{d+2}:{d+3}], v[{d+2}:{d+3}], s[64:65]")
                o = 32 + 4 * nt
                for ab in range(2):
                    d = GD[2*nt+ab]
                    A(f"v_cvt_pk_bf16_f32 v{o+2*ab}, v{d}, v{d+1}")
                    A(f"v_cvt_pk_bf16_f32 v{o+2*ab+1}, v{d+2}, v{d+3}")
                if nt == 2:
                    A("s_mov_b32 exec_lo, 0x00ff00ff")
                    A("s_mov_b32 exec_hi, 0x00ff00ff")
                A(f"ds_write_b128 v31, v[{o}:{o+3}] offset:{4096*nt}")
            A("s_mov_b64 exec, -1")
        A(f"""
        s_cmp_ge_u32 s72, s80
        s_cbranch_scc1 L2_nod2
        """)
        d_ad(DS[1])
        d_math(DS[1])
        if G: A("s_branch L2_nod2")
        def ool():
            A(f"""
            L2_fixed{sx}:
            s_add_u32 s79, s27, 2
            s_sub_u32 s82, s27, 1
            s_cmp_eq_u32 s27, 0
            s_cselect_b32 s79, s79, s82
            s_mul_i32 s82, s26, 3
            s_add_u32 s79, s79, s82
            s_lshl_b32 s79, s79, 3
            s_add_u32 s28, s79, 1
            s_add_u32 s82, s79, 8
            v_readlane_b32 s94, v{INC}, s79
            v_readlane_b32 s95, v{INC}, s82
            s_cmp_eq_u32 s94, s95
            s_cselect_b32 s82, 0, 511
            s_add_u32 s95, s95, s82
            s_andn2_b32 s94, s94, 511
            s_andn2_b32 s95, s95, 511
            s_branch L2_fixed_done{sx}
            L2_ov2{sx}:
            """)
            for j in (3, 4):
                A(f"ds_bpermute_b32 v{RA+j}, v{RA+j}, v{EXC}")
            p2((3, 4), 1)
            A(f"""
            s_branch L2_ov2_done{sx}
            L2_chfix{sx}:
            s_add_u32 s67, s64, 511
            s_andn2_b32 s67, s67, 511
            s_min_u32 s67, s67, s77
            s_add_u32 s68, s83, 8
            s_min_u32 s68, s68, 41
            s_add_u32 s79, s68, 7
            v_readlane_b32 s69, v{INC}, s79
            s_cmp_ge_u32 s69, s78
            s_cbranch_scc1 L2_chsel{sx}
            s_add_u32 s66, s81, 511
            s_andn2_b32 s66, s66, 511
            s_min_u32 s66, s66, s77
            s_add_u32 s83, s28, 8
            s_min_u32 s83, s83, 41
            s_add_u32 s79, s83, 7
            v_readlane_b32 s64, v{INC}, s79
            s_andn2_b32 s65, s64, 511
            s_min_u32 s65, s65, s77
            s_add_u32 s67, s64, 511
            s_andn2_b32 s67, s67, 511
            s_min_u32 s67, s67, s77
            s_add_u32 s68, s83, 8
            s_min_u32 s68, s68, 41
            s_branch L2_chsel{sx}
            """)
        OOL.append(ool)
    section(False)
    A(f"""
    L2_nod2:
    s_mov_b32 s57, 0
    v_add_u32 v{VX}, s94, v{VX}
    v_lshlrev_b32 v22, 7, v22
    v_add3_u32 v{VSC}, v{VSC}, v22, s94
    s_sub_u32 s79, s28, 1
    s_sub_u32 s78, s70, 1
    v_subrev_u32 v24, s28, v{VJE}
    v_and_b32 v25, 7, v24
    v_xor_b32 v26, 4, v25
    v_add_u32 v25, s79, v25
    v_add_u32 v26, s79, v26
    v_min_u32 v25, s78, v25
    v_min_u32 v26, s78, v26
    s_mov_b32 exec_lo, 0
    v_add_u32 v25, 38, v{VJE}
    s_mov_b64 exec, -1
    v_and_b32 v27, 3, v25
    v_and_b32 v28, 3, v26
    v_lshl_add_u32 v25, v25, 2, v27
    v_lshl_add_u32 v26, v26, 2, v28
    v_lshlrev_b32 v25, 6, v25
    v_lshlrev_b32 v26, 6, v26
    v_and_b32 v27, 0xc0, v{VEO}
    v_and_b32 v28, 0xffffff3f, v{VEO}
    v_xad_u32 v25, v25, v27, v28
    v_xad_u32 v26, v26, v27, v28
    s_mov_b32 exec_lo, 0
    v_mov_b32 v26, {CNT+176}
    s_mov_b32 exec_hi, 0x00ff00ff
    v_mov_b32 v25, {CNT+176}
    s_mov_b64 exec, -1
    v_xor_b32 v27, 64, v25
    v_xor_b32 v28, 64, v26
    s_cmp_gt_u32 s29, 1
    s_cbranch_scc1 L2_noz
    """)
    assert (CNT + 176) & 64 == 0
    A(mf32(AC0, VZ, VZ, None))
    A(mf32(AC1, VZ, VZ, None))
    A("L2_noz:")
    A(f"""
    s_mov_b32 s64, 0x3e803e80
    s_mov_b32 s65, 0x3e803e80
    v_mov_b64 v[{ON}:{ON+1}], s[64:65]
    v_mov_b64 v[{ON+2}:{ON+3}], s[64:65]
    v_add_u32 v29, {MB}, v{TID16}
    s_waitcnt lgkmcnt(0)
    """)
    A(mf32(PB, VZ, VZ, None))
    A(f"""
    v_cmp_le_u32 s[60:61], s94, v{VLO}
    v_cmp_ge_u32 s[62:63], s58, v{VHI}
    v_cmp_gt_u32 s[64:65], s58, v{VLO}
    v_cmp_lt_u32 s[66:67], s94, v{VHI}
    v_add_u32 v{VHI}, -16, v{VHI}
    v_and_b32 v{VLO}, 0xffffffc0, v{VLO}
    v_and_b32 v{VHI}, 0xffffffc0, v{VHI}
    v_subrev_u32 v23, 56, v22
    v_add_u32 v{VLO}, v{VLO}, v23
    v_add_u32 v23, 0x48, v22
    v_add_u32 v{VHI}, v{VHI}, v23
    """)
    A(mf32(E1, VZ, VZ, None))
    ixadd()
    A(f"""
    s_and_b32 s60, s60, s62
    s_and_b32 s64, s64, s66
    s_andn2_b32 s64, s64, s60
    s_cmp_lg_u32 s73, 0
    s_cselect_b32 s60, -1, s60
    s_cselect_b32 s64, 0, s64
    s_cmp_lg_u32 s27, 0
    s_barrier
    s_cbranch_scc1 L2_w1
    """)
    dma()
    ixrd(VL, 1)
    A(f"""
    L2_w1:
    @stamp 7
    ds_read_b64_tr_b16 v[{EXT}:{EXT+1}], v25
    ds_read_b64_tr_b16 v[{EXT+2}:{EXT+3}], v26
    ds_read_b64_tr_b16 v[{EXT+4}:{EXT+5}], v27
    ds_read_b64_tr_b16 v[{EXT+6}:{EXT+7}], v28
    ds_write_b128 v29, v[{VZ}:{VZ+3}]
    ds_read_b128 v[{XF}:{XF+3}], v{VX}
    v_add_u32 v{VL}, 1024, v{VL}
    s_and_b32 s60, s60, 0x000f000f
    s_and_b32 s64, s64, 0x000f000f
    s_mul_i32 s60, s60, 0x1001
    s_mul_i32 s64, s64, 0x1001
    s_bfe_u32 s60, s60, 0x8000c
    s_bfe_u32 s64, s64, 0x8000c
    s_bitreplicate_b64_b32 s[60:61], s60
    s_bitreplicate_b64_b32 s[64:65], s64
    s_bitreplicate_b64_b32 s[60:61], s60
    s_bitreplicate_b64_b32 s[64:65], s64
    s_and_b32 s56, s60, 0x11111111
    s_and_b32 s58, s64, 0x11111111
    s_mov_b32 s75, s95
    s_cmp_eq_u32 s27, 0
    s_cselect_b32 s80, {os.environ.get("PR0", "0")}, 4
    s_waitcnt lgkmcnt(0)
    s_barrier
    s_cbranch_scc0 L2_noix
    """)
    ixadd()
    A(f"""
    L2_noix:
    s_waitcnt vmcnt(0)
    s_cmp_eq_u32 s95, 0
    s_cbranch_scc1 L2_done
    @stamp 8
    """)
    def a_reads():
        for i in range(4):
            A(f"ds_read_b128 v[{AF+4*i}:{AF+4*i+3}], v{VA} offset:{32*i}")
    a_reads()
    if "noprio" not in XF_:
        A("s_setprio 3")
    A(f"""
    s_waitcnt lgkmcnt(0)
    s_cmp_lt_u32 s95, 2
    s_cbranch_scc1 L2_nodma1
    """)
    dma()
    A("L2_nodma1:")
    A(mf32(T0, AF, ID, None))
    A(mf32(T0, AF+4, ID+4, T0))
    A(mf32(T0, XF, EXT, T0))
    A(mf32(T1, AF+8, ID, None))
    A("s_nop 10")
    A.ins.append(I(".p2align 6"))
    A("L2_loop:")
    def run(ops, ins):
        for i, v in enumerate(ops):
            for x in ins.get(i, []):
                if callable(x): x()
                else: A(x)
            A(v)
    ex = lambda e, t: [f"v_exp_f32 v{e+i}, v{t+i}" for i in range(16)]
    rc = lambda e: [f"v_rcp_f32 v{e+i}, v{e+i}" for i in range(16)]
    mu = lambda e, t: [f"v_pk_mul_f32 v[{e+2*i}:{e+2*i+1}], v[{e+2*i}:{e+2*i+1}], v[{t+2*i}:{t+2*i+1}]" for i in range(8)]
    run(ex(E0, T0), {0: [mf32(T1, AF+12, ID+4, T1)], 4: [mf32(T1, XF, EXT+4, T1)]})
    run(ex(E1, T1), {0: ["s_waitcnt lgkmcnt(0)", mf32(AC1, E1+8, SF, AC1)], 4: [mf32(E0, ON, ON, E0)], 8: [mf32(AC1, E1+12, SF+4, AC1)],
                     12: [f"ds_read_b128 v[{XF}:{XF+3}], v{VX} offset:512", lambda: ixrd(VL, 0)]})
    run(rc(E0), {0: [mf32(AC0, PB, SF, AC0)], 2: ["s_waitcnt vmcnt(0)", a_reads], 4: [mf32(E1, ON, ON, E1)], 8: [mf32(AC0, PB+4, SF+4, AC0)],
                 12: ["s_waitcnt lgkmcnt(4)", ixadd]})
    run(mu(E0, T0), {})
    def dma_next():
        A("s_cmp_lt_u32 s95, 3")
        A("s_cbranch_scc1 L2_nodma2")
        dma()
        A("L2_nodma2:")
    run([f"v_cvt_pk_bf16_f32 v{PB+i}, v{E0+2*i}, v{E0+2*i+1}" for i in range(8)],
        {0: ["s_waitcnt lgkmcnt(0)", mf32(T0, AF, ID, None)], 2: [dma_next]})
    run(rc(E1), {0: [mf32(T0, AF+4, ID+4, T0)], 4: [mf32(T0, XF, EXT, T0)],
                 8: [f"v_med3_i32 v{SF+6}, v{VSC}, v{VLO}, v{VHI}"] +
                    [f"ds_read_b64_tr_b16 v[{SF+2*r}:{SF+2*r+1}], v{SF+6} offset:{16*r}" for r in range(4)] +
                    [f"v_lshl_add_u64 v[{VX}:{VX+1}], v[{VX}:{VX+1}], 0, s[88:89]", f"v_add_u32 v{VL}, s88, v{VL}"]})
    run(mu(E1, T1), {})
    def prio():
        if "noprio" in XF_: return
        A(f"""
        s_cmp_gt_u32 s95, s80
        s_cbranch_scc1 L2_prd
        s_setprio 2
        s_cmp_eq_u32 s95, 4
        s_cbranch_scc1 L2_prd
        s_setprio 1
        s_cmp_eq_u32 s95, 3
        s_cbranch_scc1 L2_prd
        s_setprio 0
        L2_prd:
        """)
    run([f"v_cvt_pk_bf16_f32 v{E1+8+i}, v{E1+2*i}, v{E1+2*i+1}" for i in range(7, -1, -1)],
        {0: [mf32(T1, AF+8, ID, None)], 2: [prio], 6: ["s_sub_u32 s95, s95, 1", "s_cmp_lg_u32 s95, 0"]})
    A("s_cbranch_scc1 L2_loop")
    if "noprio" not in XF_:
        A("s_setprio 3")
    A("s_waitcnt lgkmcnt(0)")
    A(mf32(AC0, PB, SF, AC0))
    A(mf32(AC1, E1+8, SF, AC1))
    A(mf32(AC0, PB+4, SF+4, AC0))
    A(mf32(AC1, E1+12, SF+4, AC1))
    A("L2_done:")
    A("@stamp 9")
    A(f"""
    s_cmp_lg_u32 s29, 0
    s_cbranch_scc1 L2_slownext
    L2_flush:
    v_lshrrev_b32 v{VKG}, 5, v{LANE}
    s_lshl_b32 s72, s25, 7
    s_add_u32 s73, s72, {WX}
    v_lshl_add_u32 v{VJS}, v{VKG}, 3, s73
    """)
    for i in range(4):
        A(f"ds_read2_b64 v[{AF+4*i}:{AF+4*i+3}], v{VJS} offset0:{4*i} offset1:{4*i+2}")
    A(f"""
    v_bfe_u32 v{ID}, v{LANE}, 2, 3
    v_subrev_u32 v{ID}, s28, v{ID}
    v_and_b32 v{ID}, 7, v{ID}
    v_add_u32 v{ID+4}, s28, v{ID}
    v_min_u32 v{ID}, 41, v{ID+4}
    s_lshl_b32 s76, s24, 7
    s_add_u32 s76, s76, {PP}
    v_and_b32 v{ID+1}, 31, v{LANE}
    v_lshl_add_u32 v{ID+1}, v{ID+1}, 2, s76
    s_add_u32 s77, s72, {MB - MSTR}
    v_mul_u32_u24 v{ID}, {MSTR}, v{ID}
    v_lshl_add_u32 v{ID}, v{VKG}, 3, v{ID}
    v_add_u32 v{ID}, s77, v{ID}
    """)
    for i in range(16):
        A(f"v_cvt_pk_bf16_f32 v{AC0+i}, v{AC0+2*i}, v{AC0+2*i+1}")
    A("s_mov_b32 exec_lo, s56")
    A("s_mov_b32 exec_hi, s56")
    A("s_waitcnt lgkmcnt(0)")
    for i in range(8):
        A(f"ds_write_b64 v{ID}, v[{AC0+2*i}:{AC0+2*i+1}] offset:{16*i}")
    A("s_mov_b32 exec_lo, s58")
    A("s_mov_b32 exec_hi, s58")
    A("s_cbranch_execz L2_nosh")
    for i in range(16):
        A(f"ds_pk_add_bf16 v{ID}, v{AC0+i} offset:{16*(i//2) + 4*(i&1)}")
    A("L2_nosh:")
    A("s_mov_b64 exec, -1")
    for i in range(16):
        A(f"v_dot2_f32_bf16 v{ID+2}, v{AC0+i}, v{AF+i}, {f'v{ID+2}' if i else '0'}")
    A(f"""
    v_mov_b32 v{ID+3}, v{ID+2}
    v_permlane32_swap_b32 v{ID+3}, v{ID+2}
    s_mov_b32 exec_lo, 0xeeeeeeee
    s_mov_b32 exec_hi, 0
    v_add_f32 v{ID+4}, v{ID+3}, v{ID+2}
    s_mov_b32 exec_lo, -1
    ds_write_b32 v{ID+1}, v{ID+4}
    s_mov_b64 exec, -1
    s_cmp_lg_u32 s27, 0
    s_cbranch_scc1 L2_other
    """)
    W, H, D = 0, 64, 112
    A(f"""
    s_setprio 0
    v_lshlrev_b32 v140, 4, v{LANE}
    s_lshl_b32 s72, s24, 15
    v_and_b32 v141, 15, v{LANE}
    v_lshrrev_b32 v142, 4, v{LANE}
    v_lshlrev_b32 v143, 4, v142
    v_lshl_add_u32 v144, v141, 8, v143
    v_add_u32 v146, 4096, v144
    v_add_u32 v147, 8192, v144
    """)
    for k in range(4):
        A(f"s_add_u32 s{78+k}, s24, {k}")
        A(f"s_and_b32 s{78+k}, s{78+k}, 3")
        A(f"s_lshl_b32 s{82+k}, s{78+k}, 6")
        A(f"s_lshl_b32 s{78+k}, s{78+k}, 10")
        A(f"s_add_u32 s{78+k}, s{78+k}, s72")
        A(f"s_add_u32 s{86+k}, s{78+k}, 16384")
    A("s_waitcnt lgkmcnt(0)")
    for k in range(4):
        A(f"buffer_load_dwordx4 v[{W+4*k}:{W+4*k+3}], v140, s[48:51], s{78+k} offen")
        A(f"buffer_load_dwordx4 v[{W+32+4*k}:{W+32+4*k+3}], v140, s[48:51], s{86+k} offen")
        for nt in range(3):
            A(f"buffer_load_dwordx4 v[{H+16*nt+4*k}:{H+16*nt+4*k+3}], v{(144,146,147)[nt]}, s[52:55], s{82+k} offen")
    A("s_add_u32 s76, s72, 4096")
    A("s_add_u32 s77, s72, 20480")
    for k in range(4):
        A(f"buffer_load_dwordx4 v[{W+16+4*k}:{W+16+4*k+3}], v140, s[48:51], s76 offen offset:{1024*k}")
        A(f"buffer_load_dwordx4 v[{W+48+4*k}:{W+48+4*k+3}], v140, s[48:51], s77 offen offset:{1024*k}")
    A(f"""
    v_mov_b32 v145, {MB}
    v_mul_u32_u24 v148, {MSTR}, v141
    v_add3_u32 v145, v145, v148, v143
    s_add_u32 s60, s20, s71
    s_addc_u32 s61, s21, 0
    s_mov_b32 s62, s54
    s_mov_b32 s63, 0x00020000
    """)
    for k in range(4):
        A(f"s_waitcnt vmcnt({8 + 5*(3-k)})")
        for nt in range(3):
            for ab in range(2):
                d = D + 8 * nt + 4 * ab
                A(mf16(d, W+32*ab+4*k, H+16*nt+4*k, d if k else None))
    MF = [0, 32, 148]
    A(f"""
    s_mov_b32 s78, {NLOG2E}
    s_mov_b32 s79, {NLOG2E}
    s_mov_b32 s80, {NLN2}
    s_mov_b32 s81, {NLN2}
    """)
    for i in range(12):
        A(f"v_pk_mul_f32 v[{D+2*i}:{D+2*i+1}], v[{D+2*i}:{D+2*i+1}], s[78:79]")
    for nt in range(3):
        h = H + 16 * nt
        for i in range(4):
            A(f"v_lshlrev_b32 v{h+4+2*i}, 16, v{h+i}")
            A(f"v_and_b32 v{h+5+2*i}, 0xffff0000, v{h+i}")
    A(f"""
    s_waitcnt vmcnt(0) lgkmcnt(0)
    @stamp 10
    s_barrier
    @stamp 11
    """)
    for nt in range(3):
        for k in range(4):
            A(f"ds_read_b128 v[{MF[nt]+4*k}:{MF[nt]+4*k+3}], v145 offset:{nt*16*MSTR + 64*k}")
    def mm(nt):
        o = []
        for k in range(4):
            o.append(f"s_waitcnt lgkmcnt({11 - 4*nt - k})")
            for ab in range(2):
                d = D + 8 * nt + 4 * ab
                o.append(mf16(d, W+16+32*ab+4*k, MF[nt]+4*k, d))
        return o
    def fin(nt):
        d = D + 8 * nt; tmp = MF[nt]; h = H + 16 * nt
        o = []
        o += [f"v_exp_f32 v{tmp+i}, v{d+i}" for i in range(8)]
        o += [f"v_pk_add_f32 v[{tmp+2*i}:{tmp+2*i+1}], v[{tmp+2*i}:{tmp+2*i+1}], 1.0 op_sel_hi:[1,0]" for i in range(4)]
        o += [f"v_rcp_f32 v{tmp+i}, v{tmp+i}" for i in range(8)]
        o += [f"v_pk_mul_f32 v[{tmp+2*i}:{tmp+2*i+1}], v[{tmp+2*i}:{tmp+2*i+1}], v[{d+2*i}:{d+2*i+1}]" for i in range(4)]
        o += [f"v_pk_fma_f32 v[{tmp+2*i}:{tmp+2*i+1}], v[{tmp+2*i}:{tmp+2*i+1}], s[80:81], v[{h+4+2*i}:{h+5+2*i}]" for i in range(4)]
        o += [f"v_cvt_pk_bf16_f32 v{h+i}, v{tmp+2*i}, v{tmp+2*i+1}" for i in range(4)]
        o += [f"buffer_store_dwordx4 v[{h}:{h+3}], v{(144,146,147)[nt]}, s[60:63], s82 offen"]
        return o
    for x in mm(0): A(x)
    for x in mm(1): A(x)
    f0 = fin(0); m2 = mm(2)
    for i, x in enumerate(f0):
        A(x)
        if i < 8 and i % 2 == 1:
            for y in m2[3*(i//2):3*(i//2)+3]: A(y)
    for x in fin(1): A(x)
    for x in fin(2): A(x)
    A(f"""
    @wait
    @stamp 13
    @stamp 14 real
    @dump
    s_endpgm
    L2_other:
    s_mul_i32 s72, s3, 6
    s_add_u32 s73, s72, 2560000
    s_add_u32 s60, s20, s73
    s_addc_u32 s61, s21, 0
    s_mul_i32 s62, s70, 6
    s_mov_b32 s63, 0x00020000
    v_mul_u32_u24 v2, 6, v{LANE}
    v_add_u32 v1, 1, v{LANE}
    v_and_b32 v4, 7, v1
    v_lshlrev_b32 v4, 4, v4
    v_add_u32 v4, {PP}, v4
    v_lshlrev_b32 v5, 2, v1
    v_mov_b64 v[16:17], 0
    v_mov_b64 v[18:19], 0
    s_mov_b32 s76, {NLN2}
    s_waitcnt lgkmcnt(0)
    @stamp 10
    s_barrier
    @stamp 11
    @stamp 13
    @stamp 14 real
    @dump 8
    s_mov_b64 exec, -1
    s_cmp_lg_u32 s24, 4
    s_cbranch_scc1 L2_exit
    """)
    for w in range(12):
        A(f"ds_read_b128 v[{20+4*w}:{23+4*w}], v4 offset:{128*w}")
    A(f"ds_read2st64_b32 v[12:13], v5 offset0:{NS//256+1} offset1:{NS//256+2}")
    A(f"ds_read_b32 v14, v5 offset:{NS+768}")
    for w in range(12):
        A(f"s_waitcnt lgkmcnt({13-w})")
        A(f"v_cmp_eq_u32 vcc, v{20+4*w}, v1")
        A(f"s_mov_b64 exec, vcc")
        A(f"v_add_f32 v17, v17, v{21+4*w}")
        A(f"v_pk_add_f32 v[18:19], v[18:19], v[{22+4*w}:{23+4*w}]")
        A(f"s_mov_b64 exec, -1")
    A(f"""
    s_waitcnt lgkmcnt(0)
    v_fma_f32 v12, v17, s76, v12
    v_fma_f32 v13, v18, s76, v13
    v_fma_f32 v14, v19, s76, v14
    v_cvt_pk_bf16_f32 v12, v12, v13
    v_cvt_pk_bf16_f32 v14, v14, v14
    buffer_store_short v12, v2, s[60:63], 0 offen
    buffer_store_short_d16_hi v12, v2, s[60:63], 0 offen offset:2
    buffer_store_short v14, v2, s[60:63], 0 offen offset:4
    L2_exit:
    s_endpgm
    """)
    section(True)
    for f in OOL: f()
    A(f"""
    L2_spec:
    s_cmp_eq_u32 s24, 11
    s_cbranch_scc1 L2_spec2
    s_add_u32 s32, s14, 65536
    s_addc_u32 s33, s15, 0
    v_and_b32 v31, 16, v{LANE}
    v_lshlrev_b32 v31, 2, v31
    v_xor_b32 v31, v31, v30
    s_mov_b32 exec_hi, 0
    global_load_lds_dwordx4 v31, s[32:33]
    s_mov_b64 exec, -1
    s_branch L2_spec_done
    L2_spec2:
    s_mov_b32 m0, {WX}
    s_mov_b64 exec, 0xffff
    global_load_lds_dwordx4 v30, s[16:17]
    s_mov_b64 exec, -1
    s_branch L2_spec_done
    L2_ov1:
    s_cbranch_vccz L2_nolost
    v_mov_b32 v1, 0x100000
    ds_write_b32 v{VZ}, v1 offset:{CNT}
    L2_nolost:
    """)
    p1((3, 4)); pL((3, 4))
    A("s_branch L2_ov1_done")
    A(f"""
    L2_slownext:
    s_mov_b32 s29, 1
    s_add_u32 s30, s30, 768
    s_cmp_ge_u32 s30, 320000
    s_cbranch_scc1 L2_flush
    L2_goslow:
    s_add_u32 s29, s29, 1
    s_waitcnt vmcnt(0) lgkmcnt(0)
    s_barrier
    v_lshrrev_b32 v1, 4, v{TID16}
    v_add_u32 v1, s30, v1
    v_min_u32 v3, 319999, v1
    v_lshlrev_b32 v4, 2, v3
    v_lshlrev_b32 v3, 1, v3
    global_load_dword v7, v4, s[12:13]
    global_load_dword v8, v4, s[10:11]
    global_load_ushort v6, v3, s[8:9]
    s_mov_b32 s73, 320000
    s_mov_b32 s76, 0x05040100
    v_cmp_gt_u32 s[60:61], s73, v1
    v_lshlrev_b32 v30, 4, v{LANE}
    s_waitcnt vmcnt(0)
    v_subrev_u32 v7, s3, v7
    v_cmp_gt_u32 s[62:63], s70, v7
    v_lshl_add_u32 v7, v8, 6, v7
    v_lshl_add_u32 v7, v7, 2, 4
    v_lshlrev_b32 v6, 16, v6
    v_mul_f32 v6, {NLOG2E}, v6
    v_cvt_pk_bf16_f32 v6, v6, v6
    v_perm_b32 v7, v6, v7, s76
    s_and_b64 s[60:61], s[60:61], s[62:63]
    v_cndmask_b32 v2, 0, v7, s[60:61]
    v_lshrrev_b32 v5, 8, v8
    v_mov_b64 v[6:7], 0
    v_mov_b64 v[8:9], 0
    v_mov_b32 v3, 0
    v_mov_b32 v4, 0
    s_branch L2_batch
    """)
    A.check_all_edges()
    return A
```

```python
import sys, os
from asmlib import Asm, I

NAME = "gather_scatter__cheap_equivariant_egnn__graph"
NB = 256
NCH = 96
CHE = 3336
ROWB = (NCH + 1) * 128
OV_OFF = 0
REC_OFF = NCH * 128
BT_OFF = int(os.environ.get('BTO', '12')) << 20
PK_OFF = 16 << 20
WS_SIZE = 32 << 20
NGEMM = 157
NWG1 = NCH + NGEMM + 3
LDS1 = 65536
NLOG2E = 0xBFB8AA3B
NLN2 = 0xBF317218
CSTR = 144
KOV = 256 * CSTR
KDUM = KOV + 128
KCNT = KDUM + 128
OVCAP = 16

def mf32(d, a, b, c):
    cs = "0" if c is None else f"v[{c}:{c+15}]"
    return f"v_mfma_f32_32x32x16_bf16 v[{d}:{d+15}], v[{a}:{a+3}], v[{b}:{b+3}], {cs}"
def mf16(d, a, b, c):
    cs = "0" if c is None else f"v[{c}:{c+3}]"
    return f"v_mfma_f32_16x16x32_bf16 v[{d}:{d+3}], v[{a}:{a+3}], v[{b}:{b+3}], {cs}"

def srd(A, r, lo, hi, size, add=None):
    if add is None:
        A(f"s_mov_b32 s{r}, s{lo}")
        A(f"s_mov_b32 s{r+1}, s{hi}")
    else:
        A(f"s_add_u32 s{r}, s{lo}, {add}")
        A(f"s_addc_u32 s{r+1}, s{hi}, 0")
    A(f"s_mov_b32 s{r+2}, {size}")
    A(f"s_mov_b32 s{r+3}, 0x00020000")

STAMP = bool(os.environ.get("STAMP"))
XF_ = set(os.environ.get("X", "").split(","))
DBG1_OFF = 20 << 20
DBG2_OFF = 24 << 20
def stamp(A, reg, real=False):
    if not STAMP: return
    A(f"s_mem{'real' if real else ''}time s[96:97]")
    A("s_waitcnt lgkmcnt(0)")
    A(f"s_mov_b32 s{reg}, s96")
def dump(A, regs, wslo, off, wreg, vt=0):
    if not STAMP: return
    A(f"s_mov_b64 exec, -1")
    A(f"v_mov_b32 v{vt}, 0")
    for i, r in enumerate(regs):
        A(f"v_writelane_b32 v{vt}, s{r}, {i}")
    A(f"v_mbcnt_lo_u32_b32 v{vt+1}, -1, 0")
    A(f"s_lshl_b32 s96, s2, 4")
    A(f"s_add_u32 s96, s96, s{wreg}")
    A(f"s_lshl_b32 s96, s96, 6")
    A(f"s_add_u32 s96, s96, {off}")
    A(f"v_lshl_add_u32 v{vt+1}, v{vt+1}, 2, s96")
    A(f"s_mov_b64 exec, 0xffff")
    A(f"global_store_dword v{vt+1}, v{vt}, s[{wslo}:{wslo+1}]")

SSET = os.environ.get("SSET")
def mk_macro(regs, wslo, off, wreg, named=False):
    def macro(A, t):
        if t[0] == "stamp":
            i = int(t[1])
            if named and SSET and 2 <= i <= 11:
                names = SSET.split(",")
                if str(i) in names: stamp(A, regs[2 + names.index(str(i))])
                return
            stamp(A, regs[i], len(t) > 2)
        elif t[0] == "st":
            if SSET and t[1] in SSET.split(","): stamp(A, regs[2 + SSET.split(",").index(t[1])])
        elif t[0] == "wait":
            if STAMP: A("s_waitcnt vmcnt(0)")
        elif t[0] == "dump": dump(A, regs, wslo, off, wreg, int(t[1]) if len(t) > 1 else 0)
    return macro

def gen_k1():
    A = Asm()
    A.macro = mk_macro(list(range(60, 72)), 20, DBG1_OFF, 23)
    PF = os.environ.get("PFL", "nt").replace("_", " ")
    NR = 2 if "prec" in XF_ else 0
    A("k1_kernel:")
    A(f"""
    s_load_dwordx16 s[4:19], s[0:1], 0
    s_load_dwordx2 s[20:21], s[0:1], 80
    s_cmp_ge_u32 s2, {NWG1}
    s_cbranch_scc1 L1_exit
    @stamp 0 real
    @stamp 1
    v_lshrrev_b32 v2, 6, v0
    v_lshlrev_b32 v1, 4, v0
    s_cmp_ge_u32 s2, {NCH}
    v_readfirstlane_b32 s23, v2
    s_cbranch_scc1 L1_gemm
    s_mul_i32 s3, s2, {CHE*4}
    s_add_u32 s22, s3, {CHE*4}
    s_min_u32 s22, s22, 1280000
    v_add_u32 v3, s3, v1
    v_lshrrev_b32 v5, 1, v3
    v_cmp_gt_u32 s[36:37], s22, v3
    v_mov_b64 v[24:25], 0
    v_mov_b64 v[26:27], 0
    s_waitcnt lgkmcnt(0)
    s_mov_b64 exec, s[36:37]
    s_cbranch_execz L1_nold
    global_load_dwordx4 v[8:11], v3, s[12:13]
    global_load_dwordx4 v[14:17], v3, s[10:11]
    global_load_dwordx2 v[20:21], v5, s[8:9]
    L1_nold:
    s_mov_b64 exec, -1
    v_lshlrev_b32 v2, 3, v0
    ds_write_b64 v2, v[24:25] offset:32768
    ds_write_b128 v1, v[24:27]
    ds_write_b128 v1, v[24:27] offset:16384
    v_mov_b32 v23, 33
    """)
    assert KCNT + 257 * 4 <= 32768 + 8192
    srd(A, 24, 20, 21, REC_OFF + NB * ROWB)
    A(f"""
    v_lshrrev_b32 v28, 3, v0
    v_and_b32 v29, 7, v0
    v_lshlrev_b32 v29, 4, v29
    v_mul_u32_u24 v30, {CSTR}, v28
    v_mul_u32_u24 v28, {ROWB}, v28
    v_add_u32 v28, v28, v29
    v_add_u32 v30, v30, v29
    s_lshl_b32 s31, s2, 7
    s_add_u32 s32, s31, {REC_OFF}
    s_add_u32 s33, s32, {128*ROWB}
    s_mov_b32 s38, 429497
    s_movk_i32 s39, 625
    s_mov_b32 s40, {NLOG2E}
    s_mov_b32 s41, {NLOG2E}
    s_mov_b32 s42, 0x05040100
    s_mov_b32 s43, 0x07060100
    s_movk_i32 s44, {24*33}
    {f"buffer_store_dwordx4 v[24:27], v28, s[24:27], s32 offen {PF}" if NR else ""}
    {f"buffer_store_dwordx4 v[24:27], v28, s[24:27], s33 offen {PF}" if NR else ""}
    s_waitcnt lgkmcnt(0)
    s_barrier
    @stamp 2
    s_mov_b64 exec, s[36:37]
    s_cbranch_execz L1_skip
    s_waitcnt vmcnt({2+NR})
    @stamp 3
    """)
    for j in range(4):
        A(f"v_mul_u32_u24 v{32+j}, s38, v{8+j}")
        A(f"v_lshrrev_b32 v{32+j}, 24, v{32+j}")
        A(f"v_lshlrev_b32 v{38+j}, 2, v{32+j}")
        A(f"ds_add_rtn_u32 v{44+j}, v{38+j}, v23 offset:{KCNT}")
    for j in range(4):
        A(f"v_mad_u32_u24 v{48+j}, v{32+j}, s39, -1")
        A(f"v_ashrrev_i32 v{48+j}, 4, v{48+j}")
        A(f"v_sub_u32 v{8+j}, v{8+j}, v{48+j}")
        A(f"v_mul_u32_u24 v{32+j}, {CSTR}, v{32+j}")
    A(f"s_waitcnt vmcnt({1+NR})")
    for j in range(4):
        A(f"v_lshlrev_b32 v{14+j}, 6, v{14+j}")
        A(f"v_add_lshl_u32 v{8+j}, v{14+j}, v{8+j}, 2")
    A(f"""
    s_waitcnt vmcnt({NR})
    v_lshlrev_b32 v48, 16, v20
    v_and_b32 v49, 0xffff0000, v20
    v_lshlrev_b32 v50, 16, v21
    v_and_b32 v51, 0xffff0000, v21
    v_pk_mul_f32 v[48:49], v[48:49], s[40:41]
    v_pk_mul_f32 v[50:51], v[50:51], s[40:41]
    v_cvt_pk_bf16_f32 v20, v48, v49
    v_cvt_pk_bf16_f32 v21, v50, v51
    """)
    for j in range(4):
        A(f"v_perm_b32 v{14+j}, v{20+j//2}, v{8+j}, s{42+(j&1)}")
    A(f"""
    s_waitcnt lgkmcnt(0)
    v_max3_u32 v50, v44, v45, v46
    v_max_u32 v50, v50, v47
    v_cmp_le_u32 vcc, s44, v50
    s_cbranch_vccnz L1_ovf
    L1_ovf_done:
    """)
    for j in range(4):
        A(f"v_bfe_u32 v{48+j}, v{44+j}, 3, 5")
        A(f"v_bfe_u32 v{44+j}, v{44+j}, 3, 2")
        A(f"v_lshl_add_u32 v{48+j}, v{48+j}, 2, v{32+j}")
        A(f"v_mad_i32_i24 v{44+j}, v{44+j}, -3, v{48+j}")
        A(f"ds_write_b32 v{48+j}, v{14+j}")
        A(f"ds_write_b8_d16_hi v{44+j}, v{8+j} offset:12")
    A(f"""
    L1_skip:
    s_mov_b64 exec, -1
    s_waitcnt lgkmcnt(0)
    @stamp 4
    s_barrier
    @stamp 5
    ds_read_b128 v[32:35], v30
    ds_read_b128 v[36:39], v30 offset:{128*CSTR}
    s_cmp_lg_u32 s23, 15
    s_cbranch_scc1 L1_noov
    ds_read_b128 v[40:43], v29 offset:{KOV}
    s_mov_b64 exec, 0xff
    s_waitcnt lgkmcnt(0)
    buffer_store_dwordx4 v[40:43], v29, s[24:27], s31 offen
    s_mov_b64 exec, -1
    L1_noov:
    s_waitcnt lgkmcnt(1)
    buffer_store_dwordx4 v[32:35], v28, s[24:27], s32 offen
    s_waitcnt lgkmcnt(0)
    buffer_store_dwordx4 v[36:39], v28, s[24:27], s33 offen
    {"s_add_u32 s24, s24, 0x400000" if "rec2" in XF_ else ""}
    {"s_addc_u32 s25, s25, 0" if "rec2" in XF_ else ""}
    {"buffer_store_dwordx4 v[32:35], v28, s[24:27], s32 offen" if "rec2" in XF_ else ""}
    {"buffer_store_dwordx4 v[36:39], v28, s[24:27], s33 offen" if "rec2" in XF_ else ""}
    @stamp 6
    @wait
    @stamp 7
    @stamp 8 real
    @dump
    L1_exit:
    s_endpgm
    L1_ovf:
    v_mov_b32 v51, {256*4}
    v_mov_b32 v52, 8
    """)
    for j in range(4):
        A(f"""
        v_cmp_le_u32 vcc, s44, v{44+j}
        s_cbranch_vccz L1_ovf{j}
        s_mov_b64 exec, vcc
        ds_add_rtn_u32 v{44+j}, v51, v52 offset:{KCNT}
        v_lshrrev_b32 v50, 16, v{8+j}
        v_add_u32 v53, 4, v{38+j}
        v_lshl_or_b32 v50, v53, 6, v50
        v_mov_b32 v53, v{32+j}
        v_mov_b32 v{32+j}, {KDUM}
        s_waitcnt lgkmcnt(0)
        v_cmp_le_u32 vcc, {8*OVCAP}, v{44+j}
        v_min_u32 v{44+j}, {8*OVCAP}, v{44+j}
        v_add_u32 v{44+j}, {KOV}, v{44+j}
        ds_write2_b32 v{44+j}, v{14+j}, v50 offset0:0 offset1:1
        v_mov_b32 v{44+j}, 0
        s_cbranch_vccz L1_ovg{j}
        s_mov_b64 exec, vcc
        ds_write_b8 v53, v23 offset:15
        L1_ovg{j}:
        s_mov_b64 exec, s[36:37]
        L1_ovf{j}:
        """)
    A("s_branch L1_ovf_done")
    A(f"""
    L1_gemm:
    s_sub_u32 s3, s2, {NCH}
    v_and_b32 v2, 63, v0
    v_lshrrev_b32 v3, 4, v2
    v_and_b32 v4, 15, v2
    v_lshlrev_b32 v5, 2, v3
    v_xor_b32 v5, v5, v4
    v_lshlrev_b32 v5, 4, v5
    v_lshl_add_u32 v5, v3, 8, v5
    s_lshl_b32 s41, s23, 11
    s_lshl_b32 s42, s23, 2
    v_add_u32 v6, s42, v3
    v_xor_b32 v7, v6, v4
    v_and_b32 v7, 15, v7
    v_lshlrev_b32 v7, 4, v7
    v_lshl_add_u32 v6, v6, 8, v7
    s_lshl_b32 s46, s3, 14
    v_add_u32 v6, s46, v6
    s_lshl_b32 s45, s23, 10
    s_sub_u32 s22, s3, {NGEMM}
    s_and_b32 s40, s22, 1
    s_cmp_lt_u32 s3, {NGEMM}
    s_cselect_b32 s40, 1, s40
    s_lshl_b32 s40, s40, 15
    s_cmp_lt_u32 s22, 2
    s_waitcnt lgkmcnt(0)
    s_cselect_b32 s24, s18, s14
    s_cselect_b32 s25, s19, s15
    s_add_u32 s24, s24, s40
    s_addc_u32 s25, s25, 0
    s_mov_b32 m0, s45
    s_mov_b32 s26, 32768
    s_mov_b32 s27, 0x00020000
    """)
    srd(A, 28, 4, 5, 2560000)
    A(f"""
    buffer_load_dwordx4 v6, s[28:31], 0 offen lds
    s_add_u32 m0, s41, 16384
    s_and_b32 s43, s23, 3
    buffer_load_dwordx4 v5, s[24:27], s41 offen lds
    buffer_load_dwordx4 v5, s[24:27], s41 offen offset:1024 lds
    """)
    srd(A, 32, 20, 21, 16 << 20, add=BT_OFF)
    PF = os.environ.get("PFL", "nt").replace("_", " ")
    NP = 0 if "nopbt" in XF_ else 1
    if NP: A(f"buffer_store_dwordx4 v[2:5], v6, s[32:35], 0 offen {PF}")
    A(f"""
    s_cmp_gt_u32 s23, 7
    s_cbranch_scc1 L1_help
    s_bfe_u32 s44, s23, 0x10002
    v_bfe_u32 v8, v2, 2, 2
    v_and_b32 v9, 3, v2
    v_xor_b32 v10, s43, v8
    v_lshlrev_b32 v10, 6, v10
    v_lshl_add_u32 v10, v8, 8, v10
    s_cmp_ge_u32 s3, {NGEMM}
    s_cbranch_scc1 L1_pack
    v_lshrrev_b32 v11, 5, v2
    v_lshl_add_u32 v10, v11, 11, v10
    v_bfe_u32 v12, v2, 4, 1
    v_and_b32 v13, 31, v2
    s_lshl_b32 s47, s44, 5
    v_add_u32 v14, s47, v13
    v_xor_b32 v15, v11, v14
    v_and_b32 v15, 15, v15
    v_lshlrev_b32 v15, 4, v15
    v_lshl_add_u32 v15, v14, 8, v15
    s_mov_b32 s48, {NLOG2E}
    s_mov_b32 s49, {NLOG2E}
    v_and_b32 v18, 1, v9
    v_lshrrev_b32 v19, 1, v9
    v_lshl_add_u32 v10, v18, 5, v10
    v_lshl_add_u32 v10, v12, 4, v10
    v_lshl_add_u32 v10, v19, 3, v10
    s_lshl_b32 s50, s43, 2
    v_lshl_add_u32 v17, v11, 1, s50
    v_xor_b32 v17, v17, v14
    v_and_b32 v17, 15, v17
    v_lshlrev_b32 v17, 4, v17
    v_lshl_add_u32 v17, v14, 8, v17
    v_xor_b32 v18, 16, v17
    """)
    for s in range(1, 8):
        A(f"v_xor_b32 v{20+s}, {s*32}, v15")
    A(f"""
    @stamp 2
    s_waitcnt vmcnt({NP})
    @stamp 3
    s_barrier
    @stamp 5
    """)
    for s in range(8):
        A(f"ds_read_b128 v[{64+4*s}:{64+4*s+3}], v{20+s if s else 15}")
        A(f"ds_read_b64_tr_b16 v[{32+4*s}:{32+4*s+1}], v10 offset:{16384+16*s*256}")
        A(f"ds_read_b64_tr_b16 v[{32+4*s+2}:{32+4*s+3}], v10 offset:{16384+(16*s+4)*256}")
    for s in range(8):
        A(f"s_waitcnt lgkmcnt({min(15, 3*(7-s))})")
        A(mf32(96, 32+4*s, 64+4*s, 96 if s else None))
    for i in range(8):
        A(f"v_pk_mul_f32 v[{96+2*i}:{96+2*i+1}], v[{96+2*i}:{96+2*i+1}], s[48:49]")
    for i in range(8):
        A(f"v_cvt_pk_bf16_f32 v{96+i}, v{96+2*i}, v{96+2*i+1}")
    A(f"""
    ds_write_b128 v17, v[96:99] offset:49152
    ds_write_b128 v18, v[100:103] offset:49152
    s_waitcnt lgkmcnt(0)
    @stamp 4
    L1_gst:
    s_barrier
    ds_read_b128 v[96:99], v1 offset:49152
    s_waitcnt lgkmcnt(0)
    buffer_store_dwordx4 v[96:99], v6, s[32:35], 0 offen {os.environ.get('BTST','').replace('_',' ')}
    @stamp 6
    @wait
    @stamp 7
    @stamp 8 real
    @dump
    s_endpgm
    L1_help:
    s_cmp_ge_u32 s3, {NGEMM}
    s_waitcnt vmcnt({NP})
    s_barrier
    s_cbranch_scc0 L1_gst
    s_endpgm
    L1_pack:
    v_lshl_add_u32 v10, v3, 11, v10
    v_lshl_add_u32 v10, v9, 4, v10
    s_lshl_b32 s50, s44, 3
    v_add_u32 v10, s50, v10
    s_lshl_b32 s51, s43, 15
    s_lshl_b32 s52, s44, 14
    s_add_u32 s51, s51, s52
    s_lshl_b32 s52, s22, 12
    s_add_u32 s51, s51, s52
    s_add_u32 s51, s51, {PK_OFF - BT_OFF}
    v_lshlrev_b32 v17, 4, v2
    s_waitcnt vmcnt({NP})
    s_barrier
    """)
    for ks in range(4):
        A(f"ds_read_b64_tr_b16 v[{32+4*ks}:{32+4*ks+1}], v10 offset:{16384+32*ks*256}")
        A(f"ds_read_b64_tr_b16 v[{32+4*ks+2}:{32+4*ks+3}], v10 offset:{16384+(32*ks+4)*256}")
    for ks in range(4):
        A(f"s_waitcnt lgkmcnt({6-2*ks})")
        A(f"buffer_store_dwordx4 v[{32+4*ks}:{32+4*ks+3}], v17, s[32:35], s51 offen offset:{1024*ks}")
    A("s_endpgm")
    A.check_all_edges()
    fl = os.environ.get("K1ST")
    if fl:
        for x in A.ins:
            if x.op.startswith("buffer_store"): x.text += " " + fl.replace("_", " ")
    return A

HEAD = open(f"cdna_kernels/{NAME}.s.ref").read().split("; Override launch")[0]

def kdesc(name, nv):
    return f""".p2align 6
.amdhsa_kernel {name}
  .amdhsa_next_free_vgpr {nv}
  .amdhsa_next_free_sgpr 102
  .amdhsa_accum_offset {nv}
  .amdhsa_group_segment_fixed_size 0
  .amdhsa_kernarg_size 88
  .amdhsa_user_sgpr_count 2
  .amdhsa_user_sgpr_kernarg_segment_ptr 1
  .amdhsa_system_sgpr_workgroup_id_x 1
.end_amdhsa_kernel
"""

def build(kernels):
    s = HEAD
    for (name, A, grid, block, lds, nv) in kernels:
        s += f"; @launch kernel={name} grid=({grid},1,1) block=({block},1,1) lds={lds}\n"
    s += '.amdgcn_target "amdgcn-amd-amdhsa--gfx950"\n.text\n'
    for (name, A, grid, block, lds, nv) in kernels:
        s += f".globl {name}\n.p2align 8\n.type {name},@function\n" + A.text()
    s += '.section .rodata,"a"\n'
    for (name, A, grid, block, lds, nv) in kernels:
        s += kdesc(name, nv)
    return s

if __name__ == "__main__":
    from g2 import gen_k2, LDS2
    k1 = gen_k1(); k2 = gen_k2()
    out = sys.argv[1]
    open(out, "w").write(build([("k1_kernel", k1, NWG1, 1024, LDS1, 112), ("k2_kernel", k2, NB, 768, LDS2, 168)]))
    print("written", out, "nops", k1.nops, k2.nops, "instrs", len(k1.ins), len(k2.ins))
```

```python
from g1 import *

CAPT = 48
C1S = 0
OH = (32 * CAPT + 336) * 16
CNT = OH + CAPT * 512
NS = CNT
AL0 = 55296
assert NS + 768 == AL0 and AL0 % 2048 == 0
AL = AL0 + 256
WR = AL + 48 * 256
WX = WR + 512
SLOT = 4192
SLE = WX + 256
TAB = SLE + 8 * SLOT
LDS2 = TAB + 59 * 1024
assert LDS2 <= 163840
FLG = CNT + 252
ZA = CNT + 176
MB = TAB
MSTR = 272
SLL = MB + 13056
PP = SLL + 4 * SLOT
assert PP + 1536 <= LDS2 and SLL % 16 == 0 and PP % 16 == 0

T0, T1, E0, E1, AC0, AC1, AF, PB, SF, ID, EXT, XF, ON, IX = 0, 16, 32, 48, 64, 80, 96, 112, 120, 128, 136, 144, 148, 152
LC, VX, VSC, VL, VA, VLO, VHI = 156, 158, 159, 160, 161, 162, 163
LANE, VZ = 164, 108
V16, V1B, TID16 = 165, 166, 167
VKG, VJS = 144, 145
CK, MK, B1, B2, CJ, J4 = 144, 145, 146, 147, 0, 127
INC, EXC = 20, 21
NSV = 124
GW = AC0
GD = [96, 100, 104, 112, 116, 120]
GH = [[116, 120, 32, 36], [40, 52, 56, 60], [136, 140, 152, 148]]

def gen_k2():
    A = Asm()
    A.macro = mk_macro([98, 99, 36, 37, 38, 39, 91, 92, 93, 100, 101, 74, 75, 59, 18, 19], 22, DBG2_OFF, 24, True)
    RD = [2, 3, 4, 6, 8]; RH = [5, 5, 5, 7, 9]; SEL = [81, 82, 83, 81, 81]
    RA, RK, RL = 10, 15, 22
    mask = lambda j: f"s[{60+2*j}:{61+2*j}]"
    A("k2_kernel:")
    A(f"""
    s_load_dwordx2 s[22:23], s[0:1], 80
    s_load_dwordx16 s[4:19], s[0:1], 0
    s_load_dwordx2 s[20:21], s[0:1], 64
    s_cmp_ge_u32 s2, {NB}
    s_cbranch_scc1 L2_exit
    {"s_memrealtime s[98:99]" if DIAG else ""}
    @stamp 0 real
    @stamp 1
    v_lshrrev_b32 v1, 6, v0
    v_lshlrev_b32 v{TID16}, 4, v0
    v_readfirstlane_b32 s24, v1
    v_and_b32 v{LANE}, 63, v0
    s_mul_i32 s76, s2, {ROWB}
    s_add_u32 s76, s76, {REC_OFF}
    s_mul_i32 s3, s2, 625
    s_add_u32 s70, s3, {625+15}
    s_add_u32 s3, s3, 15
    s_lshr_b32 s3, s3, 4
    s_lshr_b32 s70, s70, 4
    s_sub_u32 s70, s70, s3
    s_lshl_b32 s71, s3, 8
    s_lshl_b32 s54, s70, 8
    s_mov_b32 s55, 0x00020000
    v_lshrrev_b32 v39, 4, v0
    v_xor_b32 v40, v39, v0
    v_and_b32 v40, 15, v40
    v_lshlrev_b32 v40, 4, v40
    v_lshl_add_u32 v39, v39, 8, v40
    s_mov_b32 s29, 0
    s_mov_b32 s30, 0
    s_lshl_b32 s78, s24, 10
    s_add_u32 m0, s78, {AL}
    s_and_b32 s25, s24, 1
    s_bfe_u32 s26, s24, 0x10001
    s_lshr_b32 s27, s24, 2
    s_mul_i32 s31, s24, {SLOT}
    s_mov_b32 s77, {SLL}
    s_cmp_eq_u32 s27, 0
    s_cselect_b32 s77, s77, {SLE - 4*SLOT}
    s_cselect_b32 s57, 1, 0
    s_add_u32 s31, s31, s77
    s_mov_b32 s46, 60000
    s_mov_b32 s47, 0x00020000
    s_waitcnt lgkmcnt(0)
    s_add_u32 s32, s22, s76
    s_addc_u32 s33, s23, 0
    global_load_dwordx4 v[2:5], v{TID16}, s[32:33]
    global_load_dwordx4 v[6:9], v{TID16}, s[22:23]
    s_add_u32 s52, s4, s71
    s_addc_u32 s53, s5, 0
    s_mov_b32 s44, s6
    s_mov_b32 s45, s7
    buffer_load_dwordx4 v39, s[52:55], 0 offen lds
    s_cmp_gt_u32 s24, 9
    s_cbranch_scc1 L2_spec
    L2_batch:
    @st a
    v_mov_b64 v[{VZ}:{VZ+1}], 0
    v_mov_b64 v[{VZ+2}:{VZ+3}], 0
    v_lshrrev_b32 v1, 1, v{TID16}
    """)
    for i in range(4):
        A(f"ds_write_b128 v{TID16}, v[{VZ}:{VZ+3}] offset:{12288*i}")
    A(f"""
    v_cmp_eq_u32 vcc, {CNT + 160 - 49152}, v1
    v_mov_b32 v44, 0
    v_mov_b32 v45, 0x1000000
    v_lshlrev_b32 v30, 4, v{LANE}
    v_cndmask_b32 v45, 0, v45, vcc
    v_cmp_gt_u32 vcc, {CNT + 256 - 49152}, v1
    s_mul_i32 s78, s24, 5120
    s_add_u32 m0, s78, {TAB}
    s_mov_b64 exec, vcc
    ds_write_b64 v1, v[44:45] offset:49152
    s_mov_b64 exec, -1
    """)
    srd(A, 48, 22, 23, 4 * 32768, add=PK_OFF)
    A(f"""
    s_waitcnt lgkmcnt(0)
    @st b
    s_barrier
    @st c
    """)
    tabn = [0]
    def tab():
        i = tabn[0]; tabn[0] += 1
        if i < 4:
            A(f"buffer_load_dwordx4 v30, s[44:47], s78 offen offset:{1024*i} lds")
        else:
            A(f"""
            s_add_u32 s78, s78, 4096
            s_min_u32 s78, s78, {58*1024}
            s_add_u32 m0, s78, {TAB}
            v_add_u32 v31, s78, v30
            buffer_load_dwordx4 v31, s[44:47], 0 offen lds
            """)
    def gload(lo, hi, lbl):
        A(f"""
        s_cmp_eq_u32 s57, 0
        s_cbranch_scc1 {lbl}
        s_lshl_b32 s80, s24, 15
        s_add_u32 s80, s80, 8192
        s_add_u32 s84, s80, 16384
        """)
        for k in range(lo, hi):
            A(f"buffer_load_dwordx4 v[{GW+4*k}:{GW+4*k+3}], v30, s[48:51], s80 offen offset:{1024*k}")
            A(f"buffer_load_dwordx4 v[{GW+16+4*k}:{GW+16+4*k+3}], v30, s[48:51], s84 offen offset:{1024*k}")
        if hi == 4:
            A(f"""
            s_sub_u32 s80, s3, 1
            v_add_u32 v1, s80, v{LANE}
            v_mul_u32_u24 v1, 6, v1
            v_mov_b64 v[{NSV}:{NSV+1}], 0
            v_mov_b32 v{NSV+2}, 0
            buffer_load_short_d16_hi v{NSV}, v1, s[44:47], 0 offen
            buffer_load_short_d16_hi v{NSV+1}, v1, s[44:47], 0 offen offset:2
            buffer_load_short_d16_hi v{NSV+2}, v1, s[44:47], 0 offen offset:4
            """)
        A(f"{lbl}:")
    KG, JS, JE = 41, 42, 43
    tab()
    A(f"""
    v_and_b32 v32, 31, v{LANE}
    v_lshrrev_b32 v{KG}, 5, v{LANE}
    v_lshlrev_b32 v33, 3, v{KG}
    v_sub_u32 v32, v32, v33
    v_and_b32 v33, 1, v32
    v_lshlrev_b32 v33, 4, v33
    v_mov_b32 v{V1B}, 0x3f80
    v_lshlrev_b32 v33, v33, v{V1B}
    v_ashrrev_i32 v32, 1, v32
    """)
    for h in range(2):
        for r in range(4):
            A(f"v_cmp_eq_u32 s[{60+2*r}:{61+2*r}], {r + 8*h}, v32")
        for r in range(4):
            A(f"v_cndmask_b32 v{ID+4*h+r}, 0, v33, s[{60+2*r}:{61+2*r}]")
    tab()
    A(f"""
    v_mov_b32 v{V16}, 16
    v_and_b32 v32, 7, v{LANE}
    v_xor_b32 v33, v32, v{KG}
    v_lshlrev_b32 v{LC}, 4, v33
    v_lshlrev_b32 v{LC+1}, 4, v33
    v_bfe_u32 v34, v{LANE}, 3, 2
    v_lshl_add_u32 v35, v32, 2, v34
    v_xor_b32 v36, 1, v{KG}
    v_mul_u32_u24 v{VX}, {OH}, v36
    v_lshl_add_u32 v{VX}, v35, 4, v{VX}
    v_lshrrev_b32 v36, 3, v35
    v_mul_u32_u24 v36, 1056, v36
    v_and_b32 v35, 7, v35
    v_lshl_add_u32 v36, v35, 7, v36
    v_and_b32 v33, 1, v33
    v_lshlrev_b32 v33, 4, v33
    v_add3_u32 v{VA}, v36, v33, s31
    v_lshrrev_b32 v{VL}, 3, v{LANE}
    v_lshlrev_b32 v{VL}, 4, v{VL}
    v_and_b32 v32, 3, v{LANE}
    v_bfe_u32 v33, v{LANE}, 4, 1
    v_lshl_add_u32 v{JS}, v33, 2, v32
    v_bfe_u32 v{JE}, v{LANE}, 2, 2
    v_lshl_add_u32 v34, v{KG}, 2, v{JE}
    v_lshl_add_u32 v{VSC}, v34, 6, 8
    """)
    tab()
    gload(0, 2, "L2_g1")
    A(f"""
    v_lshlrev_b32 v{J4}, 2, v{JS}
    v_sub_u32 v{CJ}, 28, v{J4}
    v_sub_u32 v{CK}, 7, v{JE}
    v_lshlrev_b32 v{CK}, 8, v{CK}
    v_mov_b32 v{MK}, 0xfffff800
    s_lshl_b32 s80, s25, 1
    v_add_u32 v32, 3, v{JE}
    v_sub_u32 v32, v32, v{KG}
    v_and_b32 v32, 3, v32
    v_xor_b32 v32, s80, v32
    v_lshl_add_u32 v32, v{JE}, 2, v32
    v_lshlrev_b32 v32, 6, v32
    v_lshl_add_u32 v{B1}, v{JS}, 3, v32
    v_add_u32 v{B2}, 1024, v{B1}
    s_mov_b32 exec_lo, 0
    v_mov_b32 v{MK}, 0
    v_add_u32 v{B1}, {WR - 512}, v{B1}
    v_mov_b32 v{B2}, {ZA}
    s_mov_b32 exec_hi, 0x00ff00ff
    v_mov_b32 v{B1}, {ZA}
    s_mov_b64 exec, -1
    v_lshlrev_b32 v29, 2, v{LANE}
    s_sub_u32 s72, 23, s24
    s_lshl_b32 s72, s72, 10
    v_add_u32 v28, s72, v30
    v_mov_b64 v[44:45], 0
    v_mov_b64 v[46:47], 0
    v_mov_b64 v[48:49], 0
    """)
    tab()
    A(f"""
    s_add_u32 s76, s2, 1
    s_lshl_b32 s76, s76, 8
    s_movk_i32 s77, 256
    s_mov_b32 s81, 0x0c04010c
    s_mov_b32 s82, 0x0c05010c
    s_mov_b32 s83, 0x0c06010c
    s_mov_b32 s79, 0xffffff
    s_lshl_b32 s85, s25, 7
    s_add_u32 s85, s85, {BT_OFF - 4096}
    v_and_b32 v32, 15, v{LANE}
    v_lshrrev_b32 v33, 4, v{LANE}
    v_xor_b32 v34, v32, v33
    v_lshlrev_b32 v34, 4, v34
    v_lshl_add_u32 v50, v32, 8, v34
    v_and_b32 v34, 3, v{LANE}
    v_xor_b32 v34, s24, v34
    v_lshlrev_b32 v34, 2, v34
    v_add_lshl_u32 v34, v34, v33, 4
    v_lshl_add_u32 v27, v32, 8, v34
    """)
    srd(A, 40, 22, 23, 2560000 + 4096 - 128, add="s85")
    A(f"""
    @stamp 2
    s_waitcnt vmcnt(8)
    s_cmp_lg_u32 s57, 0
    s_cbranch_scc1 L2_recw
    s_waitcnt vmcnt(4)
    L2_recw:
    @stamp 3
    """)
    def p1(js):
        for j in js:
            A(f"v_and_b32 v{RA+j}, 0xfc, v{RD[j]}")
            A(f"v_mov_b32 v{RK+j}, 0")
        for j in js:
            A(f"s_mov_b64 exec, {mask(j)}")
            A(f"ds_add_rtn_u32 v{RK+j}, v{RA+j}, v{V16} offset:{CNT}")
        A("s_mov_b64 exec, -1")
    def pL(js):
        for j in js:
            A(f"v_perm_b32 v{RL+j}, v{RH[j]}, v{RD[j]}, s{SEL[j]}")
    for j in range(3):
        A(f"v_cmp_ne_u32 {mask(j)}, 0, v{RD[j]}")
    p1(range(3))
    A(f"""
    v_xor_b32 v7, s76, v7
    v_xor_b32 v9, s76, v9
    v_cmp_gt_u32 {mask(3)}, s77, v7
    v_cmp_gt_u32 {mask(4)}, s77, v9
    v_cmp_lt_u32 vcc, s79, v5
    """)
    pL(range(3))
    A(f"""
    s_or_b64 s[84:85], {mask(3)}, {mask(4)}
    s_cselect_b32 s90, 1, 0
    s_or_b64 s[84:85], s[84:85], vcc
    s_cbranch_scc1 L2_ov1
    L2_ov1_done:
    """)
    tab()
    gload(2, 4, "L2_g2")
    A(f"""
    v_mov_b32 v31, v27
    s_mov_b32 m0, s31
    s_mov_b32 s84, 4096
    s_mov_b32 s85, {4096-1056}
    s_mov_b32 s86, {4096-2112}
    s_mov_b32 s87, {4096-3168}
    s_mov_b32 s88, 512
    s_mov_b32 s89, 512
    s_cmp_lg_u32 s57, 0
    s_waitcnt lgkmcnt(0)
    s_barrier
    @stamp 4
    ds_read_b32 v{EXC}, v29 offset:{CNT}
    s_cbranch_scc1 L2_secG
    """)
    def ixrd(reg, t):
        A(f"ds_read2_b32 v[{IX}:{IX+1}], v{reg} offset0:{128*t} offset1:{128*t+32}")
        A(f"ds_read2_b32 v[{IX+2}:{IX+3}], v{reg} offset0:{128*t+64} offset1:{128*t+96}")
    def ixadd():
        A(f"v_lshl_add_u64 v[{IX}:{IX+1}], v[{IX}:{IX+1}], 0, v[{LC}:{LC+1}]")
        A(f"v_lshl_add_u64 v[{IX+2}:{IX+3}], v[{IX+2}:{IX+3}], 0, v[{LC}:{LC+1}]")
    def dma():
        for i in range(4):
            A(f"buffer_load_dwordx4 v{IX+i}, s[40:43], s{84+i} offen offset:{1056*i} {os.environ.get('BTLD','').replace('_',' ')} lds")
    def p2(js, base):
        A(f"s_waitcnt lgkmcnt(0)")
        for n, j in enumerate(js):
            A(f"s_mov_b64 exec, {mask(j)}")
            A(f"v_add_u32 v{RK+j}, v{RK+j}, v{RA+j}")
            A(f"ds_write2_b32 v{RK+j}, v{RL+j}, v{RD[j]} offset0:0 offset1:1")
        A("s_mov_b64 exec, -1")
    class D: pass
    DS = []
    for k in range(2):
        d = D(); d.pos = TID16 if k == 0 else 28
        d.e = 2 + 2 * k; d.ta = 6 + 2 * k; d.a = 7 + 2 * k; d.P = 44 + 3 * k; d.N = 10 + 4 * k; d.m = mask(k)
        DS.append(d)
    OOL = []

    def section(G):
        sx = "G" if G else ""
        ex = []
        if G:
            for nt in range(3):
                for k in range(4):
                    for ab in range(2):
                        d = GD[2*nt+ab]
                        ex.append(mf16(d, GW+16*ab+4*k, GH[nt][k], d if k else None))
        def X(n=1):
            for _ in range(n):
                if ex: A(ex.pop(0))
        def d_rd(d):
            A(f"v_mad_u32_u24 v{d.ta}, v{d.e}, 3, s79")
            A(f"v_lshrrev_b32 v{d.ta}, 7, v{d.ta}")
            A(f"v_and_b32 v{d.a}, 0xfc, v{d.e+1}")
            X()
            for c in range(3):
                A(f"ds_read_u16_d16_hi v{d.P+c}, v{d.ta} offset:{2*c}")
            X()
            A(f"ds_read2st64_b32 v[{d.N}:{d.N+1}], v{d.a} offset0:{NS//256+1} offset1:{NS//256+2}")
            A(f"ds_read_b32 v{d.N+2}, v{d.a} offset:{NS+768}")
        def d_ad(d):
            A(f"v_cmp_ne_u32 {d.m}, 0, v{d.e+1}")
            A(f"v_bfe_u32 v{d.ta}, v{d.e+1}, 1, 4")
            A(f"v_add_u32 v{d.ta}, v{d.ta}, v{d.pos}")
            A(f"v_lshl_add_u32 v{d.a}, v{d.a}, 5, v{d.pos}")
        def d_math(d):
            for c in range(3):
                A(f"v_sub_f32 v{d.N+c}, v{d.N+c}, v{d.P+c}")
            A(f"v_cvt_pk_bf16_f32 v{d.e}, 1.0, v{d.N}")
            A(f"v_cvt_pk_bf16_f32 v{d.e+1}, v{d.N+1}, v{d.N+2}")
            A(f"v_dot2_f32_bf16 v{d.N}, v{d.e}, v{d.e}, -1.0")
            A(f"v_dot2_f32_bf16 v{d.N}, v{d.e+1}, v{d.e+1}, v{d.N}")
            A(f"s_mov_b64 exec, {d.m}")
            A(f"ds_write_b16 v{d.ta}, v{V1B} offset:{OH}")
            A(f"ds_write_b64 v{d.a}, v[{d.e}:{d.e+1}] offset:8")
            A(f"v_mul_f32 v{d.N}, {NLOG2E}, v{d.N}")
            A(f"v_cvt_pk_bf16_f32 v{d.N}, v{d.N}, v{d.N}")
            A(f"ds_write_b16 v{d.pos}, v{d.N} offset:4")
            A("s_mov_b64 exec, -1")
        if G:
            A("L2_secG:")
            for k in range(4):
                if k: A(f"v_xor_b32 v51, {64*k}, v50")
                for nt in range(3):
                    h = GH[nt][k]
                    A(f"ds_read_b128 v[{h}:{h+3}], v{51 if k else 50} offset:{AL+4096*nt}")
        A(f"""
        s_waitcnt lgkmcnt({12 if G else 0})
        v_add_u32_dpp v{INC}, v{EXC}, v{EXC} row_shr:1 row_mask:0xf bank_mask:0xf bound_ctrl:0
        v_add_u32_dpp v{INC}, v{INC}, v{INC} row_shr:2 row_mask:0xf bank_mask:0xf bound_ctrl:0
        v_add_u32_dpp v{INC}, v{INC}, v{INC} row_shr:4 row_mask:0xf bank_mask:0xf bound_ctrl:0
        v_add_u32_dpp v{INC}, v{INC}, v{INC} row_shr:8 row_mask:0xf bank_mask:0xf bound_ctrl:0
        v_add_u32_dpp v{INC}, v{INC}, v{INC} row_bcast:15 row_mask:0xa bank_mask:0xf
        v_add_u32_dpp v{INC}, v{INC}, v{INC} row_bcast:31 row_mask:0xc bank_mask:0xf
        v_sub_u32 v{EXC}, v{INC}, v{EXC}
        """)
        for j in range(3):
            A(f"ds_bpermute_b32 v{RA+j}, v{RA+j}, v{EXC}")
        A(f"""
        v_readlane_b32 s80, v{INC}, 40
        v_readlane_b32 s81, v{INC}, 16
        v_readlane_b32 s82, v{INC}, 24
        s_cmp_gt_u32 s80, {CAPT*512}
        s_cbranch_scc1 L2_goslow
        s_add_u32 s83, s80, 1023
        s_lshr_b32 s83, s83, 10
        s_lshl_b32 s83, s83, 9
        s_add_u32 s79, s80, 511
        s_andn2_b32 s79, s79, 511
        s_cmp_eq_u32 s26, 0
        s_cselect_b32 s76, 0, s83
        s_cselect_b32 s77, s83, s79
        v_cmp_ge_u32 vcc, s76, v{INC}
        s_min_u32 s78, s83, s80
        s_cmp_lt_u32 s82, s78
        s_cselect_b32 s73, 1, s29
        s_cmp_gt_u32 s81, s83
        s_cselect_b32 s73, 1, s73
        {"s_mov_b32 s73, 1" if "fixed" in XF_ else ""}
        s_min_u32 s78, s77, s80
        s_bcnt1_i32_b64 s28, vcc
        s_add_u32 s79, s28, 7
        s_cmp_lg_u32 s73, 0
        v_readlane_b32 s81, v{INC}, s79
        s_cbranch_scc1 L2_fixed{sx}
        s_andn2_b32 s82, s81, 511
        s_min_u32 s82, s82, s77
        s_cmp_eq_u32 s27, 1
        s_cselect_b32 s94, s76, s82
        L2_fixed_done{sx}:
        """)
        p2(range(3), 2)
        A(f"""
        s_cmp_lg_u32 s90, 0
        s_cbranch_scc1 L2_ov2{sx}
        L2_ov2_done{sx}:
        v_add_u32 v27, s94, v{VL}
        s_mov_b32 s79, {TAB*128}
        """)
        if G:
            A(f"""
            s_waitcnt vmcnt(0)
            ds_write2st64_b32 v29, v{NSV}, v{NSV+1} offset0:{NS//256+1} offset1:{NS//256+2}
            ds_write_b32 v29, v{NSV+2} offset:{NS+768}
            """)
            X(int(os.environ.get("GPRE", "4")))
        A(f"""
        @stamp 5
        s_waitcnt vmcnt(0) lgkmcnt(0)
        s_barrier
        @stamp 6
        """)
        if not G: ixrd(27, 0)
        A(f"ds_read_b64 v[2:3], v{TID16}")
        A(f"ds_read_b64 v[4:5], v28")
        if not G:
            A(f"""
            s_cmp_eq_u32 s27, 0
            s_cbranch_scc1 L2_late0
            s_waitcnt lgkmcnt(2)
            """)
            ixadd()
            dma()
            A("L2_late0:")
        A("@st d1")
        X(4)
        A("s_waitcnt lgkmcnt(1)")
        d_rd(DS[0])
        X(1)
        A(f"""
        s_cmp_ge_u32 s72, s80
        s_cbranch_scc1 L2_nod1{sx}
        s_waitcnt lgkmcnt(5)
        """)
        sv = ex[:]; ex.clear()
        d_rd(DS[1])
        ex.extend(sv)
        A(f"L2_nod1{sx}:")
        A("@st d2")
        A(f"v_cmp_ge_u32 vcc, s82, v{INC}")
        X(1)
        d_ad(DS[0])
        X(len(ex) - 6)
        A(f"""
        s_cmp_lg_u32 s73, 0
        s_cbranch_scc1 L2_chdone{sx}
        s_bcnt1_i32_b64 s83, vcc
        s_add_u32 s79, s83, 7
        v_readlane_b32 s64, v{INC}, s79
        s_andn2_b32 s65, s64, 511
        s_min_u32 s65, s65, s77
        v_cmp_ge_u32 vcc, s65, v{INC}
        s_mov_b32 s66, s82
        s_mov_b32 s67, s65
        s_bcnt1_i32_b64 s68, vcc
        s_add_u32 s79, s68, 7
        v_readlane_b32 s69, v{INC}, s79
        s_cmp_lt_u32 s69, s78
        s_cbranch_scc1 L2_chfix{sx}
        L2_chsel{sx}:
        s_cmp_eq_u32 s27, 1
        s_cselect_b32 s95, s66, s67
        s_cselect_b32 s28, s28, s83
        s_cmp_eq_u32 s27, 0
        s_cselect_b32 s94, s65, s94
        s_cselect_b32 s95, s77, s95
        s_cselect_b32 s28, s68, s28
        L2_chdone{sx}:
        @st d3
        """)
        X(2)
        A(f"""
        s_min_u32 s58, s95, s80
        s_sub_u32 s95, s95, s94
        s_lshr_b32 s95, s95, 9
        {"s_min_u32 s95, s95, 64" if "clamp" in XF_ else ""}
        s_lshl_b32 s79, s28, 2
        s_movk_i32 s81, -32
        v_add_u32 v{VL}, s94, v{VL}
        v_add_u32 v23, s79, v{CJ}
        """)
        X(2)
        A(f"""
        v_and_or_b32 v23, v23, s81, v{J4}
        v_min_u32 v23, 164, v23
        """)
        X(2)
        assert not ex
        A(f"""
        s_waitcnt lgkmcnt(0)
        ds_bpermute_b32 v{VLO}, v23, v{EXC}
        ds_bpermute_b32 v{VHI}, v23, v{INC}
        s_cmp_lg_u32 s27, 0
        s_cselect_b32 s79, 512, 0
        v_add_u32 v27, s79, v{VL}
        """)
        ixrd(27, 0)
        A("@st d4")
        d_math(DS[0])
        A("@st d5")
        if G:
            A(f"s_mov_b32 s64, {NLOG2E}")
            A(f"s_mov_b32 s65, {NLOG2E}")
            for nt in range(3):
                for ab in range(2):
                    d = GD[2*nt+ab]
                    A(f"v_pk_mul_f32 v[{d}:{d+1}], v[{d}:{d+1}], s[64:65]")
                    A(f"v_pk_mul_f32 v[{d+2}:{d+3}], v[{d+2}:{d+3}], s[64:65]")
                o = 32 + 4 * nt
                for ab in range(2):
                    d = GD[2*nt+ab]
                    A(f"v_cvt_pk_bf16_f32 v{o+2*ab}, v{d}, v{d+1}")
                    A(f"v_cvt_pk_bf16_f32 v{o+2*ab+1}, v{d+2}, v{d+3}")
                A(f"ds_write_b128 v31, v[{o}:{o+3}] offset:{AL+4096*nt}")
        A(f"""
        s_cmp_ge_u32 s72, s80
        s_cbranch_scc1 L2_nod2
        """)
        d_ad(DS[1])
        d_math(DS[1])
        if G: A("s_branch L2_nod2")
        def ool():
            A(f"""
            L2_fixed{sx}:
            s_add_u32 s79, s27, 2
            s_sub_u32 s82, s27, 1
            s_cmp_eq_u32 s27, 0
            s_cselect_b32 s79, s79, s82
            s_mul_i32 s82, s26, 3
            s_add_u32 s79, s79, s82
            s_lshl_b32 s79, s79, 3
            s_add_u32 s28, s79, 1
            s_add_u32 s82, s79, 8
            v_readlane_b32 s94, v{INC}, s79
            v_readlane_b32 s95, v{INC}, s82
            s_min_u32 s95, s95, s80
            s_cmp_eq_u32 s94, s95
            s_cselect_b32 s82, 0, 511
            s_add_u32 s95, s95, s82
            s_andn2_b32 s94, s94, 511
            s_andn2_b32 s95, s95, 511
            s_branch L2_fixed_done{sx}
            L2_ov2{sx}:
            """)
            for j in (3, 4):
                A(f"ds_bpermute_b32 v{RA+j}, v{RA+j}, v{EXC}")
            p2((3, 4), 1)
            A(f"""
            s_branch L2_ov2_done{sx}
            L2_chfix{sx}:
            s_add_u32 s67, s64, 511
            s_andn2_b32 s67, s67, 511
            s_min_u32 s67, s67, s77
            s_add_u32 s68, s83, 8
            s_min_u32 s68, s68, 41
            s_add_u32 s79, s68, 7
            v_readlane_b32 s69, v{INC}, s79
            s_cmp_ge_u32 s69, s78
            s_cbranch_scc1 L2_chsel{sx}
            s_add_u32 s66, s81, 511
            s_andn2_b32 s66, s66, 511
            s_min_u32 s66, s66, s77
            s_add_u32 s83, s28, 8
            s_min_u32 s83, s83, 41
            s_add_u32 s79, s83, 7
            v_readlane_b32 s64, v{INC}, s79
            s_andn2_b32 s65, s64, 511
            s_min_u32 s65, s65, s77
            s_add_u32 s67, s64, 511
            s_andn2_b32 s67, s67, 511
            s_min_u32 s67, s67, s77
            s_add_u32 s68, s83, 8
            s_min_u32 s68, s68, 41
            s_branch L2_chsel{sx}
            """)
        OOL.append(ool)
    section(False)
    A(f"""
    L2_nod2:
    @st d6
    s_mov_b32 s57, 0
    s_lshl_b32 s79, s28, 8
    s_add_u32 s79, s79, {AL0}
    s_sub_u32 s78, s79, 1024
    v_add_u32 v25, s79, v{CK}
    v_add_u32 v26, s78, v{CK}
    v_add_u32 v{VX}, s94, v{VX}
    v_lshlrev_b32 v22, 5, v23
    v_and_or_b32 v25, v25, v{MK}, v{B1}
    v_and_or_b32 v26, v26, v{MK}, v{B2}
    v_add3_u32 v{VSC}, v{VSC}, v22, s94
    v_xor_b32 v27, 64, v25
    v_xor_b32 v28, 64, v26
    s_cmp_gt_u32 s29, 1
    s_cbranch_scc1 L2_noz
    """)
    assert ZA & 64 == 0
    A(mf32(AC0, VZ, VZ, None))
    A(mf32(AC1, VZ, VZ, None))
    A("L2_noz:")
    A(f"""
    s_mov_b32 s64, 0x3e803e80
    s_mov_b32 s65, 0x3e803e80
    v_mov_b64 v[{ON}:{ON+1}], s[64:65]
    v_mov_b64 v[{ON+2}:{ON+3}], s[64:65]
    v_add_u32 v29, {MB}, v{TID16}
    s_movk_i32 s78, -56
    s_movk_i32 s79, 72
    s_waitcnt lgkmcnt(0)
    """)
    A(mf32(PB, VZ, VZ, None))
    ixadd()
    A(f"""
    @st d7
    s_cmp_lg_u32 s27, 0
    s_barrier
    s_cbranch_scc1 L2_w1
    """)
    dma()
    ixrd(VL, 1)
    A(f"""
    L2_w1:
    @stamp 7
    ds_read_b64_tr_b16 v[{EXT}:{EXT+1}], v25
    ds_read_b64_tr_b16 v[{EXT+2}:{EXT+3}], v26
    ds_read_b128 v[{XF}:{XF+3}], v{VX}
    ds_read_b64_tr_b16 v[{EXT+4}:{EXT+5}], v27
    ds_read_b64_tr_b16 v[{EXT+6}:{EXT+7}], v28
    ds_write_b128 v29, v[{VZ}:{VZ+3}]
    s_mov_b64 exec, 1
    ds_add_u32 v{VZ}, v{V16} offset:{FLG}
    s_mov_b64 exec, -1
    """)
    A(mf32(E1, VZ, VZ, None))
    A(f"""
    v_cmp_le_u32 s[60:61], s94, v{VLO}
    v_cmp_ge_u32 s[62:63], s58, v{VHI}
    v_cmp_gt_u32 s[64:65], s58, v{VLO}
    v_cmp_lt_u32 s[66:67], s94, v{VHI}
    v_add_u32 v{VHI}, -16, v{VHI}
    v_and_b32 v{VLO}, 0xffffffc0, v{VLO}
    v_and_b32 v{VHI}, 0xffffffc0, v{VHI}
    v_add3_u32 v{VLO}, v{VLO}, v22, s78
    v_add3_u32 v{VHI}, v{VHI}, v22, s79
    v_add_u32 v{VL}, 1024, v{VL}
    s_mov_b32 s75, s95
    s_cmp_eq_u32 s27, 0
    s_cselect_b32 s80, {os.environ.get("PR0", "0")}, 4
    s_cbranch_scc0 L2_noix
    s_waitcnt lgkmcnt(0)
    """)
    ixadd()
    A(f"""
    L2_noix:
    s_waitcnt vmcnt(0) lgkmcnt(0)
    s_cmp_eq_u32 s95, 0
    {"s_memrealtime s[100:101]" if DIAG else ""}
    s_cbranch_scc1 L2_done
    @stamp 8
    """)
    def a_reads():
        for i in range(4):
            A(f"ds_read_b128 v[{AF+4*i}:{AF+4*i+3}], v{VA} offset:{32*i}")
    a_reads()
    if "noprio" not in XF_:
        A("s_setprio 3")
    A(f"""
    s_waitcnt lgkmcnt(0)
    s_cmp_lt_u32 s95, 2
    s_cbranch_scc1 L2_nodma1
    """)
    dma()
    A("L2_nodma1:")
    A(mf32(T0, AF, ID, None))
    A(mf32(T0, AF+4, ID+4, T0))
    A(mf32(T0, XF, EXT, T0))
    A(mf32(T1, AF+8, ID, None))
    A("s_nop 10")
    A.ins.append(I(".p2align 6"))
    A("L2_loop:")
    def run(ops, ins):
        for i, v in enumerate(ops):
            for x in ins.get(i, []):
                if callable(x): x()
                else: A(x)
            A(v)
    ex = lambda e, t: [f"v_exp_f32 v{e+i}, v{t+i}" for i in range(16)]
    rc = lambda e: [f"v_rcp_f32 v{e+i}, v{e+i}" for i in range(16)]
    mu = lambda e, t: [f"v_pk_mul_f32 v[{e+2*i}:{e+2*i+1}], v[{e+2*i}:{e+2*i+1}], v[{t+2*i}:{t+2*i+1}]" for i in range(8)]
    run(ex(E0, T0), {0: [mf32(T1, AF+12, ID+4, T1)], 4: [mf32(T1, XF, EXT+4, T1)]})
    run(ex(E1, T1), {0: ["s_waitcnt lgkmcnt(0)", mf32(AC1, E1+8, SF, AC1)], 4: [mf32(E0, ON, ON, E0)], 8: [mf32(AC1, E1+12, SF+4, AC1)],
                     12: [f"ds_read_b128 v[{XF}:{XF+3}], v{VX} offset:512", lambda: ixrd(VL, 0)]})
    run(rc(E0), {0: [mf32(AC0, PB, SF, AC0)], 2: ([] if "nowait" in XF_ else ["s_waitcnt vmcnt(0)"]) + [a_reads], 4: [mf32(E1, ON, ON, E1)], 8: [mf32(AC0, PB+4, SF+4, AC0)],
                 12: ["s_waitcnt lgkmcnt(4)", ixadd]})
    run(mu(E0, T0), {})
    def dma_next():
        if "nodma" in XF_: return
        A("s_cmp_lt_u32 s95, 3")
        A("s_cbranch_scc1 L2_nodma2")
        dma()
        A("L2_nodma2:")
    run([f"v_cvt_pk_bf16_f32 v{PB+i}, v{E0+2*i}, v{E0+2*i+1}" for i in range(8)],
        {0: ["s_waitcnt lgkmcnt(0)", mf32(T0, AF, ID, None)], 2: [dma_next]})
    run(rc(E1), {0: [mf32(T0, AF+4, ID+4, T0)], 4: [mf32(T0, XF, EXT, T0)],
                 8: [f"v_med3_i32 v{SF+6}, v{VSC}, v{VLO}, v{VHI}"] +
                    [f"ds_read_b64_tr_b16 v[{SF+2*r}:{SF+2*r+1}], v{SF+6} offset:{16*r}" for r in range(4)] +
                    [f"v_lshl_add_u64 v[{VX}:{VX+1}], v[{VX}:{VX+1}], 0, s[88:89]", f"v_add_u32 v{VL}, s88, v{VL}"]})
    run(mu(E1, T1), {})
    def prio():
        if "noprio" in XF_: return
        A(f"""
        s_cmp_gt_u32 s95, s80
        s_cbranch_scc1 L2_prd
        s_setprio 2
        s_cmp_eq_u32 s95, 4
        s_cbranch_scc1 L2_prd
        s_setprio 1
        s_cmp_eq_u32 s95, 3
        s_cbranch_scc1 L2_prd
        s_setprio 0
        L2_prd:
        """)
    run([f"v_cvt_pk_bf16_f32 v{E1+8+i}, v{E1+2*i}, v{E1+2*i+1}" for i in range(7, -1, -1)],
        {0: [mf32(T1, AF+8, ID, None)], 2: [prio], 6: ["s_sub_u32 s95, s95, 1", "s_cmp_lg_u32 s95, 0"]})
    A("s_cbranch_scc1 L2_loop")
    if "noprio" not in XF_:
        A("s_setprio 3")
    A("s_waitcnt lgkmcnt(0)")
    A(mf32(AC0, PB, SF, AC0))
    A(mf32(AC1, E1+8, SF, AC1))
    A(mf32(AC0, PB+4, SF+4, AC0))
    A(mf32(AC1, E1+12, SF+4, AC1))
    A("L2_done:")
    A("@stamp 9")
    A(f"""
    s_cmp_lg_u32 s29, 0
    s_cbranch_scc1 L2_slownext
    L2_flush:
    v_lshrrev_b32 v{VKG}, 5, v{LANE}
    s_lshl_b32 s72, s25, 7
    s_add_u32 s76, s72, {WX}
    v_lshl_add_u32 v{VJS}, v{VKG}, 3, s76
    v_mov_b32 v{ID+5}, 0
    """)
    for i in range(4):
        A(f"ds_read2_b64 v[{AF+4*i}:{AF+4*i+3}], v{VJS} offset0:{4*i} offset1:{4*i+2}")
    A(f"""
    L2_flw:
    ds_read_b32 v{ID+6}, v{ID+5} offset:{FLG}
    s_and_b32 s56, s60, s62
    s_and_b32 s58, s64, s66
    s_andn2_b32 s58, s58, s56
    s_cmp_lg_u32 s73, 0
    s_cselect_b32 s56, -1, s56
    s_cselect_b32 s58, 0, s58
    s_and_b32 s56, s56, 0x000f000f
    s_and_b32 s58, s58, 0x000f000f
    s_mul_i32 s56, s56, 0x1001
    s_mul_i32 s58, s58, 0x1001
    s_bfe_u32 s68, s56, 0x8000c
    s_bfe_u32 s78, s58, 0x8000c
    s_bitreplicate_b64_b32 s[68:69], s68
    s_bitreplicate_b64_b32 s[78:79], s78
    s_bitreplicate_b64_b32 s[68:69], s68
    s_bitreplicate_b64_b32 s[78:79], s78
    s_and_b32 s56, s68, 0x11111111
    s_and_b32 s58, s78, 0x11111111
    v_bfe_u32 v{ID}, v{LANE}, 2, 3
    v_subrev_u32 v{ID}, s28, v{ID}
    v_and_b32 v{ID}, 7, v{ID}
    v_add_u32 v{ID+4}, s28, v{ID}
    v_min_u32 v{ID}, 41, v{ID+4}
    s_lshl_b32 s76, s24, 7
    s_add_u32 s76, s76, {PP}
    v_and_b32 v{ID+1}, 31, v{LANE}
    v_lshl_add_u32 v{ID+1}, v{ID+1}, 2, s76
    s_add_u32 s77, s72, {MB - MSTR}
    v_mul_u32_u24 v{ID}, {MSTR}, v{ID}
    v_lshl_add_u32 v{ID}, v{VKG}, 3, v{ID}
    v_add_u32 v{ID}, s77, v{ID}
    s_waitcnt lgkmcnt(0)
    v_cmp_ne_u32 vcc, {12*16}, v{ID+6}
    s_cbranch_vccnz L2_flw
    """)
    for i in range(16):
        A(f"v_cvt_pk_bf16_f32 v{AC0+i}, v{AC0+2*i}, v{AC0+2*i+1}")
    A("s_mov_b32 exec_lo, s56")
    A("s_mov_b32 exec_hi, s56")
    for i in range(8):
        A(f"ds_write_b64 v{ID}, v[{AC0+2*i}:{AC0+2*i+1}] offset:{16*i}")
    A("s_mov_b32 exec_lo, s58")
    A("s_mov_b32 exec_hi, s58")
    A("s_cbranch_execz L2_nosh")
    for i in range(16):
        A(f"ds_pk_add_bf16 v{ID}, v{AC0+i} offset:{16*(i//2) + 4*(i&1)}")
    A("L2_nosh:")
    A("s_mov_b64 exec, -1")
    for i in range(16):
        A(f"v_dot2_f32_bf16 v{ID+2}, v{AC0+i}, v{AF+i}, {f'v{ID+2}' if i else '0'}")
    A(f"""
    v_mov_b32 v{ID+3}, v{ID+2}
    v_permlane32_swap_b32 v{ID+3}, v{ID+2}
    s_mov_b32 exec_lo, 0xeeeeeeee
    s_mov_b32 exec_hi, 0
    v_add_f32 v{ID+4}, v{ID+3}, v{ID+2}
    s_mov_b32 exec_lo, -1
    ds_write_b32 v{ID+1}, v{ID+4}
    s_mov_b64 exec, -1
    s_cmp_lg_u32 s27, 0
    s_cbranch_scc1 L2_other
    """)
    W, H, D = 0, 64, 112
    A(f"""
    s_setprio 0
    v_lshlrev_b32 v140, 4, v{LANE}
    s_lshl_b32 s72, s24, 15
    v_and_b32 v141, 15, v{LANE}
    v_lshrrev_b32 v142, 4, v{LANE}
    v_lshlrev_b32 v143, 4, v142
    v_lshl_add_u32 v144, v141, 8, v143
    v_add_u32 v146, 4096, v144
    v_add_u32 v147, 8192, v144
    """)
    for k in range(4):
        A(f"s_add_u32 s{78+k}, s24, {k}")
        A(f"s_and_b32 s{78+k}, s{78+k}, 3")
        A(f"s_lshl_b32 s{82+k}, s{78+k}, 6")
        A(f"s_lshl_b32 s{78+k}, s{78+k}, 10")
        A(f"s_add_u32 s{78+k}, s{78+k}, s72")
        A(f"s_add_u32 s{86+k}, s{78+k}, 16384")
    A("s_waitcnt lgkmcnt(0)")
    for k in range(4):
        A(f"buffer_load_dwordx4 v[{W+4*k}:{W+4*k+3}], v140, s[48:51], s{78+k} offen")
        A(f"buffer_load_dwordx4 v[{W+32+4*k}:{W+32+4*k+3}], v140, s[48:51], s{86+k} offen")
        for nt in range(3):
            A(f"buffer_load_dwordx4 v[{H+16*nt+4*k}:{H+16*nt+4*k+3}], v{(144,146,147)[nt]}, s[52:55], s{82+k} offen")
    A("s_add_u32 s76, s72, 4096")
    A("s_add_u32 s77, s72, 20480")
    for k in range(4):
        A(f"buffer_load_dwordx4 v[{W+16+4*k}:{W+16+4*k+3}], v140, s[48:51], s76 offen offset:{1024*k}")
        A(f"buffer_load_dwordx4 v[{W+48+4*k}:{W+48+4*k+3}], v140, s[48:51], s77 offen offset:{1024*k}")
    A(f"""
    v_mov_b32 v145, {MB}
    v_mul_u32_u24 v148, {MSTR}, v141
    v_add3_u32 v145, v145, v148, v143
    s_add_u32 s60, s20, s71
    s_addc_u32 s61, s21, 0
    s_mov_b32 s62, s54
    s_mov_b32 s63, 0x00020000
    """)
    for k in range(4):
        A(f"s_waitcnt vmcnt({8 + 5*(3-k)})")
        for nt in range(3):
            for ab in range(2):
                d = D + 8 * nt + 4 * ab
                A(mf16(d, W+32*ab+4*k, H+16*nt+4*k, d if k else None))
    MF = [0, 32, 148]
    A(f"""
    s_mov_b32 s78, {NLOG2E}
    s_mov_b32 s79, {NLOG2E}
    s_mov_b32 s80, {NLN2}
    s_mov_b32 s81, {NLN2}
    """)
    for i in range(12):
        A(f"v_pk_mul_f32 v[{D+2*i}:{D+2*i+1}], v[{D+2*i}:{D+2*i+1}], s[78:79]")
    for nt in range(3):
        h = H + 16 * nt
        for i in range(4):
            A(f"v_lshlrev_b32 v{h+4+2*i}, 16, v{h+i}")
            A(f"v_and_b32 v{h+5+2*i}, 0xffff0000, v{h+i}")
    A(f"""
    s_waitcnt vmcnt(0) lgkmcnt(0)
    @stamp 10
    s_barrier
    @stamp 11
    """)
    for nt in range(3):
        for k in range(4):
            A(f"ds_read_b128 v[{MF[nt]+4*k}:{MF[nt]+4*k+3}], v145 offset:{nt*16*MSTR + 64*k}")
    def mm(nt):
        o = []
        for k in range(4):
            o.append(f"s_waitcnt lgkmcnt({11 - 4*nt - k})")
            for ab in range(2):
                d = D + 8 * nt + 4 * ab
                o.append(mf16(d, W+16+32*ab+4*k, MF[nt]+4*k, d))
        return o
    def fin(nt):
        d = D + 8 * nt; tmp = MF[nt]; h = H + 16 * nt
        o = []
        o += [f"v_exp_f32 v{tmp+i}, v{d+i}" for i in range(8)]
        o += [f"v_pk_add_f32 v[{tmp+2*i}:{tmp+2*i+1}], v[{tmp+2*i}:{tmp+2*i+1}], 1.0 op_sel_hi:[1,0]" for i in range(4)]
        o += [f"v_rcp_f32 v{tmp+i}, v{tmp+i}" for i in range(8)]
        o += [f"v_pk_mul_f32 v[{tmp+2*i}:{tmp+2*i+1}], v[{tmp+2*i}:{tmp+2*i+1}], v[{d+2*i}:{d+2*i+1}]" for i in range(4)]
        o += [f"v_pk_fma_f32 v[{tmp+2*i}:{tmp+2*i+1}], v[{tmp+2*i}:{tmp+2*i+1}], s[80:81], v[{h+4+2*i}:{h+5+2*i}]" for i in range(4)]
        o += [f"v_cvt_pk_bf16_f32 v{h+i}, v{tmp+2*i}, v{tmp+2*i+1}" for i in range(4)]
        o += [f"buffer_store_dwordx4 v[{h}:{h+3}], v{(144,146,147)[nt]}, s[60:63], s82 offen"]
        return o
    for x in mm(0): A(x)
    for x in mm(1): A(x)
    f0 = fin(0); m2 = mm(2)
    for i, x in enumerate(f0):
        A(x)
        if i < 8 and i % 2 == 1:
            for y in m2[3*(i//2):3*(i//2)+3]: A(y)
    for x in fin(1): A(x)
    for x in fin(2): A(x)
    A(f"""
    @wait
    @stamp 13
    @stamp 14 real
    @dump
    s_endpgm
    L2_other:
    s_mul_i32 s72, s3, 6
    s_add_u32 s73, s72, 2560000
    s_add_u32 s60, s20, s73
    s_addc_u32 s61, s21, 0
    s_mul_i32 s62, s70, 6
    s_mov_b32 s63, 0x00020000
    v_mul_u32_u24 v2, 6, v{LANE}
    v_add_u32 v1, 1, v{LANE}
    v_and_b32 v4, 7, v1
    v_lshlrev_b32 v4, 4, v4
    v_add_u32 v4, {PP}, v4
    v_lshlrev_b32 v5, 2, v1
    v_mov_b64 v[16:17], 0
    v_mov_b64 v[18:19], 0
    s_mov_b32 s76, {NLN2}
    s_waitcnt lgkmcnt(0)
    @stamp 10
    s_barrier
    @stamp 11
    @stamp 13
    @stamp 14 real
    @dump 8
    s_mov_b64 exec, -1
    {"s_cmp_eq_u32 s24, 11" if DIAG else ""}
    {"s_cbranch_scc1 L2_diag" if DIAG else ""}
    s_cmp_lg_u32 s24, 4
    s_cbranch_scc1 L2_exit
    """)
    for w in range(12):
        A(f"ds_read_b128 v[{20+4*w}:{23+4*w}], v4 offset:{128*w}")
    A(f"ds_read2st64_b32 v[12:13], v5 offset0:{NS//256+1} offset1:{NS//256+2}")
    A(f"ds_read_b32 v14, v5 offset:{NS+768}")
    for w in range(12):
        A(f"s_waitcnt lgkmcnt({13-w})")
        A(f"v_cmp_eq_u32 vcc, v{20+4*w}, v1")
        A(f"s_mov_b64 exec, vcc")
        A(f"v_add_f32 v17, v17, v{21+4*w}")
        A(f"v_pk_add_f32 v[18:19], v[18:19], v[{22+4*w}:{23+4*w}]")
        A(f"s_mov_b64 exec, -1")
    A(f"""
    s_waitcnt lgkmcnt(0)
    v_fma_f32 v12, v17, s76, v12
    v_fma_f32 v13, v18, s76, v13
    v_fma_f32 v14, v19, s76, v14
    v_cvt_pk_bf16_f32 v12, v12, v13
    v_cvt_pk_bf16_f32 v14, v14, v14
    buffer_store_short v12, v2, s[60:63], 0 offen
    buffer_store_short_d16_hi v12, v2, s[60:63], 0 offen offset:2
    buffer_store_short v14, v2, s[60:63], 0 offen offset:4
    L2_exit:
    s_endpgm
    """)
    if DIAG:
        A(f"""
        L2_diag:
        s_memrealtime s[92:93]
        s_add_u32 s76, s22, {DBG1_OFF}
        s_addc_u32 s77, s23, 0
        s_load_dwordx2 s[78:79], s[76:77], 0
        s_waitcnt lgkmcnt(0)
        """)
        A({"k2": "s_sub_u32 s80, s92, s98", "k1k2": "s_sub_u32 s80, s98, s78", "k1": "s_sub_u32 s80, s79, s78", "pro": "s_sub_u32 s80, s100, s98", "0": "s_mov_b32 s80, 0"}[DIAG])
        A(f"""
        s_min_u32 s80, s80, 4000
        s_add_u32 s80, s80, 150
        s_mov_b32 s81, 0
        L2_dl:
        s_sleep 2
        s_memrealtime s[94:95]
        s_add_u32 s81, s81, 1
        s_waitcnt lgkmcnt(0)
        s_sub_u32 s82, s94, s92
        s_cmp_gt_u32 s81, 2000
        s_cbranch_scc1 L2_exit2
        s_cmp_lt_u32 s82, s80
        s_cbranch_scc1 L2_dl
        L2_exit2:
        s_endpgm
        """)
    section(True)
    for f in OOL: f()
    A(f"""
    L2_spec:
    v_lshlrev_b32 v30, 4, v{LANE}
    s_cmp_eq_u32 s24, 11
    s_cbranch_scc1 L2_spec2
    s_add_u32 s32, s14, 65536
    s_addc_u32 s33, s15, 0
    s_mov_b32 m0, {WR}
    v_and_b32 v31, 16, v{LANE}
    v_lshlrev_b32 v31, 2, v31
    v_xor_b32 v31, v31, v30
    s_mov_b32 exec_hi, 0
    global_load_lds_dwordx4 v31, s[32:33]
    s_mov_b64 exec, -1
    s_branch L2_batch
    L2_spec2:
    s_mov_b32 m0, {WX}
    s_mov_b64 exec, 0xffff
    global_load_lds_dwordx4 v30, s[16:17]
    s_mov_b64 exec, -1
    s_branch L2_batch
    L2_ov1:
    s_cbranch_vccz L2_nolost
    v_mov_b32 v1, 0x100000
    ds_write_b32 v{VZ}, v1 offset:{CNT}
    L2_nolost:
    """)
    p1((3, 4)); pL((3, 4))
    A("s_branch L2_ov1_done")
    A(f"""
    L2_slownext:
    s_mov_b32 s29, 1
    s_add_u32 s30, s30, 768
    s_cmp_ge_u32 s30, 320000
    s_cbranch_scc1 L2_flush
    L2_goslow:
    s_add_u32 s29, s29, 1
    s_waitcnt vmcnt(0) lgkmcnt(0)
    s_barrier
    v_lshrrev_b32 v1, 4, v{TID16}
    v_add_u32 v1, s30, v1
    v_min_u32 v3, 319999, v1
    v_lshlrev_b32 v4, 2, v3
    v_lshlrev_b32 v3, 1, v3
    global_load_dword v7, v4, s[12:13]
    global_load_dword v8, v4, s[10:11]
    global_load_ushort v6, v3, s[8:9]
    s_mov_b32 s73, 320000
    s_mov_b32 s76, 0x05040100
    v_cmp_gt_u32 s[60:61], s73, v1
    s_waitcnt vmcnt(0)
    v_subrev_u32 v7, s3, v7
    v_cmp_gt_u32 s[62:63], s70, v7
    v_lshl_add_u32 v7, v8, 6, v7
    v_lshl_add_u32 v7, v7, 2, 4
    v_lshlrev_b32 v6, 16, v6
    v_mul_f32 v6, {NLOG2E}, v6
    v_cvt_pk_bf16_f32 v6, v6, v6
    v_perm_b32 v7, v6, v7, s76
    s_and_b64 s[60:61], s[60:61], s[62:63]
    v_cndmask_b32 v2, 0, v7, s[60:61]
    v_lshrrev_b32 v5, 8, v8
    v_mov_b64 v[6:7], 0
    v_mov_b64 v[8:9], 0
    v_mov_b32 v3, 0
    v_mov_b32 v4, 0
    s_branch L2_batch
    """)
    A.check_all_edges()
    return A
```

```python
import sys, os
from asmlib import Asm, I

NAME = "gather_scatter__cheap_equivariant_egnn__graph"
NB = 256
NCH = 96
CHE = 3336
ROWB = (NCH + 1) * 128
OV_OFF = 0
REC_OFF = NCH * 128
BT_OFF = int(os.environ.get('BTO', '12')) << 20
PK_OFF = 16 << 20
WS_SIZE = 32 << 20
NGEMM = 157
NWG1 = NCH + NGEMM + 3
LDS1 = 65536
NLOG2E = 0xBFB8AA3B
NLN2 = 0xBF317218
CSTR = 144
KOV = 256 * CSTR
KDUM = KOV + 128
KCNT = KDUM + 128
OVCAP = 16

def mf32(d, a, b, c):
    cs = "0" if c is None else f"v[{c}:{c+15}]"
    return f"v_mfma_f32_32x32x16_bf16 v[{d}:{d+15}], v[{a}:{a+3}], v[{b}:{b+3}], {cs}"
def mf16(d, a, b, c):
    cs = "0" if c is None else f"v[{c}:{c+3}]"
    return f"v_mfma_f32_16x16x32_bf16 v[{d}:{d+3}], v[{a}:{a+3}], v[{b}:{b+3}], {cs}"

def srd(A, r, lo, hi, size, add=None):
    if add is None:
        A(f"s_mov_b32 s{r}, s{lo}")
        A(f"s_mov_b32 s{r+1}, s{hi}")
    else:
        A(f"s_add_u32 s{r}, s{lo}, {add}")
        A(f"s_addc_u32 s{r+1}, s{hi}, 0")
    A(f"s_mov_b32 s{r+2}, {size}")
    A(f"s_mov_b32 s{r+3}, 0x00020000")

STAMP = bool(os.environ.get("STAMP"))
XF_ = set(os.environ.get("X", "").split(","))
DBG1_OFF = 20 << 20
DBG2_OFF = 24 << 20
def stamp(A, reg, real=False):
    if not STAMP: return
    A(f"s_mem{'real' if real else ''}time s[96:97]")
    A("s_waitcnt lgkmcnt(0)")
    A(f"s_mov_b32 s{reg}, s96")
def dump(A, regs, wslo, off, wreg, vt=0):
    if not STAMP: return
    A(f"s_mov_b64 exec, -1")
    A(f"v_mov_b32 v{vt}, 0")
    for i, r in enumerate(regs):
        A(f"v_writelane_b32 v{vt}, s{r}, {i}")
    A(f"v_mbcnt_lo_u32_b32 v{vt+1}, -1, 0")
    A(f"s_lshl_b32 s96, s2, 4")
    A(f"s_add_u32 s96, s96, s{wreg}")
    A(f"s_lshl_b32 s96, s96, 6")
    A(f"s_add_u32 s96, s96, {off}")
    A(f"v_lshl_add_u32 v{vt+1}, v{vt+1}, 2, s96")
    A(f"s_mov_b64 exec, 0xffff")
    A(f"global_store_dword v{vt+1}, v{vt}, s[{wslo}:{wslo+1}]")

SSET = os.environ.get("SSET")
def mk_macro(regs, wslo, off, wreg, named=False):
    def macro(A, t):
        if t[0] == "stamp":
            i = int(t[1])
            if named and SSET and 2 <= i <= 11:
                names = SSET.split(",")
                if str(i) in names: stamp(A, regs[2 + names.index(str(i))])
                return
            stamp(A, regs[i], len(t) > 2)
        elif t[0] == "st":
            if SSET and t[1] in SSET.split(","): stamp(A, regs[2 + SSET.split(",").index(t[1])])
        elif t[0] == "wait":
            if STAMP: A("s_waitcnt vmcnt(0)")
        elif t[0] == "dump": dump(A, regs, wslo, off, wreg, int(t[1]) if len(t) > 1 else 0)
    return macro

DIAG = os.environ.get("DIAG")
DG1 = """s_memrealtime s[82:83]
    s_waitcnt lgkmcnt(0)
    v_mov_b32 v60, s80
    v_mov_b32 v61, s82
    s_lshl_b32 s84, s2, 3
    v_mov_b32 v62, s84
    v_add_u32 v62, %d, v62
    global_store_dwordx2 v62, v[60:61], s[20:21]""" % DBG1_OFF if DIAG else ""
def gen_k1():
    A = Asm()
    A.macro = mk_macro(list(range(60, 72)), 20, DBG1_OFF, 23)
    PF = os.environ.get("PFL", "nt").replace("_", " ")
    NR = 2 if "prec" in XF_ else 0
    A("k1_kernel:")
    A(f"""
    s_load_dwordx16 s[4:19], s[0:1], 0
    s_load_dwordx2 s[20:21], s[0:1], 80
    s_cmp_ge_u32 s2, {NWG1}
    s_cbranch_scc1 L1_exit
    {"s_sleep " + os.environ["K1SL"] if "K1SL" in os.environ else ""}
    {"s_memrealtime s[80:81]" if DIAG else ""}
    @stamp 0 real
    @stamp 1
    v_lshrrev_b32 v2, 6, v0
    v_lshlrev_b32 v1, 4, v0
    s_cmp_ge_u32 s2, {NCH}
    v_readfirstlane_b32 s23, v2
    s_cbranch_scc1 L1_gemm
    s_mul_i32 s3, s2, {CHE*4}
    s_add_u32 s22, s3, {CHE*4}
    s_min_u32 s22, s22, 1280000
    v_add_u32 v3, s3, v1
    v_lshrrev_b32 v5, 1, v3
    v_cmp_gt_u32 s[36:37], s22, v3
    v_mov_b64 v[24:25], 0
    v_mov_b64 v[26:27], 0
    s_waitcnt lgkmcnt(0)
    s_mov_b64 exec, s[36:37]
    s_cbranch_execz L1_nold
    global_load_dwordx4 v[8:11], v3, s[12:13]
    global_load_dwordx4 v[14:17], v3, s[10:11]
    global_load_dwordx2 v[20:21], v5, s[8:9]
    L1_nold:
    s_mov_b64 exec, -1
    v_lshlrev_b32 v2, 3, v0
    ds_write_b64 v2, v[24:25] offset:32768
    ds_write_b128 v1, v[24:27]
    ds_write_b128 v1, v[24:27] offset:16384
    v_mov_b32 v23, 33
    """)
    assert KCNT + 257 * 4 <= 32768 + 8192
    srd(A, 24, 20, 21, REC_OFF + NB * ROWB)
    A(f"""
    v_lshrrev_b32 v28, 3, v0
    v_and_b32 v29, 7, v0
    v_lshlrev_b32 v29, 4, v29
    v_mul_u32_u24 v30, {CSTR}, v28
    v_mul_u32_u24 v28, {ROWB}, v28
    v_add_u32 v28, v28, v29
    v_add_u32 v30, v30, v29
    s_lshl_b32 s31, s2, 7
    s_add_u32 s32, s31, {REC_OFF}
    s_add_u32 s33, s32, {128*ROWB}
    s_mov_b32 s38, 429497
    s_movk_i32 s39, 625
    s_mov_b32 s40, {NLOG2E}
    s_mov_b32 s41, {NLOG2E}
    s_mov_b32 s42, 0x05040100
    s_mov_b32 s43, 0x07060100
    s_movk_i32 s44, {24*33}
    {f"buffer_store_dwordx4 v[24:27], v28, s[24:27], s32 offen {PF}" if NR else ""}
    {f"buffer_store_dwordx4 v[24:27], v28, s[24:27], s33 offen {PF}" if NR else ""}
    s_waitcnt lgkmcnt(0)
    s_barrier
    @stamp 2
    s_mov_b64 exec, s[36:37]
    s_cbranch_execz L1_skip
    s_waitcnt vmcnt({2+NR})
    @stamp 3
    """)
    for j in range(4):
        A(f"v_mul_u32_u24 v{32+j}, s38, v{8+j}")
        A(f"v_lshrrev_b32 v{32+j}, 24, v{32+j}")
        A(f"v_lshlrev_b32 v{38+j}, 2, v{32+j}")
        A(f"ds_add_rtn_u32 v{44+j}, v{38+j}, v23 offset:{KCNT}")
    for j in range(4):
        A(f"v_mad_u32_u24 v{48+j}, v{32+j}, s39, -1")
        A(f"v_ashrrev_i32 v{48+j}, 4, v{48+j}")
        A(f"v_sub_u32 v{8+j}, v{8+j}, v{48+j}")
        A(f"v_mul_u32_u24 v{32+j}, {CSTR}, v{32+j}")
    A(f"s_waitcnt vmcnt({1+NR})")
    for j in range(4):
        A(f"v_lshlrev_b32 v{14+j}, 6, v{14+j}")
        A(f"v_add_lshl_u32 v{8+j}, v{14+j}, v{8+j}, 2")
    A(f"""
    s_waitcnt vmcnt({NR})
    v_lshlrev_b32 v48, 16, v20
    v_and_b32 v49, 0xffff0000, v20
    v_lshlrev_b32 v50, 16, v21
    v_and_b32 v51, 0xffff0000, v21
    v_pk_mul_f32 v[48:49], v[48:49], s[40:41]
    v_pk_mul_f32 v[50:51], v[50:51], s[40:41]
    v_cvt_pk_bf16_f32 v20, v48, v49
    v_cvt_pk_bf16_f32 v21, v50, v51
    """)
    for j in range(4):
        A(f"v_perm_b32 v{14+j}, v{20+j//2}, v{8+j}, s{42+(j&1)}")
    A(f"""
    s_waitcnt lgkmcnt(0)
    v_max3_u32 v50, v44, v45, v46
    v_max_u32 v50, v50, v47
    v_cmp_le_u32 vcc, s44, v50
    s_cbranch_vccnz L1_ovf
    L1_ovf_done:
    """)
    for j in range(4):
        A(f"v_bfe_u32 v{48+j}, v{44+j}, 3, 5")
        A(f"v_bfe_u32 v{44+j}, v{44+j}, 3, 2")
        A(f"v_lshl_add_u32 v{48+j}, v{48+j}, 2, v{32+j}")
        A(f"v_mad_i32_i24 v{44+j}, v{44+j}, -3, v{48+j}")
        A(f"ds_write_b32 v{48+j}, v{14+j}")
        A(f"ds_write_b8_d16_hi v{44+j}, v{8+j} offset:12")
    A(f"""
    L1_skip:
    s_mov_b64 exec, -1
    s_waitcnt lgkmcnt(0)
    @stamp 4
    s_barrier
    @stamp 5
    ds_read_b128 v[32:35], v30
    ds_read_b128 v[36:39], v30 offset:{128*CSTR}
    s_cmp_lg_u32 s23, 15
    s_cbranch_scc1 L1_noov
    {DG1}
    ds_read_b128 v[40:43], v29 offset:{KOV}
    s_mov_b64 exec, 0xff
    s_waitcnt lgkmcnt(0)
    buffer_store_dwordx4 v[40:43], v29, s[24:27], s31 offen
    s_mov_b64 exec, -1
    L1_noov:
    s_waitcnt lgkmcnt(1)
    buffer_store_dwordx4 v[32:35], v28, s[24:27], s32 offen
    s_waitcnt lgkmcnt(0)
    buffer_store_dwordx4 v[36:39], v28, s[24:27], s33 offen
    {"s_add_u32 s24, s24, 0x400000" if "rec2" in XF_ else ""}
    {"s_addc_u32 s25, s25, 0" if "rec2" in XF_ else ""}
    {"buffer_store_dwordx4 v[32:35], v28, s[24:27], s32 offen" if "rec2" in XF_ else ""}
    {"buffer_store_dwordx4 v[36:39], v28, s[24:27], s33 offen" if "rec2" in XF_ else ""}
    @stamp 6
    @wait
    @stamp 7
    @stamp 8 real
    @dump
    L1_exit:
    s_endpgm
    L1_ovf:
    v_mov_b32 v51, {256*4}
    v_mov_b32 v52, 8
    """)
    for j in range(4):
        A(f"""
        v_cmp_le_u32 vcc, s44, v{44+j}
        s_cbranch_vccz L1_ovf{j}
        s_mov_b64 exec, vcc
        ds_add_rtn_u32 v{44+j}, v51, v52 offset:{KCNT}
        v_lshrrev_b32 v50, 16, v{8+j}
        v_add_u32 v53, 4, v{38+j}
        v_lshl_or_b32 v50, v53, 6, v50
        v_mov_b32 v53, v{32+j}
        v_mov_b32 v{32+j}, {KDUM}
        s_waitcnt lgkmcnt(0)
        v_cmp_le_u32 vcc, {8*OVCAP}, v{44+j}
        v_min_u32 v{44+j}, {8*OVCAP}, v{44+j}
        v_add_u32 v{44+j}, {KOV}, v{44+j}
        ds_write2_b32 v{44+j}, v{14+j}, v50 offset0:0 offset1:1
        v_mov_b32 v{44+j}, 0
        s_cbranch_vccz L1_ovg{j}
        s_mov_b64 exec, vcc
        ds_write_b8 v53, v23 offset:15
        L1_ovg{j}:
        s_mov_b64 exec, s[36:37]
        L1_ovf{j}:
        """)
    A("s_branch L1_ovf_done")
    A(f"""
    L1_gemm:
    s_sub_u32 s3, s2, {NCH}
    v_and_b32 v2, 63, v0
    v_lshrrev_b32 v3, 4, v2
    v_and_b32 v4, 15, v2
    v_lshlrev_b32 v5, 2, v3
    v_xor_b32 v5, v5, v4
    v_lshlrev_b32 v5, 4, v5
    v_lshl_add_u32 v5, v3, 8, v5
    s_lshl_b32 s41, s23, 11
    s_lshl_b32 s42, s23, 2
    v_add_u32 v6, s42, v3
    v_xor_b32 v7, v6, v4
    v_and_b32 v7, 15, v7
    v_lshlrev_b32 v7, 4, v7
    v_lshl_add_u32 v6, v6, 8, v7
    s_lshl_b32 s46, s3, 14
    v_add_u32 v6, s46, v6
    s_lshl_b32 s45, s23, 10
    s_sub_u32 s22, s3, {NGEMM}
    s_and_b32 s40, s22, 1
    s_cmp_lt_u32 s3, {NGEMM}
    s_cselect_b32 s40, 1, s40
    s_lshl_b32 s40, s40, 15
    s_cmp_lt_u32 s22, 2
    s_waitcnt lgkmcnt(0)
    s_cselect_b32 s24, s18, s14
    s_cselect_b32 s25, s19, s15
    s_add_u32 s24, s24, s40
    s_addc_u32 s25, s25, 0
    s_mov_b32 m0, s45
    s_mov_b32 s26, 32768
    s_mov_b32 s27, 0x00020000
    """)
    srd(A, 28, 4, 5, 2560000)
    A(f"""
    buffer_load_dwordx4 v6, s[28:31], 0 offen lds
    s_add_u32 m0, s41, 16384
    s_and_b32 s43, s23, 3
    buffer_load_dwordx4 v5, s[24:27], s41 offen lds
    buffer_load_dwordx4 v5, s[24:27], s41 offen offset:1024 lds
    """)
    srd(A, 32, 20, 21, 16 << 20, add=BT_OFF)
    PF = os.environ.get("PFL", "nt").replace("_", " ")
    NP = 1 if "pbt" in XF_ else 0
    if NP: A(f"buffer_store_dwordx4 v[2:5], v6, s[32:35], 0 offen {PF}")
    A(f"""
    s_cmp_gt_u32 s23, 7
    s_cbranch_scc1 L1_help
    s_bfe_u32 s44, s23, 0x10002
    v_bfe_u32 v8, v2, 2, 2
    v_and_b32 v9, 3, v2
    v_xor_b32 v10, s43, v8
    v_lshlrev_b32 v10, 6, v10
    v_lshl_add_u32 v10, v8, 8, v10
    s_cmp_ge_u32 s3, {NGEMM}
    s_cbranch_scc1 L1_pack
    v_lshrrev_b32 v11, 5, v2
    v_lshl_add_u32 v10, v11, 11, v10
    v_bfe_u32 v12, v2, 4, 1
    v_and_b32 v13, 31, v2
    s_lshl_b32 s47, s44, 5
    v_add_u32 v14, s47, v13
    v_xor_b32 v15, v11, v14
    v_and_b32 v15, 15, v15
    v_lshlrev_b32 v15, 4, v15
    v_lshl_add_u32 v15, v14, 8, v15
    s_mov_b32 s48, {NLOG2E}
    s_mov_b32 s49, {NLOG2E}
    v_and_b32 v18, 1, v9
    v_lshrrev_b32 v19, 1, v9
    v_lshl_add_u32 v10, v18, 5, v10
    v_lshl_add_u32 v10, v12, 4, v10
    v_lshl_add_u32 v10, v19, 3, v10
    s_lshl_b32 s50, s43, 2
    v_lshl_add_u32 v17, v11, 1, s50
    v_xor_b32 v17, v17, v14
    v_and_b32 v17, 15, v17
    v_lshlrev_b32 v17, 4, v17
    v_lshl_add_u32 v17, v14, 8, v17
    v_xor_b32 v18, 16, v17
    """)
    for s in range(1, 8):
        A(f"v_xor_b32 v{20+s}, {s*32}, v15")
    A(f"""
    @stamp 2
    s_waitcnt vmcnt({NP})
    @stamp 3
    s_barrier
    @stamp 5
    """)
    for s in range(8):
        A(f"ds_read_b128 v[{64+4*s}:{64+4*s+3}], v{20+s if s else 15}")
        A(f"ds_read_b64_tr_b16 v[{32+4*s}:{32+4*s+1}], v10 offset:{16384+16*s*256}")
        A(f"ds_read_b64_tr_b16 v[{32+4*s+2}:{32+4*s+3}], v10 offset:{16384+(16*s+4)*256}")
    for s in range(8):
        A(f"s_waitcnt lgkmcnt({min(15, 3*(7-s))})")
        A(mf32(96, 32+4*s, 64+4*s, 96 if s else None))
    for i in range(8):
        A(f"v_pk_mul_f32 v[{96+2*i}:{96+2*i+1}], v[{96+2*i}:{96+2*i+1}], s[48:49]")
    for i in range(8):
        A(f"v_cvt_pk_bf16_f32 v{96+i}, v{96+2*i}, v{96+2*i+1}")
    A(f"""
    ds_write_b128 v17, v[96:99] offset:49152
    ds_write_b128 v18, v[100:103] offset:49152
    s_waitcnt lgkmcnt(0)
    @stamp 4
    L1_gst:
    s_barrier
    ds_read_b128 v[96:99], v1 offset:49152
    s_waitcnt lgkmcnt(0)
    buffer_store_dwordx4 v[96:99], v6, s[32:35], 0 offen {os.environ.get('BTST','').replace('_',' ')}
    @stamp 6
    @wait
    @stamp 7
    @stamp 8 real
    @dump
    s_endpgm
    L1_help:
    s_cmp_ge_u32 s3, {NGEMM}
    s_waitcnt vmcnt({NP})
    s_barrier
    s_cbranch_scc0 L1_gst
    s_endpgm
    L1_pack:
    v_lshl_add_u32 v10, v3, 11, v10
    v_lshl_add_u32 v10, v9, 4, v10
    s_lshl_b32 s50, s44, 3
    v_add_u32 v10, s50, v10
    s_lshl_b32 s51, s43, 15
    s_lshl_b32 s52, s44, 14
    s_add_u32 s51, s51, s52
    s_lshl_b32 s52, s22, 12
    s_add_u32 s51, s51, s52
    s_add_u32 s51, s51, {PK_OFF - BT_OFF}
    v_lshlrev_b32 v17, 4, v2
    s_waitcnt vmcnt({NP})
    s_barrier
    """)
    for ks in range(4):
        A(f"ds_read_b64_tr_b16 v[{32+4*ks}:{32+4*ks+1}], v10 offset:{16384+32*ks*256}")
        A(f"ds_read_b64_tr_b16 v[{32+4*ks+2}:{32+4*ks+3}], v10 offset:{16384+(32*ks+4)*256}")
    for ks in range(4):
        A(f"s_waitcnt lgkmcnt({6-2*ks})")
        A(f"buffer_store_dwordx4 v[{32+4*ks}:{32+4*ks+3}], v17, s[32:35], s51 offen offset:{1024*ks}")
    A("s_endpgm")
    A.check_all_edges()
    fl = os.environ.get("K1ST")
    if fl:
        for x in A.ins:
            if x.op.startswith("buffer_store"): x.text += " " + fl.replace("_", " ")
    return A

HEAD = open(f"cdna_kernels/{NAME}.s.ref").read().split("; Override launch")[0]

def kdesc(name, nv):
    return f""".p2align 6
.amdhsa_kernel {name}
  .amdhsa_next_free_vgpr {nv}
  .amdhsa_next_free_sgpr 102
  .amdhsa_accum_offset {nv}
  .amdhsa_group_segment_fixed_size 0
  .amdhsa_kernarg_size 88
  .amdhsa_user_sgpr_count 2
  .amdhsa_user_sgpr_kernarg_segment_ptr 1
  .amdhsa_system_sgpr_workgroup_id_x 1
.end_amdhsa_kernel
"""

def build(kernels):
    s = HEAD
    for (name, A, grid, block, lds, nv) in kernels:
        s += f"; @launch kernel={name} grid=({grid},1,1) block=({block},1,1) lds={lds}\n"
    s += '.amdgcn_target "amdgcn-amd-amdhsa--gfx950"\n.text\n'
    for (name, A, grid, block, lds, nv) in kernels:
        s += f".globl {name}\n.p2align 8\n.type {name},@function\n" + A.text()
    s += '.section .rodata,"a"\n'
    for (name, A, grid, block, lds, nv) in kernels:
        s += kdesc(name, nv)
    return s

if __name__ == "__main__":
    from g2 import gen_k2, LDS2
    k1 = gen_k1(); k2 = gen_k2()
    out = sys.argv[1]
    open(out, "w").write(build([("k1_kernel", k1, NWG1, 1024, LDS1, 112), ("k2_kernel", k2, NB, 768, LDS2, 168)]))
    print("written", out, "nops", k1.nops, k2.nops, "instrs", len(k1.ins), len(k2.ins))
```

```python
from g1 import *

CAPT = 48
C1S = 0
OH = (32 * CAPT + 336) * 16
CNT = OH + CAPT * 512
NS = CNT
AL0 = 55296
assert NS + 768 == AL0 and AL0 % 2048 == 0
AL = AL0 + 256
WR = AL + 48 * 256
WX = WR + 512
SLOT = 4192
SLE = WX + 256
TAB = SLE + 8 * SLOT
LDS2 = TAB + 59 * 1024
assert LDS2 <= 163840
FLG = CNT + 252
ZA = CNT + 176
MB = TAB
MSTR = 272
SLL = MB + 13056
PP = SLL + 4 * SLOT
assert PP + 1536 <= LDS2 and SLL % 16 == 0 and PP % 16 == 0

T0, T1, E0, E1, AC0, AC1, AF, PB, SF, ID, EXT, XF, ON, IX = 0, 16, 32, 48, 64, 80, 96, 112, 120, 128, 136, 144, 148, 152
LC, VX, VSC, VL, VA, VLO, VHI = 156, 158, 159, 160, 161, 162, 163
LANE, VZ = 164, 108
V16, V1B, TID16 = 165, 166, 167
VKG, VJS = 144, 145
CK, MK, B1, B2, CJ, J4 = 144, 145, 146, 147, 0, 127
INC, EXC = 20, 21
NSV = 124
GW = AC0
GD = [96, 100, 104, 112, 116, 120]
GH = [[116, 120, 32, 36], [40, 52, 56, 60], [136, 140, 152, 148]]

def gen_k2():
    A = Asm()
    A.macro = mk_macro([98, 99, 36, 37, 38, 39, 91, 92, 93, 100, 101, 74, 75, 59, 18, 19], 22, DBG2_OFF, 24, True)
    RD = [2, 3, 4, 6, 8]; RH = [5, 5, 5, 7, 9]; SEL = [81, 82, 83, 81, 81]
    RA, RK, RL = 10, 15, 22
    mask = lambda j: f"s[{60+2*j}:{61+2*j}]"
    A("k2_kernel:")
    A(f"""
    s_load_dwordx2 s[22:23], s[0:1], 80
    s_load_dwordx16 s[4:19], s[0:1], 0
    s_load_dwordx2 s[20:21], s[0:1], 64
    s_cmp_ge_u32 s2, {NB}
    s_cbranch_scc1 L2_exit
    {"s_memrealtime s[98:99]" if DIAG else ""}
    @stamp 0 real
    @stamp 1
    v_lshrrev_b32 v1, 6, v0
    v_lshlrev_b32 v{TID16}, 4, v0
    v_readfirstlane_b32 s24, v1
    v_and_b32 v{LANE}, 63, v0
    s_mul_i32 s76, s2, {ROWB}
    s_add_u32 s76, s76, {REC_OFF}
    s_mul_i32 s3, s2, 625
    s_add_u32 s70, s3, {625+15}
    s_add_u32 s3, s3, 15
    s_lshr_b32 s3, s3, 4
    s_lshr_b32 s70, s70, 4
    s_sub_u32 s70, s70, s3
    s_lshl_b32 s71, s3, 8
    s_lshl_b32 s54, s70, 8
    s_mov_b32 s55, 0x00020000
    v_lshrrev_b32 v39, 4, v0
    v_xor_b32 v40, v39, v0
    v_and_b32 v40, 15, v40
    v_lshlrev_b32 v40, 4, v40
    v_lshl_add_u32 v39, v39, 8, v40
    s_mov_b32 s29, 0
    s_mov_b32 s30, 0
    s_lshl_b32 s78, s24, 10
    s_add_u32 m0, s78, {AL}
    s_and_b32 s25, s24, 1
    s_bfe_u32 s26, s24, 0x10001
    s_lshr_b32 s27, s24, 2
    s_mul_i32 s31, s24, {SLOT}
    s_mov_b32 s77, {SLL}
    s_cmp_eq_u32 s27, 0
    s_cselect_b32 s77, s77, {SLE - 4*SLOT}
    s_cselect_b32 s57, 1, 0
    s_add_u32 s31, s31, s77
    s_mov_b32 s46, 60000
    s_mov_b32 s47, 0x00020000
    s_waitcnt lgkmcnt(0)
    s_add_u32 s32, s22, s76
    s_addc_u32 s33, s23, 0
    global_load_dwordx4 v[2:5], v{TID16}, s[32:33]
    global_load_dwordx4 v[6:9], v{TID16}, s[22:23]
    s_add_u32 s52, s4, s71
    s_addc_u32 s53, s5, 0
    s_mov_b32 s44, s6
    s_mov_b32 s45, s7
    buffer_load_dwordx4 v39, s[52:55], 0 offen lds
    s_cmp_gt_u32 s24, 9
    s_cbranch_scc1 L2_spec
    L2_batch:
    @st a
    v_mov_b64 v[{VZ}:{VZ+1}], 0
    v_mov_b64 v[{VZ+2}:{VZ+3}], 0
    v_lshrrev_b32 v1, 1, v{TID16}
    """)
    for i in range(4):
        A(f"ds_write_b128 v{TID16}, v[{VZ}:{VZ+3}] offset:{12288*i}")
    A(f"""
    v_cmp_eq_u32 vcc, {CNT + 160 - 49152}, v1
    v_mov_b32 v44, 0
    v_mov_b32 v45, 0x1000000
    v_lshlrev_b32 v30, 4, v{LANE}
    v_cndmask_b32 v45, 0, v45, vcc
    v_cmp_gt_u32 vcc, {CNT + 256 - 49152}, v1
    s_mul_i32 s78, s24, 5120
    s_add_u32 m0, s78, {TAB}
    s_mov_b64 exec, vcc
    ds_write_b64 v1, v[44:45] offset:49152
    s_mov_b64 exec, -1
    """)
    srd(A, 48, 22, 23, 4 * 32768, add=PK_OFF)
    A(f"""
    s_waitcnt lgkmcnt(0)
    @st b
    s_barrier
    @st c
    """)
    tabn = [0]
    def tab():
        i = tabn[0]; tabn[0] += 1
        if i < 4:
            A(f"buffer_load_dwordx4 v30, s[44:47], s78 offen offset:{1024*i} lds")
        else:
            A(f"""
            s_add_u32 s78, s78, 4096
            s_min_u32 s78, s78, {58*1024}
            s_add_u32 m0, s78, {TAB}
            v_add_u32 v31, s78, v30
            buffer_load_dwordx4 v31, s[44:47], 0 offen lds
            """)
    def gload(lo, hi, lbl):
        A(f"""
        s_cmp_eq_u32 s57, 0
        s_cbranch_scc1 {lbl}
        s_lshl_b32 s80, s24, 15
        s_add_u32 s80, s80, 8192
        s_add_u32 s84, s80, 16384
        """)
        for k in range(lo, hi):
            A(f"buffer_load_dwordx4 v[{GW+4*k}:{GW+4*k+3}], v30, s[48:51], s80 offen offset:{1024*k}")
            A(f"buffer_load_dwordx4 v[{GW+16+4*k}:{GW+16+4*k+3}], v30, s[48:51], s84 offen offset:{1024*k}")
        if hi == 4:
            A(f"""
            s_sub_u32 s80, s3, 1
            v_add_u32 v1, s80, v{LANE}
            v_mul_u32_u24 v1, 6, v1
            v_mov_b64 v[{NSV}:{NSV+1}], 0
            v_mov_b32 v{NSV+2}, 0
            buffer_load_short_d16_hi v{NSV}, v1, s[44:47], 0 offen
            buffer_load_short_d16_hi v{NSV+1}, v1, s[44:47], 0 offen offset:2
            buffer_load_short_d16_hi v{NSV+2}, v1, s[44:47], 0 offen offset:4
            """)
        A(f"{lbl}:")
    KG, JS, JE = 41, 42, 43
    tab()
    A(f"""
    v_and_b32 v32, 31, v{LANE}
    v_lshrrev_b32 v{KG}, 5, v{LANE}
    v_lshlrev_b32 v33, 3, v{KG}
    v_sub_u32 v32, v32, v33
    v_and_b32 v33, 1, v32
    v_lshlrev_b32 v33, 4, v33
    v_mov_b32 v{V1B}, 0x3f80
    v_lshlrev_b32 v33, v33, v{V1B}
    v_ashrrev_i32 v32, 1, v32
    """)
    for h in range(2):
        for r in range(4):
            A(f"v_cmp_eq_u32 s[{60+2*r}:{61+2*r}], {r + 8*h}, v32")
        for r in range(4):
            A(f"v_cndmask_b32 v{ID+4*h+r}, 0, v33, s[{60+2*r}:{61+2*r}]")
    tab()
    A(f"""
    v_mov_b32 v{V16}, 16
    v_and_b32 v32, 7, v{LANE}
    v_xor_b32 v33, v32, v{KG}
    v_lshlrev_b32 v{LC}, 4, v33
    v_lshlrev_b32 v{LC+1}, 4, v33
    v_bfe_u32 v34, v{LANE}, 3, 2
    v_lshl_add_u32 v35, v32, 2, v34
    v_xor_b32 v36, 1, v{KG}
    v_mul_u32_u24 v{VX}, {OH}, v36
    v_lshl_add_u32 v{VX}, v35, 4, v{VX}
    v_lshrrev_b32 v36, 3, v35
    v_mul_u32_u24 v36, 1056, v36
    v_and_b32 v35, 7, v35
    v_lshl_add_u32 v36, v35, 7, v36
    v_and_b32 v33, 1, v33
    v_lshlrev_b32 v33, 4, v33
    v_add3_u32 v{VA}, v36, v33, s31
    v_lshrrev_b32 v{VL}, 3, v{LANE}
    v_lshlrev_b32 v{VL}, 4, v{VL}
    v_and_b32 v32, 3, v{LANE}
    v_bfe_u32 v33, v{LANE}, 4, 1
    v_lshl_add_u32 v{JS}, v33, 2, v32
    v_bfe_u32 v{JE}, v{LANE}, 2, 2
    v_lshl_add_u32 v34, v{KG}, 2, v{JE}
    v_lshl_add_u32 v{VSC}, v34, 6, 8
    """)
    tab()
    gload(0, 2, "L2_g1")
    A(f"""
    v_lshlrev_b32 v{J4}, 2, v{JS}
    v_sub_u32 v{CJ}, 28, v{J4}
    v_sub_u32 v{CK}, 7, v{JE}
    v_lshlrev_b32 v{CK}, 8, v{CK}
    v_mov_b32 v{MK}, 0xfffff800
    s_lshl_b32 s80, s25, 1
    v_add_u32 v32, 3, v{JE}
    v_sub_u32 v32, v32, v{KG}
    v_and_b32 v32, 3, v32
    v_xor_b32 v32, s80, v32
    v_lshl_add_u32 v32, v{JE}, 2, v32
    v_lshlrev_b32 v32, 6, v32
    v_lshl_add_u32 v{B1}, v{JS}, 3, v32
    v_add_u32 v{B2}, 1024, v{B1}
    s_mov_b32 exec_lo, 0
    v_mov_b32 v{MK}, 0
    v_add_u32 v{B1}, {WR - 512}, v{B1}
    v_mov_b32 v{B2}, {ZA}
    s_mov_b32 exec_hi, 0x00ff00ff
    v_mov_b32 v{B1}, {ZA}
    s_mov_b64 exec, -1
    v_lshlrev_b32 v29, 2, v{LANE}
    s_sub_u32 s72, 23, s24
    s_lshl_b32 s72, s72, 10
    v_add_u32 v28, s72, v30
    v_mov_b64 v[44:45], 0
    v_mov_b64 v[46:47], 0
    v_mov_b64 v[48:49], 0
    """)
    tab()
    A(f"""
    s_add_u32 s76, s2, 1
    s_lshl_b32 s76, s76, 8
    s_movk_i32 s77, 256
    s_mov_b32 s81, 0x0c04010c
    s_mov_b32 s82, 0x0c05010c
    s_mov_b32 s83, 0x0c06010c
    s_mov_b32 s79, 0xffffff
    s_lshl_b32 s85, s25, 7
    s_add_u32 s85, s85, {BT_OFF - 4096}
    v_and_b32 v32, 15, v{LANE}
    v_lshrrev_b32 v33, 4, v{LANE}
    v_xor_b32 v34, v32, v33
    v_lshlrev_b32 v34, 4, v34
    v_lshl_add_u32 v50, v32, 8, v34
    v_and_b32 v34, 3, v{LANE}
    v_xor_b32 v34, s24, v34
    v_lshlrev_b32 v34, 2, v34
    v_add_lshl_u32 v34, v34, v33, 4
    v_lshl_add_u32 v27, v32, 8, v34
    """)
    srd(A, 40, 22, 23, 2560000 + 4096 - 128, add="s85")
    A(f"""
    @stamp 2
    s_waitcnt vmcnt(8)
    s_cmp_lg_u32 s57, 0
    s_cbranch_scc1 L2_recw
    s_waitcnt vmcnt(4)
    L2_recw:
    @stamp 3
    """)
    def p1(js):
        for j in js:
            A(f"v_and_b32 v{RA+j}, 0xfc, v{RD[j]}")
            A(f"v_mov_b32 v{RK+j}, 0")
        for j in js:
            A(f"s_mov_b64 exec, {mask(j)}")
            A(f"ds_add_rtn_u32 v{RK+j}, v{RA+j}, v{V16} offset:{CNT}")
        A("s_mov_b64 exec, -1")
    def pL(js):
        for j in js:
            A(f"v_perm_b32 v{RL+j}, v{RH[j]}, v{RD[j]}, s{SEL[j]}")
    for j in range(3):
        A(f"v_cmp_ne_u32 {mask(j)}, 0, v{RD[j]}")
    p1(range(3))
    A(f"""
    v_xor_b32 v7, s76, v7
    v_xor_b32 v9, s76, v9
    v_cmp_gt_u32 {mask(3)}, s77, v7
    v_cmp_gt_u32 {mask(4)}, s77, v9
    v_cmp_lt_u32 vcc, s79, v5
    """)
    pL(range(3))
    A(f"""
    s_or_b64 s[84:85], {mask(3)}, {mask(4)}
    s_cselect_b32 s90, 1, 0
    s_or_b64 s[84:85], s[84:85], vcc
    s_cbranch_scc1 L2_ov1
    L2_ov1_done:
    """)
    tab()
    gload(2, 4, "L2_g2")
    A(f"""
    v_mov_b32 v31, v27
    s_mov_b32 m0, s31
    s_mov_b32 s84, 4096
    s_mov_b32 s85, {4096-1056}
    s_mov_b32 s86, {4096-2112}
    s_mov_b32 s87, {4096-3168}
    s_mov_b32 s88, 512
    s_mov_b32 s89, 512
    s_cmp_lg_u32 s57, 0
    s_waitcnt lgkmcnt(0)
    s_barrier
    @stamp 4
    ds_read_b32 v{EXC}, v29 offset:{CNT}
    s_cbranch_scc1 L2_secG
    """)
    def ixrd(reg, t):
        A(f"ds_read2_b32 v[{IX}:{IX+1}], v{reg} offset0:{128*t} offset1:{128*t+32}")
        A(f"ds_read2_b32 v[{IX+2}:{IX+3}], v{reg} offset0:{128*t+64} offset1:{128*t+96}")
    def ixadd():
        if "no64" in XF_:
            for i in range(4): A(f"v_add_u32 v{IX+i}, v{IX+i}, v{LC}")
            return
        A(f"v_lshl_add_u64 v[{IX}:{IX+1}], v[{IX}:{IX+1}], 0, v[{LC}:{LC+1}]")
        A(f"v_lshl_add_u64 v[{IX+2}:{IX+3}], v[{IX+2}:{IX+3}], 0, v[{LC}:{LC+1}]")
    def dma():
        for i in range(4):
            A(f"buffer_load_dwordx4 v{IX+i}, s[40:43], s{84+i} offen offset:{1056*i} {os.environ.get('BTLD','').replace('_',' ')} lds")
    def p2(js, base):
        A(f"s_waitcnt lgkmcnt(0)")
        for n, j in enumerate(js):
            A(f"s_mov_b64 exec, {mask(j)}")
            A(f"v_add_u32 v{RK+j}, v{RK+j}, v{RA+j}")
            A(f"ds_write2_b32 v{RK+j}, v{RL+j}, v{RD[j]} offset0:0 offset1:1")
        A("s_mov_b64 exec, -1")
    class D: pass
    DS = []
    for k in range(2):
        d = D(); d.pos = TID16 if k == 0 else 28
        d.e = 2 + 2 * k; d.ta = 6 + 2 * k; d.a = 7 + 2 * k; d.P = 44 + 3 * k; d.N = 10 + 4 * k; d.m = mask(k)
        DS.append(d)
    OOL = []

    def section(G):
        sx = "G" if G else ""
        ex = []
        if G:
            for nt in range(3):
                for k in range(4):
                    for ab in range(2):
                        d = GD[2*nt+ab]
                        ex.append(mf16(d, GW+16*ab+4*k, GH[nt][k], d if k else None))
        def X(n=1):
            for _ in range(n):
                if ex: A(ex.pop(0))
        def d_rd(d):
            A(f"v_mad_u32_u24 v{d.ta}, v{d.e}, 3, s79")
            A(f"v_lshrrev_b32 v{d.ta}, 7, v{d.ta}")
            A(f"v_and_b32 v{d.a}, 0xfc, v{d.e+1}")
            X()
            for c in range(3):
                A(f"ds_read_u16_d16_hi v{d.P+c}, v{d.ta} offset:{2*c}")
            X()
            A(f"ds_read2st64_b32 v[{d.N}:{d.N+1}], v{d.a} offset0:{NS//256+1} offset1:{NS//256+2}")
            A(f"ds_read_b32 v{d.N+2}, v{d.a} offset:{NS+768}")
        def d_ad(d):
            A(f"v_cmp_ne_u32 {d.m}, 0, v{d.e+1}")
            A(f"v_bfe_u32 v{d.ta}, v{d.e+1}, 1, 4")
            A(f"v_add_u32 v{d.ta}, v{d.ta}, v{d.pos}")
            A(f"v_lshl_add_u32 v{d.a}, v{d.a}, 5, v{d.pos}")
        def d_math(d):
            for c in range(3):
                A(f"v_sub_f32 v{d.N+c}, v{d.N+c}, v{d.P+c}")
            A(f"v_cvt_pk_bf16_f32 v{d.e}, 1.0, v{d.N}")
            A(f"v_cvt_pk_bf16_f32 v{d.e+1}, v{d.N+1}, v{d.N+2}")
            A(f"v_dot2_f32_bf16 v{d.N}, v{d.e}, v{d.e}, -1.0")
            A(f"v_dot2_f32_bf16 v{d.N}, v{d.e+1}, v{d.e+1}, v{d.N}")
            A(f"s_mov_b64 exec, {d.m}")
            A(f"ds_write_b16 v{d.ta}, v{V1B} offset:{OH}")
            A(f"ds_write_b64 v{d.a}, v[{d.e}:{d.e+1}] offset:8")
            A(f"v_mul_f32 v{d.N}, {NLOG2E}, v{d.N}")
            A(f"v_cvt_pk_bf16_f32 v{d.N}, v{d.N}, v{d.N}")
            A(f"ds_write_b16 v{d.pos}, v{d.N} offset:4")
            A("s_mov_b64 exec, -1")
        if G:
            A("L2_secG:")
            for k in range(4):
                if k: A(f"v_xor_b32 v51, {64*k}, v50")
                for nt in range(3):
                    h = GH[nt][k]
                    A(f"ds_read_b128 v[{h}:{h+3}], v{51 if k else 50} offset:{AL+4096*nt}")
        A(f"""
        s_waitcnt lgkmcnt({12 if G else 0})
        v_add_u32_dpp v{INC}, v{EXC}, v{EXC} row_shr:1 row_mask:0xf bank_mask:0xf bound_ctrl:0
        v_add_u32_dpp v{INC}, v{INC}, v{INC} row_shr:2 row_mask:0xf bank_mask:0xf bound_ctrl:0
        v_add_u32_dpp v{INC}, v{INC}, v{INC} row_shr:4 row_mask:0xf bank_mask:0xf bound_ctrl:0
        v_add_u32_dpp v{INC}, v{INC}, v{INC} row_shr:8 row_mask:0xf bank_mask:0xf bound_ctrl:0
        v_add_u32_dpp v{INC}, v{INC}, v{INC} row_bcast:15 row_mask:0xa bank_mask:0xf
        v_add_u32_dpp v{INC}, v{INC}, v{INC} row_bcast:31 row_mask:0xc bank_mask:0xf
        v_sub_u32 v{EXC}, v{INC}, v{EXC}
        """)
        for j in range(3):
            A(f"ds_bpermute_b32 v{RA+j}, v{RA+j}, v{EXC}")
        A(f"""
        v_readlane_b32 s80, v{INC}, 40
        v_readlane_b32 s81, v{INC}, 16
        v_readlane_b32 s82, v{INC}, 24
        s_cmp_gt_u32 s80, {CAPT*512}
        s_cbranch_scc1 L2_goslow
        s_add_u32 s83, s80, 1023
        s_lshr_b32 s83, s83, 10
        s_lshl_b32 s83, s83, 9
        s_add_u32 s79, s80, 511
        s_andn2_b32 s79, s79, 511
        s_cmp_eq_u32 s26, 0
        s_cselect_b32 s76, 0, s83
        s_cselect_b32 s77, s83, s79
        v_cmp_ge_u32 vcc, s76, v{INC}
        s_min_u32 s78, s83, s80
        s_cmp_lt_u32 s82, s78
        s_cselect_b32 s73, 1, s29
        s_cmp_gt_u32 s81, s83
        s_cselect_b32 s73, 1, s73
        {"s_mov_b32 s73, 1" if "fixed" in XF_ else ""}
        s_min_u32 s78, s77, s80
        s_bcnt1_i32_b64 s28, vcc
        s_add_u32 s79, s28, 7
        s_cmp_lg_u32 s73, 0
        v_readlane_b32 s81, v{INC}, s79
        s_cbranch_scc1 L2_fixed{sx}
        s_andn2_b32 s82, s81, 511
        s_min_u32 s82, s82, s77
        s_cmp_eq_u32 s27, 1
        s_cselect_b32 s94, s76, s82
        L2_fixed_done{sx}:
        """)
        p2(range(3), 2)
        A(f"""
        s_cmp_lg_u32 s90, 0
        s_cbranch_scc1 L2_ov2{sx}
        L2_ov2_done{sx}:
        v_add_u32 v27, s94, v{VL}
        s_mov_b32 s79, {TAB*128}
        """)
        if G:
            A(f"""
            s_waitcnt vmcnt(0)
            ds_write2st64_b32 v29, v{NSV}, v{NSV+1} offset0:{NS//256+1} offset1:{NS//256+2}
            ds_write_b32 v29, v{NSV+2} offset:{NS+768}
            """)
            X(int(os.environ.get("GPRE", "4")))
        A(f"""
        @stamp 5
        s_waitcnt vmcnt(0) lgkmcnt(0)
        s_barrier
        @stamp 6
        """)
        if not G: ixrd(27, 0)
        A(f"ds_read_b64 v[2:3], v{TID16}")
        A(f"ds_read_b64 v[4:5], v28")
        if not G:
            A(f"""
            s_cmp_eq_u32 s27, 0
            s_cbranch_scc1 L2_late0
            s_waitcnt lgkmcnt(2)
            """)
            ixadd()
            dma()
            A("L2_late0:")
        A("@st d1")
        X(4)
        A("s_waitcnt lgkmcnt(1)")
        d_rd(DS[0])
        X(1)
        A(f"""
        s_cmp_ge_u32 s72, s80
        s_cbranch_scc1 L2_nod1{sx}
        s_waitcnt lgkmcnt(5)
        """)
        sv = ex[:]; ex.clear()
        d_rd(DS[1])
        ex.extend(sv)
        A(f"L2_nod1{sx}:")
        A("@st d2")
        A(f"v_cmp_ge_u32 vcc, s82, v{INC}")
        X(1)
        d_ad(DS[0])
        X(len(ex) - 6)
        A(f"""
        s_cmp_lg_u32 s73, 0
        s_cbranch_scc1 L2_chdone{sx}
        s_bcnt1_i32_b64 s83, vcc
        s_add_u32 s79, s83, 7
        v_readlane_b32 s64, v{INC}, s79
        s_andn2_b32 s65, s64, 511
        s_min_u32 s65, s65, s77
        v_cmp_ge_u32 vcc, s65, v{INC}
        s_mov_b32 s66, s82
        s_mov_b32 s67, s65
        s_bcnt1_i32_b64 s68, vcc
        s_add_u32 s79, s68, 7
        v_readlane_b32 s69, v{INC}, s79
        s_cmp_lt_u32 s69, s78
        s_cbranch_scc1 L2_chfix{sx}
        L2_chsel{sx}:
        s_cmp_eq_u32 s27, 1
        s_cselect_b32 s95, s66, s67
        s_cselect_b32 s28, s28, s83
        s_cmp_eq_u32 s27, 0
        s_cselect_b32 s94, s65, s94
        s_cselect_b32 s95, s77, s95
        s_cselect_b32 s28, s68, s28
        L2_chdone{sx}:
        @st d3
        """)
        X(2)
        A(f"""
        s_min_u32 s58, s95, s80
        s_sub_u32 s95, s95, s94
        s_lshr_b32 s95, s95, 9
        {"s_min_u32 s95, s95, 64" if "clamp" in XF_ else ""}
        s_lshl_b32 s79, s28, 2
        s_movk_i32 s81, -32
        v_add_u32 v{VL}, s94, v{VL}
        v_add_u32 v23, s79, v{CJ}
        """)
        X(2)
        A(f"""
        v_and_or_b32 v23, v23, s81, v{J4}
        v_min_u32 v23, 164, v23
        """)
        X(2)
        assert not ex
        A(f"""
        s_waitcnt lgkmcnt(0)
        ds_bpermute_b32 v{VLO}, v23, v{EXC}
        ds_bpermute_b32 v{VHI}, v23, v{INC}
        s_cmp_lg_u32 s27, 0
        s_cselect_b32 s79, 512, 0
        v_add_u32 v27, s79, v{VL}
        """)
        ixrd(27, 0)
        A("@st d4")
        d_math(DS[0])
        A("@st d5")
        if G:
            A(f"s_mov_b32 s64, {NLOG2E}")
            A(f"s_mov_b32 s65, {NLOG2E}")
            for nt in range(3):
                for ab in range(2):
                    d = GD[2*nt+ab]
                    A(f"v_pk_mul_f32 v[{d}:{d+1}], v[{d}:{d+1}], s[64:65]")
                    A(f"v_pk_mul_f32 v[{d+2}:{d+3}], v[{d+2}:{d+3}], s[64:65]")
                o = 32 + 4 * nt
                for ab in range(2):
                    d = GD[2*nt+ab]
                    A(f"v_cvt_pk_bf16_f32 v{o+2*ab}, v{d}, v{d+1}")
                    A(f"v_cvt_pk_bf16_f32 v{o+2*ab+1}, v{d+2}, v{d+3}")
                A(f"ds_write_b128 v31, v[{o}:{o+3}] offset:{AL+4096*nt}")
        A(f"""
        s_cmp_ge_u32 s72, s80
        s_cbranch_scc1 L2_nod2
        """)
        d_ad(DS[1])
        d_math(DS[1])
        if G: A("s_branch L2_nod2")
        def ool():
            A(f"""
            L2_fixed{sx}:
            s_add_u32 s79, s27, 2
            s_sub_u32 s82, s27, 1
            s_cmp_eq_u32 s27, 0
            s_cselect_b32 s79, s79, s82
            s_mul_i32 s82, s26, 3
            s_add_u32 s79, s79, s82
            s_lshl_b32 s79, s79, 3
            s_add_u32 s28, s79, 1
            s_add_u32 s82, s79, 8
            v_readlane_b32 s94, v{INC}, s79
            v_readlane_b32 s95, v{INC}, s82
            s_min_u32 s95, s95, s80
            s_cmp_eq_u32 s94, s95
            s_cselect_b32 s82, 0, 511
            s_add_u32 s95, s95, s82
            s_andn2_b32 s94, s94, 511
            s_andn2_b32 s95, s95, 511
            s_branch L2_fixed_done{sx}
            L2_ov2{sx}:
            """)
            for j in (3, 4):
                A(f"ds_bpermute_b32 v{RA+j}, v{RA+j}, v{EXC}")
            p2((3, 4), 1)
            A(f"""
            s_branch L2_ov2_done{sx}
            L2_chfix{sx}:
            s_add_u32 s67, s64, 511
            s_andn2_b32 s67, s67, 511
            s_min_u32 s67, s67, s77
            s_add_u32 s68, s83, 8
            s_min_u32 s68, s68, 41
            s_add_u32 s79, s68, 7
            v_readlane_b32 s69, v{INC}, s79
            s_cmp_ge_u32 s69, s78
            s_cbranch_scc1 L2_chsel{sx}
            s_add_u32 s66, s81, 511
            s_andn2_b32 s66, s66, 511
            s_min_u32 s66, s66, s77
            s_add_u32 s83, s28, 8
            s_min_u32 s83, s83, 41
            s_add_u32 s79, s83, 7
            v_readlane_b32 s64, v{INC}, s79
            s_andn2_b32 s65, s64, 511
            s_min_u32 s65, s65, s77
            s_add_u32 s67, s64, 511
            s_andn2_b32 s67, s67, 511
            s_min_u32 s67, s67, s77
            s_add_u32 s68, s83, 8
            s_min_u32 s68, s68, 41
            s_branch L2_chsel{sx}
            """)
        OOL.append(ool)
    section(False)
    A(f"""
    L2_nod2:
    @st d6
    s_mov_b32 s57, 0
    s_lshl_b32 s79, s28, 8
    s_add_u32 s79, s79, {AL0}
    s_sub_u32 s78, s79, 1024
    v_add_u32 v25, s79, v{CK}
    v_add_u32 v26, s78, v{CK}
    v_add_u32 v{VX}, s94, v{VX}
    v_lshlrev_b32 v22, 5, v23
    v_and_or_b32 v25, v25, v{MK}, v{B1}
    v_and_or_b32 v26, v26, v{MK}, v{B2}
    v_add3_u32 v{VSC}, v{VSC}, v22, s94
    v_xor_b32 v27, 64, v25
    v_xor_b32 v28, 64, v26
    s_cmp_gt_u32 s29, 1
    s_cbranch_scc1 L2_noz
    """)
    assert ZA & 64 == 0
    A(mf32(AC0, VZ, VZ, None))
    A(mf32(AC1, VZ, VZ, None))
    A("L2_noz:")
    A(f"""
    s_mov_b32 s64, 0x3e803e80
    s_mov_b32 s65, 0x3e803e80
    v_mov_b64 v[{ON}:{ON+1}], s[64:65]
    v_mov_b64 v[{ON+2}:{ON+3}], s[64:65]
    v_add_u32 v29, {MB}, v{TID16}
    s_movk_i32 s78, -56
    s_movk_i32 s79, 72
    s_waitcnt lgkmcnt(0)
    """)
    A(mf32(PB, VZ, VZ, None))
    ixadd()
    A(f"""
    @st d7
    s_cmp_lg_u32 s27, 0
    s_barrier
    s_cbranch_scc1 L2_w1
    """)
    dma()
    ixrd(VL, 1)
    A(f"""
    L2_w1:
    @stamp 7
    ds_read_b64_tr_b16 v[{EXT}:{EXT+1}], v25
    ds_read_b64_tr_b16 v[{EXT+2}:{EXT+3}], v26
    ds_read_b128 v[{XF}:{XF+3}], v{VX}
    ds_read_b64_tr_b16 v[{EXT+4}:{EXT+5}], v27
    ds_read_b64_tr_b16 v[{EXT+6}:{EXT+7}], v28
    ds_write_b128 v29, v[{VZ}:{VZ+3}]
    s_mov_b64 exec, 1
    ds_add_u32 v{VZ}, v{V16} offset:{FLG}
    s_mov_b64 exec, -1
    """)
    A(mf32(E1, VZ, VZ, None))
    A(f"""
    v_cmp_le_u32 s[60:61], s94, v{VLO}
    v_cmp_ge_u32 s[62:63], s58, v{VHI}
    v_cmp_gt_u32 s[64:65], s58, v{VLO}
    v_cmp_lt_u32 s[66:67], s94, v{VHI}
    v_add_u32 v{VHI}, -16, v{VHI}
    v_and_b32 v{VLO}, 0xffffffc0, v{VLO}
    v_and_b32 v{VHI}, 0xffffffc0, v{VHI}
    v_add3_u32 v{VLO}, v{VLO}, v22, s78
    v_add3_u32 v{VHI}, v{VHI}, v22, s79
    v_add_u32 v{VL}, 1024, v{VL}
    s_mov_b32 s75, s95
    s_cmp_eq_u32 s27, 0
    s_cselect_b32 s80, {os.environ.get("PR0", "0")}, 4
    s_cbranch_scc0 L2_noix
    s_waitcnt lgkmcnt(0)
    """)
    ixadd()
    A(f"""
    L2_noix:
    s_waitcnt vmcnt(0) lgkmcnt(0)
    s_cmp_eq_u32 s95, 0
    {"s_memrealtime s[100:101]" if DIAG else ""}
    s_cbranch_scc1 L2_done
    @stamp 8
    """)
    def a_reads():
        for i in range(4):
            A(f"ds_read_b128 v[{AF+4*i}:{AF+4*i+3}], v{VA} offset:{32*i}")
    a_reads()
    if "noprio" not in XF_:
        A("s_setprio 3")
    A(f"""
    s_waitcnt lgkmcnt(0)
    s_cmp_lt_u32 s95, 2
    s_cbranch_scc1 L2_nodma1
    """)
    dma()
    A("L2_nodma1:")
    A(mf32(T0, AF, ID, None))
    A(mf32(T0, AF+4, ID+4, T0))
    A(mf32(T0, XF, EXT, T0))
    A(mf32(T1, AF+8, ID, None))
    A("s_nop 10")
    A.ins.append(I(".p2align 6"))
    A("L2_loop:")
    def run(ops, ins):
        for i, v in enumerate(ops):
            for x in ins.get(i, []):
                if callable(x): x()
                else: A(x)
            A(v)
    ex = lambda e, t: [f"v_exp_f32 v{e+i}, v{t+i}" for i in range(16)]
    rc = lambda e: [f"v_rcp_f32 v{e+i}, v{e+i}" for i in range(16)]
    mu = lambda e, t: [f"v_pk_mul_f32 v[{e+2*i}:{e+2*i+1}], v[{e+2*i}:{e+2*i+1}], v[{t+2*i}:{t+2*i+1}]" for i in range(8)]
    if "nopk" in XF_:
        mu = lambda e, t: [f"v_mul_f32 v{e+i}, v{e+i}, v{t+i}" for i in range(16)]
    run(ex(E0, T0), {0: [mf32(T1, AF+12, ID+4, T1)], 4: [mf32(T1, XF, EXT+4, T1)]})
    run(ex(E1, T1), {0: ["s_waitcnt lgkmcnt(0)", mf32(AC1, E1+8, SF, AC1)], 4: [mf32(E0, ON, ON, E0)], 8: [mf32(AC1, E1+12, SF+4, AC1)],
                     12: [f"ds_read_b128 v[{XF}:{XF+3}], v{VX} offset:512", lambda: ixrd(VL, 0)]})
    run(rc(E0), {0: [mf32(AC0, PB, SF, AC0)], 2: ([] if "nowait" in XF_ else ["s_waitcnt vmcnt(0)"]) + [a_reads], 4: [mf32(E1, ON, ON, E1)], 8: [mf32(AC0, PB+4, SF+4, AC0)],
                 12: ["s_waitcnt lgkmcnt(4)", ixadd]})
    run(mu(E0, T0), {})
    def dma_next():
        if "nodma" in XF_: return
        A("s_cmp_lt_u32 s95, 3")
        A("s_cbranch_scc1 L2_nodma2")
        dma()
        A("L2_nodma2:")
    run([f"v_cvt_pk_bf16_f32 v{PB+i}, v{E0+2*i}, v{E0+2*i+1}" for i in range(8)],
        {0: ["s_waitcnt lgkmcnt(0)", mf32(T0, AF, ID, None)], 2: [dma_next]})
    run(rc(E1), {0: [mf32(T0, AF+4, ID+4, T0)], 4: [mf32(T0, XF, EXT, T0)],
                 8: [f"v_med3_i32 v{SF+6}, v{VSC}, v{VLO}, v{VHI}"] +
                    [f"ds_read_b64_tr_b16 v[{SF+2*r}:{SF+2*r+1}], v{SF+6} offset:{16*r}" for r in range(4)] +
                    ([f"v_add_u32 v{VX}, s88, v{VX}", f"v_add_u32 v{VX+1}, s88, v{VX+1}"] if "no64" in XF_ else [f"v_lshl_add_u64 v[{VX}:{VX+1}], v[{VX}:{VX+1}], 0, s[88:89]"]) + [f"v_add_u32 v{VL}, s88, v{VL}"]})
    run(mu(E1, T1), {})
    def prio():
        if "noprio" in XF_: return
        A(f"""
        s_cmp_gt_u32 s95, s80
        s_cbranch_scc1 L2_prd
        s_setprio 2
        s_cmp_eq_u32 s95, 4
        s_cbranch_scc1 L2_prd
        s_setprio 1
        s_cmp_eq_u32 s95, 3
        s_cbranch_scc1 L2_prd
        s_setprio 0
        L2_prd:
        """)
    run([f"v_cvt_pk_bf16_f32 v{E1+8+i}, v{E1+2*i}, v{E1+2*i+1}" for i in range(7, -1, -1)],
        {0: [mf32(T1, AF+8, ID, None)], 2: [prio], 6: ["s_sub_u32 s95, s95, 1", "s_cmp_lg_u32 s95, 0"]})
    A("s_cbranch_scc1 L2_loop")
    if "noprio" not in XF_:
        A("s_setprio 3")
    A("s_waitcnt lgkmcnt(0)")
    A(mf32(AC0, PB, SF, AC0))
    A(mf32(AC1, E1+8, SF, AC1))
    A(mf32(AC0, PB+4, SF+4, AC0))
    A(mf32(AC1, E1+12, SF+4, AC1))
    A("L2_done:")
    A("@stamp 9")
    A(f"""
    s_cmp_lg_u32 s29, 0
    s_cbranch_scc1 L2_slownext
    L2_flush:
    v_lshrrev_b32 v{VKG}, 5, v{LANE}
    s_lshl_b32 s72, s25, 7
    s_add_u32 s76, s72, {WX}
    v_lshl_add_u32 v{VJS}, v{VKG}, 3, s76
    v_mov_b32 v{ID+5}, 0
    """)
    for i in range(4):
        A(f"ds_read2_b64 v[{AF+4*i}:{AF+4*i+3}], v{VJS} offset0:{4*i} offset1:{4*i+2}")
    A(f"""
    L2_flw:
    ds_read_b32 v{ID+6}, v{ID+5} offset:{FLG}
    s_and_b32 s56, s60, s62
    s_and_b32 s58, s64, s66
    s_andn2_b32 s58, s58, s56
    s_cmp_lg_u32 s73, 0
    s_cselect_b32 s56, -1, s56
    s_cselect_b32 s58, 0, s58
    s_and_b32 s56, s56, 0x000f000f
    s_and_b32 s58, s58, 0x000f000f
    s_mul_i32 s56, s56, 0x1001
    s_mul_i32 s58, s58, 0x1001
    s_bfe_u32 s68, s56, 0x8000c
    s_bfe_u32 s78, s58, 0x8000c
    s_bitreplicate_b64_b32 s[68:69], s68
    s_bitreplicate_b64_b32 s[78:79], s78
    s_bitreplicate_b64_b32 s[68:69], s68
    s_bitreplicate_b64_b32 s[78:79], s78
    s_and_b32 s56, s68, 0x11111111
    s_and_b32 s58, s78, 0x11111111
    v_bfe_u32 v{ID}, v{LANE}, 2, 3
    v_subrev_u32 v{ID}, s28, v{ID}
    v_and_b32 v{ID}, 7, v{ID}
    v_add_u32 v{ID+4}, s28, v{ID}
    v_min_u32 v{ID}, 41, v{ID+4}
    s_lshl_b32 s76, s24, 7
    s_add_u32 s76, s76, {PP}
    v_and_b32 v{ID+1}, 31, v{LANE}
    v_lshl_add_u32 v{ID+1}, v{ID+1}, 2, s76
    s_add_u32 s77, s72, {MB - MSTR}
    v_mul_u32_u24 v{ID}, {MSTR}, v{ID}
    v_lshl_add_u32 v{ID}, v{VKG}, 3, v{ID}
    v_add_u32 v{ID}, s77, v{ID}
    s_waitcnt lgkmcnt(0)
    v_cmp_ne_u32 vcc, {12*16}, v{ID+6}
    s_cbranch_vccnz L2_flw
    """)
    for i in range(16):
        A(f"v_cvt_pk_bf16_f32 v{AC0+i}, v{AC0+2*i}, v{AC0+2*i+1}")
    A("s_mov_b32 exec_lo, s56")
    A("s_mov_b32 exec_hi, s56")
    for i in range(8):
        A(f"ds_write_b64 v{ID}, v[{AC0+2*i}:{AC0+2*i+1}] offset:{16*i}")
    A("s_mov_b32 exec_lo, s58")
    A("s_mov_b32 exec_hi, s58")
    A("s_cbranch_execz L2_nosh")
    for i in range(16):
        A(f"ds_pk_add_bf16 v{ID}, v{AC0+i} offset:{16*(i//2) + 4*(i&1)}")
    A("L2_nosh:")
    A("s_mov_b64 exec, -1")
    for i in range(16):
        A(f"v_dot2_f32_bf16 v{ID+2}, v{AC0+i}, v{AF+i}, {f'v{ID+2}' if i else '0'}")
    A(f"""
    v_mov_b32 v{ID+3}, v{ID+2}
    v_permlane32_swap_b32 v{ID+3}, v{ID+2}
    s_mov_b32 exec_lo, 0xeeeeeeee
    s_mov_b32 exec_hi, 0
    v_add_f32 v{ID+4}, v{ID+3}, v{ID+2}
    s_mov_b32 exec_lo, -1
    ds_write_b32 v{ID+1}, v{ID+4}
    s_mov_b64 exec, -1
    s_cmp_lg_u32 s27, 0
    s_cbranch_scc1 L2_other
    """)
    W, H, D = 0, 64, 112
    A(f"""
    s_setprio 0
    v_lshlrev_b32 v140, 4, v{LANE}
    s_lshl_b32 s72, s24, 15
    v_and_b32 v141, 15, v{LANE}
    v_lshrrev_b32 v142, 4, v{LANE}
    v_lshlrev_b32 v143, 4, v142
    v_lshl_add_u32 v144, v141, 8, v143
    v_add_u32 v146, 4096, v144
    v_add_u32 v147, 8192, v144
    """)
    for k in range(4):
        A(f"s_add_u32 s{78+k}, s24, {k}")
        A(f"s_and_b32 s{78+k}, s{78+k}, 3")
        A(f"s_lshl_b32 s{82+k}, s{78+k}, 6")
        A(f"s_lshl_b32 s{78+k}, s{78+k}, 10")
        A(f"s_add_u32 s{78+k}, s{78+k}, s72")
        A(f"s_add_u32 s{86+k}, s{78+k}, 16384")
    A("s_waitcnt lgkmcnt(0)")
    for k in range(4):
        A(f"buffer_load_dwordx4 v[{W+4*k}:{W+4*k+3}], v140, s[48:51], s{78+k} offen")
        A(f"buffer_load_dwordx4 v[{W+32+4*k}:{W+32+4*k+3}], v140, s[48:51], s{86+k} offen")
        for nt in range(3):
            A(f"buffer_load_dwordx4 v[{H+16*nt+4*k}:{H+16*nt+4*k+3}], v{(144,146,147)[nt]}, s[52:55], s{82+k} offen")
    A("s_add_u32 s76, s72, 4096")
    A("s_add_u32 s77, s72, 20480")
    for k in range(4):
        A(f"buffer_load_dwordx4 v[{W+16+4*k}:{W+16+4*k+3}], v140, s[48:51], s76 offen offset:{1024*k}")
        A(f"buffer_load_dwordx4 v[{W+48+4*k}:{W+48+4*k+3}], v140, s[48:51], s77 offen offset:{1024*k}")
    A(f"""
    v_mov_b32 v145, {MB}
    v_mul_u32_u24 v148, {MSTR}, v141
    v_add3_u32 v145, v145, v148, v143
    s_add_u32 s60, s20, s71
    s_addc_u32 s61, s21, 0
    s_mov_b32 s62, s54
    s_mov_b32 s63, 0x00020000
    """)
    for k in range(4):
        A(f"s_waitcnt vmcnt({8 + 5*(3-k)})")
        for nt in range(3):
            for ab in range(2):
                d = D + 8 * nt + 4 * ab
                A(mf16(d, W+32*ab+4*k, H+16*nt+4*k, d if k else None))
    MF = [0, 32, 148]
    A(f"""
    s_mov_b32 s78, {NLOG2E}
    s_mov_b32 s79, {NLOG2E}
    s_mov_b32 s80, {NLN2}
    s_mov_b32 s81, {NLN2}
    """)
    for i in range(12):
        A(f"v_pk_mul_f32 v[{D+2*i}:{D+2*i+1}], v[{D+2*i}:{D+2*i+1}], s[78:79]")
    for nt in range(3):
        h = H + 16 * nt
        for i in range(4):
            A(f"v_lshlrev_b32 v{h+4+2*i}, 16, v{h+i}")
            A(f"v_and_b32 v{h+5+2*i}, 0xffff0000, v{h+i}")
    A(f"""
    s_waitcnt vmcnt(0) lgkmcnt(0)
    @stamp 10
    s_barrier
    @stamp 11
    """)
    for nt in range(3):
        for k in range(4):
            A(f"ds_read_b128 v[{MF[nt]+4*k}:{MF[nt]+4*k+3}], v145 offset:{nt*16*MSTR + 64*k}")
    def mm(nt):
        o = []
        for k in range(4):
            o.append(f"s_waitcnt lgkmcnt({11 - 4*nt - k})")
            for ab in range(2):
                d = D + 8 * nt + 4 * ab
                o.append(mf16(d, W+16+32*ab+4*k, MF[nt]+4*k, d))
        return o
    def fin(nt):
        d = D + 8 * nt; tmp = MF[nt]; h = H + 16 * nt
        o = []
        o += [f"v_exp_f32 v{tmp+i}, v{d+i}" for i in range(8)]
        o += [f"v_pk_add_f32 v[{tmp+2*i}:{tmp+2*i+1}], v[{tmp+2*i}:{tmp+2*i+1}], 1.0 op_sel_hi:[1,0]" for i in range(4)]
        o += [f"v_rcp_f32 v{tmp+i}, v{tmp+i}" for i in range(8)]
        o += [f"v_pk_mul_f32 v[{tmp+2*i}:{tmp+2*i+1}], v[{tmp+2*i}:{tmp+2*i+1}], v[{d+2*i}:{d+2*i+1}]" for i in range(4)]
        o += [f"v_pk_fma_f32 v[{tmp+2*i}:{tmp+2*i+1}], v[{tmp+2*i}:{tmp+2*i+1}], s[80:81], v[{h+4+2*i}:{h+5+2*i}]" for i in range(4)]
        o += [f"v_cvt_pk_bf16_f32 v{h+i}, v{tmp+2*i}, v{tmp+2*i+1}" for i in range(4)]
        o += [f"buffer_store_dwordx4 v[{h}:{h+3}], v{(144,146,147)[nt]}, s[60:63], s82 offen"]
        return o
    for x in mm(0): A(x)
    for x in mm(1): A(x)
    f0 = fin(0); m2 = mm(2)
    for i, x in enumerate(f0):
        A(x)
        if i < 8 and i % 2 == 1:
            for y in m2[3*(i//2):3*(i//2)+3]: A(y)
    for x in fin(1): A(x)
    for x in fin(2): A(x)
    A(f"""
    @wait
    @stamp 13
    @stamp 14 real
    @dump
    s_endpgm
    L2_other:
    s_mul_i32 s72, s3, 6
    s_add_u32 s73, s72, 2560000
    s_add_u32 s60, s20, s73
    s_addc_u32 s61, s21, 0
    s_mul_i32 s62, s70, 6
    s_mov_b32 s63, 0x00020000
    v_mul_u32_u24 v2, 6, v{LANE}
    v_add_u32 v1, 1, v{LANE}
    v_and_b32 v4, 7, v1
    v_lshlrev_b32 v4, 4, v4
    v_add_u32 v4, {PP}, v4
    v_lshlrev_b32 v5, 2, v1
    v_mov_b64 v[16:17], 0
    v_mov_b64 v[18:19], 0
    s_mov_b32 s76, {NLN2}
    s_waitcnt lgkmcnt(0)
    @stamp 10
    s_barrier
    @stamp 11
    @stamp 13
    @stamp 14 real
    @dump 8
    s_mov_b64 exec, -1
    {"s_cmp_eq_u32 s24, 11" if DIAG else ""}
    {"s_cbranch_scc1 L2_diag" if DIAG else ""}
    s_cmp_lg_u32 s24, 4
    s_cbranch_scc1 L2_exit
    """)
    for w in range(12):
        A(f"ds_read_b128 v[{20+4*w}:{23+4*w}], v4 offset:{128*w}")
    A(f"ds_read2st64_b32 v[12:13], v5 offset0:{NS//256+1} offset1:{NS//256+2}")
    A(f"ds_read_b32 v14, v5 offset:{NS+768}")
    for w in range(12):
        A(f"s_waitcnt lgkmcnt({13-w})")
        A(f"v_cmp_eq_u32 vcc, v{20+4*w}, v1")
        A(f"s_mov_b64 exec, vcc")
        A(f"v_add_f32 v17, v17, v{21+4*w}")
        A(f"v_pk_add_f32 v[18:19], v[18:19], v[{22+4*w}:{23+4*w}]")
        A(f"s_mov_b64 exec, -1")
    A(f"""
    s_waitcnt lgkmcnt(0)
    v_fma_f32 v12, v17, s76, v12
    v_fma_f32 v13, v18, s76, v13
    v_fma_f32 v14, v19, s76, v14
    v_cvt_pk_bf16_f32 v12, v12, v13
    v_cvt_pk_bf16_f32 v14, v14, v14
    buffer_store_short v12, v2, s[60:63], 0 offen
    buffer_store_short_d16_hi v12, v2, s[60:63], 0 offen offset:2
    buffer_store_short v14, v2, s[60:63], 0 offen offset:4
    L2_exit:
    s_endpgm
    """)
    if DIAG:
        A(f"""
        L2_diag:
        s_memrealtime s[92:93]
        s_add_u32 s76, s22, {DBG1_OFF}
        s_addc_u32 s77, s23, 0
        s_load_dwordx2 s[78:79], s[76:77], 0
        s_waitcnt lgkmcnt(0)
        """)
        A({"k2": "s_sub_u32 s80, s92, s98", "k1k2": "s_sub_u32 s80, s98, s78", "k1": "s_sub_u32 s80, s79, s78", "pro": "s_sub_u32 s80, s100, s98", "0": "s_mov_b32 s80, 0"}[DIAG])
        A(f"""
        s_min_u32 s80, s80, 4000
        s_add_u32 s80, s80, 150
        s_mov_b32 s81, 0
        L2_dl:
        s_sleep 2
        s_memrealtime s[94:95]
        s_add_u32 s81, s81, 1
        s_waitcnt lgkmcnt(0)
        s_sub_u32 s82, s94, s92
        s_cmp_gt_u32 s81, 2000
        s_cbranch_scc1 L2_exit2
        s_cmp_lt_u32 s82, s80
        s_cbranch_scc1 L2_dl
        L2_exit2:
        s_endpgm
        """)
    section(True)
    for f in OOL: f()
    A(f"""
    L2_spec:
    v_lshlrev_b32 v30, 4, v{LANE}
    s_cmp_eq_u32 s24, 11
    s_cbranch_scc1 L2_spec2
    s_add_u32 s32, s14, 65536
    s_addc_u32 s33, s15, 0
    s_mov_b32 m0, {WR}
    v_and_b32 v31, 16, v{LANE}
    v_lshlrev_b32 v31, 2, v31
    v_xor_b32 v31, v31, v30
    s_mov_b32 exec_hi, 0
    global_load_lds_dwordx4 v31, s[32:33]
    s_mov_b64 exec, -1
    s_branch L2_batch
    L2_spec2:
    s_mov_b32 m0, {WX}
    s_mov_b64 exec, 0xffff
    global_load_lds_dwordx4 v30, s[16:17]
    s_mov_b64 exec, -1
    s_branch L2_batch
    L2_ov1:
    s_cbranch_vccz L2_nolost
    v_mov_b32 v1, 0x100000
    ds_write_b32 v{VZ}, v1 offset:{CNT}
    L2_nolost:
    """)
    p1((3, 4)); pL((3, 4))
    A("s_branch L2_ov1_done")
    A(f"""
    L2_slownext:
    s_mov_b32 s29, 1
    s_add_u32 s30, s30, 768
    s_cmp_ge_u32 s30, 320000
    s_cbranch_scc1 L2_flush
    L2_goslow:
    s_add_u32 s29, s29, 1
    s_waitcnt vmcnt(0) lgkmcnt(0)
    s_barrier
    v_lshrrev_b32 v1, 4, v{TID16}
    v_add_u32 v1, s30, v1
    v_min_u32 v3, 319999, v1
    v_lshlrev_b32 v4, 2, v3
    v_lshlrev_b32 v3, 1, v3
    global_load_dword v7, v4, s[12:13]
    global_load_dword v8, v4, s[10:11]
    global_load_ushort v6, v3, s[8:9]
    s_mov_b32 s73, 320000
    s_mov_b32 s76, 0x05040100
    v_cmp_gt_u32 s[60:61], s73, v1
    s_waitcnt vmcnt(0)
    v_subrev_u32 v7, s3, v7
    v_cmp_gt_u32 s[62:63], s70, v7
    v_lshl_add_u32 v7, v8, 6, v7
    v_lshl_add_u32 v7, v7, 2, 4
    v_lshlrev_b32 v6, 16, v6
    v_mul_f32 v6, {NLOG2E}, v6
    v_cvt_pk_bf16_f32 v6, v6, v6
    v_perm_b32 v7, v6, v7, s76
    s_and_b64 s[60:61], s[60:61], s[62:63]
    v_cndmask_b32 v2, 0, v7, s[60:61]
    v_lshrrev_b32 v5, 8, v8
    v_mov_b64 v[6:7], 0
    v_mov_b64 v[8:9], 0
    v_mov_b32 v3, 0
    v_mov_b32 v4, 0
    s_branch L2_batch
    """)
    A.check_all_edges()
    return A
```

```python
from g1 import *

CAPT = 48
C1S = 0
OH = (32 * CAPT + 336) * 16
CNT = OH + CAPT * 512
NS = CNT
AL0 = 55296
assert NS + 768 == AL0 and AL0 % 2048 == 0
AL = AL0 + 256
WR = AL + 48 * 256
WX = WR + 512
SLOT = 4192
SLE = WX + 256
TAB = SLE + 8 * SLOT
LDS2 = TAB + 59 * 1024
assert LDS2 <= 163840
FLG = CNT + 252
ZA = CNT + 176
MB = TAB
MSTR = 272
SLL = MB + 13056
PP = SLL + 4 * SLOT
assert PP + 1536 <= LDS2 and SLL % 16 == 0 and PP % 16 == 0

T0, T1, E0, E1, AC0, AC1, AF, ON, SF, ID, EXT, XF, IX = 0, 16, 32, 48, 64, 80, 96, 112, 120, 128, 136, 144, 148
SI, LC, VX, VSC, VL, VA, VLO, VHI = 156, 157, 158, 159, 160, 161, 162, 163
FL3 = CNT + 232
import struct
f2u = lambda x: struct.unpack("<I", struct.pack("<f", x))[0]
DELTA = 1.00268
LANE, VZ = 164, 108
V16, V1B, TID16 = 165, 166, 167
VKG, VJS = 144, 145
CK, MK, B1, B2, CJ, J4 = 144, 145, 146, 147, 0, 127
INC, EXC = 20, 21
NSV = 124
GW = AC0
GD = [96, 100, 104, 112, 116, 120]
GH = [[116, 120, 32, 36], [40, 52, 56, 60], [136, 140, 152, 148]]

def gen_k2():
    A = Asm()
    A.macro = mk_macro([98, 99, 36, 37, 38, 39, 91, 92, 93, 100, 101, 74, 75, 59, 18, 19], 22, DBG2_OFF, 24, True)
    RD = [2, 3, 4, 6, 8]; RH = [5, 5, 5, 7, 9]; SEL = [81, 82, 83, 81, 81]
    RA, RK, RL = 10, 15, 22
    mask = lambda j: f"s[{60+2*j}:{61+2*j}]"
    A("k2_kernel:")
    A(f"""
    s_load_dwordx2 s[22:23], s[0:1], 80
    s_load_dwordx16 s[4:19], s[0:1], 0
    s_load_dwordx2 s[20:21], s[0:1], 64
    s_cmp_ge_u32 s2, {NB}
    s_cbranch_scc1 L2_exit
    {"s_memrealtime s[98:99]" if DIAG else ""}
    @stamp 0 real
    @stamp 1
    v_lshrrev_b32 v1, 6, v0
    v_lshlrev_b32 v{TID16}, 4, v0
    v_readfirstlane_b32 s24, v1
    v_and_b32 v{LANE}, 63, v0
    s_mul_i32 s76, s2, {ROWB}
    s_add_u32 s76, s76, {REC_OFF}
    s_mul_i32 s3, s2, 625
    s_add_u32 s70, s3, {625+15}
    s_add_u32 s3, s3, 15
    s_lshr_b32 s3, s3, 4
    s_lshr_b32 s70, s70, 4
    s_sub_u32 s70, s70, s3
    s_lshl_b32 s71, s3, 8
    s_lshl_b32 s54, s70, 8
    s_mov_b32 s55, 0x00020000
    v_lshrrev_b32 v39, 4, v0
    v_xor_b32 v40, v39, v0
    v_and_b32 v40, 15, v40
    v_lshlrev_b32 v40, 4, v40
    v_lshl_add_u32 v39, v39, 8, v40
    s_mov_b32 s29, 0
    s_mov_b32 s30, 0
    s_lshl_b32 s78, s24, 10
    s_add_u32 m0, s78, {AL}
    s_and_b32 s25, s24, 1
    s_bfe_u32 s26, s24, 0x10001
    s_lshr_b32 s27, s24, 2
    s_mul_i32 s31, s24, {SLOT}
    s_mov_b32 s77, {SLL}
    s_cmp_eq_u32 s27, 0
    s_cselect_b32 s77, s77, {SLE - 4*SLOT}
    s_cselect_b32 s57, 1, 0
    s_add_u32 s31, s31, s77
    s_mov_b32 s46, 60000
    s_mov_b32 s47, 0x00020000
    s_waitcnt lgkmcnt(0)
    s_add_u32 s32, s22, s76
    s_addc_u32 s33, s23, 0
    global_load_dwordx4 v[2:5], v{TID16}, s[32:33]
    global_load_dwordx4 v[6:9], v{TID16}, s[22:23]
    s_add_u32 s52, s4, s71
    s_addc_u32 s53, s5, 0
    s_mov_b32 s44, s6
    s_mov_b32 s45, s7
    buffer_load_dwordx4 v39, s[52:55], 0 offen lds
    s_cmp_gt_u32 s24, 9
    s_cbranch_scc1 L2_spec
    L2_batch:
    @st a
    v_mov_b64 v[{VZ}:{VZ+1}], 0
    v_mov_b64 v[{VZ+2}:{VZ+3}], 0
    v_lshrrev_b32 v1, 1, v{TID16}
    """)
    for i in range(4):
        A(f"ds_write_b128 v{TID16}, v[{VZ}:{VZ+3}] offset:{12288*i}")
    A(f"""
    v_cmp_eq_u32 vcc, {CNT + 160 - 49152}, v1
    v_mov_b32 v44, 0
    v_mov_b32 v45, 0x1000000
    v_lshlrev_b32 v30, 4, v{LANE}
    v_cndmask_b32 v45, 0, v45, vcc
    v_cmp_gt_u32 vcc, {CNT + 256 - 49152}, v1
    s_mul_i32 s78, s24, 5120
    s_add_u32 m0, s78, {TAB}
    s_mov_b64 exec, vcc
    ds_write_b64 v1, v[44:45] offset:49152
    s_mov_b64 exec, -1
    """)
    srd(A, 48, 22, 23, 4 * 32768, add=PK_OFF)
    A(f"""
    s_waitcnt lgkmcnt(0)
    @st b
    s_barrier
    @st c
    """)
    tabn = [0]
    def tab():
        i = tabn[0]; tabn[0] += 1
        if i < 4:
            A(f"buffer_load_dwordx4 v30, s[44:47], s78 offen offset:{1024*i} lds")
        else:
            A(f"""
            s_add_u32 s78, s78, 4096
            s_min_u32 s78, s78, {58*1024}
            s_add_u32 m0, s78, {TAB}
            v_add_u32 v31, s78, v30
            buffer_load_dwordx4 v31, s[44:47], 0 offen lds
            """)
    def gload(lo, hi, lbl):
        A(f"""
        s_cmp_eq_u32 s57, 0
        s_cbranch_scc1 {lbl}
        s_lshl_b32 s80, s24, 15
        s_add_u32 s80, s80, 8192
        s_add_u32 s84, s80, 16384
        """)
        for k in range(lo, hi):
            A(f"buffer_load_dwordx4 v[{GW+4*k}:{GW+4*k+3}], v30, s[48:51], s80 offen offset:{1024*k}")
            A(f"buffer_load_dwordx4 v[{GW+16+4*k}:{GW+16+4*k+3}], v30, s[48:51], s84 offen offset:{1024*k}")
        if hi == 4:
            A(f"""
            s_sub_u32 s80, s3, 1
            v_add_u32 v1, s80, v{LANE}
            v_mul_u32_u24 v1, 6, v1
            v_mov_b64 v[{NSV}:{NSV+1}], 0
            v_mov_b32 v{NSV+2}, 0
            buffer_load_short_d16_hi v{NSV}, v1, s[44:47], 0 offen
            buffer_load_short_d16_hi v{NSV+1}, v1, s[44:47], 0 offen offset:2
            buffer_load_short_d16_hi v{NSV+2}, v1, s[44:47], 0 offen offset:4
            """)
        A(f"{lbl}:")
    KG, JS, JE = 41, 42, 43
    tab()
    A(f"""
    v_and_b32 v32, 31, v{LANE}
    v_lshrrev_b32 v{KG}, 5, v{LANE}
    v_lshlrev_b32 v33, 3, v{KG}
    v_sub_u32 v32, v32, v33
    v_and_b32 v33, 1, v32
    v_lshlrev_b32 v33, 4, v33
    v_mov_b32 v{V1B}, 0x3f80
    v_lshlrev_b32 v33, v33, v{V1B}
    v_ashrrev_i32 v32, 1, v32
    """)
    for h in range(2):
        for r in range(4):
            A(f"v_cmp_eq_u32 s[{60+2*r}:{61+2*r}], {r + 8*h}, v32")
        for r in range(4):
            A(f"v_cndmask_b32 v{ID+4*h+r}, 0, v33, s[{60+2*r}:{61+2*r}]")
    tab()
    A(f"""
    v_mov_b32 v{V16}, 16
    v_and_b32 v32, 7, v{LANE}
    v_xor_b32 v33, v32, v{KG}
    v_lshlrev_b32 v{LC}, 4, v33
    v_mov_b32 v{SI}, 0xdddddddd
    v_and_b32 v34, 8, v{LANE}
    v_and_b32 v35, 3, v{LANE}
    v_lshl_add_u32 v35, v35, 1, v34
    v_bfe_u32 v34, v{LANE}, 4, 1
    v_add_u32 v35, v35, v34
    v_bfe_u32 v36, v{LANE}, 2, 1
    v_lshl_add_u32 v35, v35, 1, v36
    v_xor_b32 v36, 1, v{KG}
    v_mul_u32_u24 v{VX}, {OH}, v36
    v_lshl_add_u32 v{VX}, v35, 4, v{VX}
    v_lshrrev_b32 v36, 3, v35
    v_mul_u32_u24 v36, 1056, v36
    v_and_b32 v35, 7, v35
    v_lshl_add_u32 v36, v35, 7, v36
    v_and_b32 v33, 1, v33
    v_lshlrev_b32 v33, 4, v33
    v_add3_u32 v{VA}, v36, v33, s31
    v_lshrrev_b32 v{VL}, 3, v{LANE}
    v_lshlrev_b32 v{VL}, 4, v{VL}
    v_and_b32 v32, 3, v{LANE}
    v_bfe_u32 v33, v{LANE}, 4, 1
    v_lshl_add_u32 v{JS}, v33, 2, v32
    v_bfe_u32 v{JE}, v{LANE}, 2, 2
    v_lshl_add_u32 v34, v{KG}, 2, v{JE}
    v_lshl_add_u32 v{VSC}, v34, 6, 8
    """)
    tab()
    gload(0, 2, "L2_g1")
    A(f"""
    v_lshlrev_b32 v{J4}, 2, v{JS}
    v_sub_u32 v{CJ}, 28, v{J4}
    v_sub_u32 v{CK}, 7, v{JE}
    v_lshlrev_b32 v{CK}, 8, v{CK}
    v_mov_b32 v{MK}, 0xfffff800
    s_lshl_b32 s80, s25, 1
    v_add_u32 v32, 3, v{JE}
    v_sub_u32 v32, v32, v{KG}
    v_and_b32 v32, 3, v32
    v_xor_b32 v32, s80, v32
    v_lshl_add_u32 v32, v{JE}, 2, v32
    v_lshlrev_b32 v32, 6, v32
    v_lshl_add_u32 v{B1}, v{JS}, 3, v32
    v_add_u32 v{B2}, 1024, v{B1}
    s_mov_b32 exec_lo, 0
    v_mov_b32 v{MK}, 0
    v_add_u32 v{B1}, {WR - 512}, v{B1}
    v_mov_b32 v{B2}, {ZA}
    s_mov_b32 exec_hi, 0x00ff00ff
    v_mov_b32 v{B1}, {ZA}
    s_mov_b64 exec, -1
    v_lshlrev_b32 v29, 2, v{LANE}
    s_sub_u32 s72, 23, s24
    s_lshl_b32 s72, s72, 10
    v_add_u32 v28, s72, v30
    v_mov_b64 v[44:45], 0
    v_mov_b64 v[46:47], 0
    v_mov_b64 v[48:49], 0
    """)
    tab()
    A(f"""
    s_add_u32 s76, s2, 1
    s_lshl_b32 s76, s76, 8
    s_movk_i32 s77, 256
    s_mov_b32 s81, 0x0c0c0401
    s_mov_b32 s82, 0x0c0c0501
    s_mov_b32 s83, 0x0c0c0601
    s_mov_b32 s79, 0xffffff
    s_lshl_b32 s85, s25, 7
    s_add_u32 s85, s85, {BT_OFF - 4096}
    v_and_b32 v32, 15, v{LANE}
    v_lshrrev_b32 v33, 4, v{LANE}
    v_xor_b32 v34, v32, v33
    v_lshlrev_b32 v34, 4, v34
    v_lshl_add_u32 v50, v32, 8, v34
    v_and_b32 v34, 3, v{LANE}
    v_xor_b32 v34, s24, v34
    v_lshlrev_b32 v34, 2, v34
    v_add_lshl_u32 v34, v34, v33, 4
    v_lshl_add_u32 v27, v32, 8, v34
    """)
    A(f"""
    s_add_u32 s40, s22, s85
    s_addc_u32 s41, s23, {256 << 16}
    s_mov_b32 s42, {2560000 + 4096 - 128}
    s_mov_b32 s43, 0x00020000
    """)
    A(f"""
    @stamp 2
    s_waitcnt vmcnt(8)
    s_cmp_lg_u32 s57, 0
    s_cbranch_scc1 L2_recw
    s_waitcnt vmcnt(4)
    L2_recw:
    @stamp 3
    """)
    def p1(js):
        for j in js:
            A(f"v_and_b32 v{RA+j}, 0xfc, v{RD[j]}")
            A(f"v_mov_b32 v{RK+j}, 0")
        for j in js:
            A(f"s_mov_b64 exec, {mask(j)}")
            A(f"ds_add_rtn_u32 v{RK+j}, v{RA+j}, v{V16} offset:{CNT}")
        A("s_mov_b64 exec, -1")
    def pL(js):
        for j in js:
            A(f"v_perm_b32 v{RL+j}, v{RH[j]}, v{RD[j]}, s{SEL[j]}")
    for j in range(3):
        A(f"v_cmp_ne_u32 {mask(j)}, 0, v{RD[j]}")
    p1(range(3))
    A(f"""
    v_xor_b32 v7, s76, v7
    v_xor_b32 v9, s76, v9
    v_cmp_gt_u32 {mask(3)}, s77, v7
    v_cmp_gt_u32 {mask(4)}, s77, v9
    v_cmp_lt_u32 vcc, s79, v5
    """)
    pL(range(3))
    A(f"""
    s_or_b64 s[84:85], {mask(3)}, {mask(4)}
    s_cselect_b32 s90, 1, 0
    s_or_b64 s[84:85], s[84:85], vcc
    s_cbranch_scc1 L2_ov1
    L2_ov1_done:
    """)
    tab()
    gload(2, 4, "L2_g2")
    A(f"""
    v_mov_b32 v31, v27
    s_mov_b32 m0, s31
    s_mov_b32 s84, 4096
    s_mov_b32 s85, {4096-1056}
    s_mov_b32 s86, {4096-2112}
    s_mov_b32 s87, {4096-3168}
    s_mov_b32 s88, 512
    s_mov_b32 s89, 512
    s_cmp_lg_u32 s57, 0
    s_waitcnt lgkmcnt(0)
    s_barrier
    @stamp 4
    ds_read_b32 v{EXC}, v29 offset:{CNT}
    s_cbranch_scc1 L2_secG
    """)
    def ixrd(reg, t):
        for i in range(4):
            A(f"ds_read_b32 v{IX+2*i}, v{reg} offset:{512*t+128*i}")
    def lcset():
        for i in range(4):
            A(f"v_mov_b32 v{IX+2*i+1}, v{LC}")
    def dma():
        for i in range(4):
            A(f"buffer_load_dwordx4 v[{IX+2*i}:{IX+2*i+1}], s[40:43], s{84+i} idxen offen offset:{1056*i} {os.environ.get('BTLD','').replace('_',' ')} lds")
    def p2(js, base):
        A(f"s_waitcnt lgkmcnt(0)")
        for n, j in enumerate(js):
            A(f"s_mov_b64 exec, {mask(j)}")
            A(f"v_add_u32 v{RK+j}, v{RK+j}, v{RA+j}")
            A(f"ds_write2_b32 v{RK+j}, v{RL+j}, v{RD[j]} offset0:0 offset1:1")
        A("s_mov_b64 exec, -1")
    class D: pass
    DS = []
    for k in range(2):
        d = D(); d.pos = TID16 if k == 0 else 28
        d.e = 2 + 2 * k; d.ta = 6 + 2 * k; d.a = 7 + 2 * k; d.P = 44 + 3 * k; d.N = 10 + 4 * k; d.m = mask(k)
        DS.append(d)
    OOL = []

    def section(G):
        sx = "G" if G else ""
        ex = []
        if G:
            for nt in range(3):
                for k in range(4):
                    for ab in range(2):
                        d = GD[2*nt+ab]
                        ex.append(mf16(d, GW+16*ab+4*k, GH[nt][k], d if k else None))
        def X(n=1):
            for _ in range(n):
                if ex: A(ex.pop(0))
        def d_rd(d):
            A(f"v_mad_u32_u24 v{d.ta}, v{d.e}, 6, s79")
            A(f"v_and_b32 v{d.a}, 0xfc, v{d.e+1}")
            X()
            for c in range(3):
                A(f"ds_read_u16_d16_hi v{d.P+c}, v{d.ta} offset:{2*c}")
            X()
            A(f"ds_read2st64_b32 v[{d.N}:{d.N+1}], v{d.a} offset0:{NS//256+1} offset1:{NS//256+2}")
            A(f"ds_read_b32 v{d.N+2}, v{d.a} offset:{NS+768}")
        def d_ad(d):
            A(f"v_cmp_ne_u32 {d.m}, 0, v{d.e+1}")
            A(f"v_bfe_u32 v{d.ta}, v{d.e+1}, 1, 4")
            A(f"v_add_u32 v{d.ta}, v{d.ta}, v{d.pos}")
            A(f"v_lshl_add_u32 v{d.a}, v{d.a}, 5, v{d.pos}")
        def d_math(d):
            for c in range(3):
                A(f"v_sub_f32 v{d.N+c}, v{d.N+c}, v{d.P+c}")
            A(f"v_cvt_pk_bf16_f32 v{d.e}, 1.0, v{d.N}")
            A(f"v_cvt_pk_bf16_f32 v{d.e+1}, v{d.N+1}, v{d.N+2}")
            A(f"v_dot2_f32_bf16 v{d.N}, v{d.e}, v{d.e}, -1.0")
            A(f"v_dot2_f32_bf16 v{d.N}, v{d.e+1}, v{d.e+1}, v{d.N}")
            A(f"s_mov_b64 exec, {d.m}")
            A(f"ds_write_b16 v{d.ta}, v{V1B} offset:{OH}")
            A(f"ds_write_b64 v{d.a}, v[{d.e}:{d.e+1}] offset:8")
            A(f"v_mul_f32 v{d.N}, {NLOG2E}, v{d.N}")
            A(f"v_cvt_pk_bf16_f32 v{d.N}, v{d.N}, v{d.N}")
            A(f"ds_write_b16 v{d.pos}, v{d.N} offset:4")
            A("s_mov_b64 exec, -1")
        if G:
            A("L2_secG:")
            for k in range(4):
                if k: A(f"v_xor_b32 v51, {64*k}, v50")
                for nt in range(3):
                    h = GH[nt][k]
                    A(f"ds_read_b128 v[{h}:{h+3}], v{51 if k else 50} offset:{AL+4096*nt}")
        A(f"""
        s_waitcnt lgkmcnt({12 if G else 0})
        v_add_u32_dpp v{INC}, v{EXC}, v{EXC} row_shr:1 row_mask:0xf bank_mask:0xf bound_ctrl:0
        v_add_u32_dpp v{INC}, v{INC}, v{INC} row_shr:2 row_mask:0xf bank_mask:0xf bound_ctrl:0
        v_add_u32_dpp v{INC}, v{INC}, v{INC} row_shr:4 row_mask:0xf bank_mask:0xf bound_ctrl:0
        v_add_u32_dpp v{INC}, v{INC}, v{INC} row_shr:8 row_mask:0xf bank_mask:0xf bound_ctrl:0
        v_add_u32_dpp v{INC}, v{INC}, v{INC} row_bcast:15 row_mask:0xa bank_mask:0xf
        v_add_u32_dpp v{INC}, v{INC}, v{INC} row_bcast:31 row_mask:0xc bank_mask:0xf
        v_sub_u32 v{EXC}, v{INC}, v{EXC}
        """)
        for j in range(3):
            A(f"ds_bpermute_b32 v{RA+j}, v{RA+j}, v{EXC}")
        A(f"""
        v_readlane_b32 s80, v{INC}, 40
        v_readlane_b32 s81, v{INC}, 16
        v_readlane_b32 s82, v{INC}, 24
        s_cmp_gt_u32 s80, {CAPT*512}
        s_cbranch_scc1 L2_goslow
        s_add_u32 s83, s80, 1023
        s_lshr_b32 s83, s83, 10
        s_lshl_b32 s83, s83, 9
        s_add_u32 s79, s80, 511
        s_andn2_b32 s79, s79, 511
        s_cmp_eq_u32 s26, 0
        s_cselect_b32 s76, 0, s83
        s_cselect_b32 s77, s83, s79
        v_cmp_ge_u32 vcc, s76, v{INC}
        s_min_u32 s78, s83, s80
        s_cmp_lt_u32 s82, s78
        s_cselect_b32 s73, 1, s29
        s_cmp_gt_u32 s81, s83
        s_cselect_b32 s73, 1, s73
        {"s_mov_b32 s73, 1" if "fixed" in XF_ else ""}
        s_min_u32 s78, s77, s80
        s_bcnt1_i32_b64 s28, vcc
        s_add_u32 s79, s28, 7
        s_cmp_lg_u32 s73, 0
        v_readlane_b32 s81, v{INC}, s79
        s_cbranch_scc1 L2_fixed{sx}
        s_andn2_b32 s82, s81, 511
        s_min_u32 s82, s82, s77
        s_cmp_eq_u32 s27, 1
        s_cselect_b32 s94, s76, s82
        L2_fixed_done{sx}:
        """)
        p2(range(3), 2)
        A(f"""
        s_cmp_lg_u32 s90, 0
        s_cbranch_scc1 L2_ov2{sx}
        L2_ov2_done{sx}:
        v_add_u32 v27, s94, v{VL}
        s_mov_b32 s79, {TAB}
        """)
        if not G: lcset()
        if G:
            A(f"""
            s_waitcnt vmcnt(0)
            ds_write2st64_b32 v29, v{NSV}, v{NSV+1} offset0:{NS//256+1} offset1:{NS//256+2}
            ds_write_b32 v29, v{NSV+2} offset:{NS+768}
            """)
            X(int(os.environ.get("GPRE", "4")))
        A(f"""
        @stamp 5
        s_waitcnt vmcnt(0) lgkmcnt(0)
        s_barrier
        @stamp 6
        """)
        if not G: ixrd(27, 0)
        A(f"ds_read_b64 v[2:3], v{TID16}")
        A(f"ds_read_b64 v[4:5], v28")
        if not G:
            A(f"""
            s_cmp_eq_u32 s27, 0
            s_cbranch_scc1 L2_late0
            s_waitcnt lgkmcnt(2)
            """)
            dma()
            A("L2_late0:")
        A("@st d1")
        X(4)
        A("s_waitcnt lgkmcnt(1)")
        d_rd(DS[0])
        X(1)
        A(f"""
        s_cmp_ge_u32 s72, s80
        s_cbranch_scc1 L2_nod1{sx}
        s_waitcnt lgkmcnt(5)
        """)
        sv = ex[:]; ex.clear()
        d_rd(DS[1])
        ex.extend(sv)
        A(f"L2_nod1{sx}:")
        A("@st d2")
        A(f"v_cmp_ge_u32 vcc, s82, v{INC}")
        X(1)
        d_ad(DS[0])
        X(len(ex) - 6)
        A(f"""
        s_cmp_lg_u32 s73, 0
        s_cbranch_scc1 L2_chdone{sx}
        s_bcnt1_i32_b64 s83, vcc
        s_add_u32 s79, s83, 7
        v_readlane_b32 s64, v{INC}, s79
        s_andn2_b32 s65, s64, 511
        s_min_u32 s65, s65, s77
        v_cmp_ge_u32 vcc, s65, v{INC}
        s_mov_b32 s66, s82
        s_mov_b32 s67, s65
        s_bcnt1_i32_b64 s68, vcc
        s_add_u32 s79, s68, 7
        v_readlane_b32 s69, v{INC}, s79
        s_cmp_lt_u32 s69, s78
        s_cbranch_scc1 L2_chfix{sx}
        L2_chsel{sx}:
        s_cmp_eq_u32 s27, 1
        s_cselect_b32 s95, s66, s67
        s_cselect_b32 s28, s28, s83
        s_cmp_eq_u32 s27, 0
        s_cselect_b32 s94, s65, s94
        s_cselect_b32 s95, s77, s95
        s_cselect_b32 s28, s68, s28
        L2_chdone{sx}:
        @st d3
        """)
        X(2)
        A(f"""
        s_min_u32 s58, s95, s80
        s_sub_u32 s95, s95, s94
        s_lshr_b32 s95, s95, 9
        {"s_min_u32 s95, s95, 64" if "clamp" in XF_ else ""}
        s_lshl_b32 s79, s28, 2
        s_movk_i32 s81, -32
        v_add_u32 v{VL}, s94, v{VL}
        v_add_u32 v23, s79, v{CJ}
        """)
        X(2)
        A(f"""
        v_and_or_b32 v23, v23, s81, v{J4}
        v_min_u32 v23, 164, v23
        """)
        X(2)
        assert not ex
        A(f"""
        s_waitcnt lgkmcnt(0)
        ds_bpermute_b32 v{VLO}, v23, v{EXC}
        ds_bpermute_b32 v{VHI}, v23, v{INC}
        s_cmp_lg_u32 s27, 0
        s_cselect_b32 s79, 512, 0
        v_add_u32 v27, s79, v{VL}
        """)
        ixrd(27, 0)
        if G: lcset()
        A("@st d4")
        d_math(DS[0])
        A("@st d5")
        if G:
            A(f"s_mov_b32 s64, {NLOG2E}")
            A(f"s_mov_b32 s65, {NLOG2E}")
            for nt in range(3):
                for ab in range(2):
                    d = GD[2*nt+ab]
                    A(f"v_pk_mul_f32 v[{d}:{d+1}], v[{d}:{d+1}], s[64:65]")
                    A(f"v_pk_mul_f32 v[{d+2}:{d+3}], v[{d+2}:{d+3}], s[64:65]")
                o = 32 + 4 * nt
                for ab in range(2):
                    d = GD[2*nt+ab]
                    A(f"v_cvt_pk_bf16_f32 v{o+2*ab}, v{d}, v{d+1}")
                    A(f"v_cvt_pk_bf16_f32 v{o+2*ab+1}, v{d+2}, v{d+3}")
                A(f"ds_write_b128 v31, v[{o}:{o+3}] offset:{AL+4096*nt}")
        A(f"""
        s_cmp_ge_u32 s72, s80
        s_cbranch_scc1 L2_nod2
        """)
        d_ad(DS[1])
        d_math(DS[1])
        if G: A("s_branch L2_nod2")
        def ool():
            A(f"""
            L2_fixed{sx}:
            s_add_u32 s79, s27, 2
            s_sub_u32 s82, s27, 1
            s_cmp_eq_u32 s27, 0
            s_cselect_b32 s79, s79, s82
            s_mul_i32 s82, s26, 3
            s_add_u32 s79, s79, s82
            s_lshl_b32 s79, s79, 3
            s_add_u32 s28, s79, 1
            s_add_u32 s82, s79, 8
            v_readlane_b32 s94, v{INC}, s79
            v_readlane_b32 s95, v{INC}, s82
            s_min_u32 s95, s95, s80
            s_cmp_eq_u32 s94, s95
            s_cselect_b32 s82, 0, 511
            s_add_u32 s95, s95, s82
            s_andn2_b32 s94, s94, 511
            s_andn2_b32 s95, s95, 511
            s_branch L2_fixed_done{sx}
            L2_ov2{sx}:
            """)
            for j in (3, 4):
                A(f"ds_bpermute_b32 v{RA+j}, v{RA+j}, v{EXC}")
            p2((3, 4), 1)
            A(f"""
            s_branch L2_ov2_done{sx}
            L2_chfix{sx}:
            s_add_u32 s67, s64, 511
            s_andn2_b32 s67, s67, 511
            s_min_u32 s67, s67, s77
            s_add_u32 s68, s83, 8
            s_min_u32 s68, s68, 41
            s_add_u32 s79, s68, 7
            v_readlane_b32 s69, v{INC}, s79
            s_cmp_ge_u32 s69, s78
            s_cbranch_scc1 L2_chsel{sx}
            s_add_u32 s66, s81, 511
            s_andn2_b32 s66, s66, 511
            s_min_u32 s66, s66, s77
            s_add_u32 s83, s28, 8
            s_min_u32 s83, s83, 41
            s_add_u32 s79, s83, 7
            v_readlane_b32 s64, v{INC}, s79
            s_andn2_b32 s65, s64, 511
            s_min_u32 s65, s65, s77
            s_add_u32 s67, s64, 511
            s_andn2_b32 s67, s67, 511
            s_min_u32 s67, s67, s77
            s_add_u32 s68, s83, 8
            s_min_u32 s68, s68, 41
            s_branch L2_chsel{sx}
            """)
        OOL.append(ool)
    section(False)
    A(f"""
    L2_nod2:
    @st d6
    s_mov_b32 s57, 0
    s_lshl_b32 s79, s28, 8
    s_add_u32 s79, s79, {AL0}
    s_sub_u32 s78, s79, 1024
    v_add_u32 v25, s79, v{CK}
    v_add_u32 v26, s78, v{CK}
    v_add_u32 v{VX}, s94, v{VX}
    v_lshlrev_b32 v22, 5, v23
    v_and_or_b32 v25, v25, v{MK}, v{B1}
    v_and_or_b32 v26, v26, v{MK}, v{B2}
    v_add3_u32 v{VSC}, v{VSC}, v22, s94
    v_xor_b32 v27, 64, v25
    v_xor_b32 v28, 64, v26
    s_cmp_gt_u32 s29, 1
    s_cbranch_scc1 L2_noz
    """)
    assert ZA & 64 == 0
    A(mf32(AC0, VZ, VZ, None))
    A(mf32(AC1, VZ, VZ, None))
    A("L2_noz:")
    A(f"""
    s_mov_b32 s64, 0x3e803e80
    s_mov_b32 s65, 0x3e803e80
    v_mov_b64 v[{ON}:{ON+1}], s[64:65]
    v_mov_b64 v[{ON+2}:{ON+3}], s[64:65]
    v_add_u32 v29, {MB}, v{TID16}
    s_movk_i32 s78, -56
    s_movk_i32 s79, 72
    v_mov_b64 v[{SF}:{SF+1}], 0
    v_mov_b64 v[{SF+2}:{SF+3}], 0
    v_mov_b64 v[{SF+4}:{SF+5}], 0
    v_mov_b64 v[{SF+6}:{SF+7}], 0
    s_waitcnt lgkmcnt(0)
    @st d7
    s_cmp_lg_u32 s27, 0
    s_barrier
    s_cbranch_scc1 L2_w1
    """)
    dma()
    ixrd(VL, 1)
    A(f"""
    L2_w1:
    @stamp 7
    ds_read_b64_tr_b16 v[{EXT}:{EXT+1}], v25
    ds_read_b64_tr_b16 v[{EXT+2}:{EXT+3}], v26
    ds_read_b128 v[{XF}:{XF+3}], v{VX}
    ds_read_b64_tr_b16 v[{EXT+4}:{EXT+5}], v27
    ds_read_b64_tr_b16 v[{EXT+6}:{EXT+7}], v28
    ds_write_b128 v29, v[{VZ}:{VZ+3}]
    s_mov_b64 exec, 1
    ds_add_u32 v{VZ}, v{V16} offset:{FLG}
    s_mov_b64 exec, -1
    """)
    A(mf32(E1, VZ, VZ, None))
    A(f"""
    v_cmp_le_u32 s[60:61], s94, v{VLO}
    v_cmp_ge_u32 s[62:63], s58, v{VHI}
    v_cmp_gt_u32 s[64:65], s58, v{VLO}
    v_cmp_lt_u32 s[66:67], s94, v{VHI}
    v_add_u32 v{VHI}, -16, v{VHI}
    v_and_b32 v{VLO}, 0xffffffc0, v{VLO}
    v_and_b32 v{VHI}, 0xffffffc0, v{VHI}
    v_add3_u32 v{VLO}, v{VLO}, v22, s78
    v_add3_u32 v{VHI}, v{VHI}, v22, s79
    v_add_u32 v{VL}, 1024, v{VL}
    s_mov_b32 s75, s95
    s_cmp_eq_u32 s27, 0
    s_cselect_b32 s80, {os.environ.get("PR0", "0")}, 4
    s_waitcnt vmcnt(0) lgkmcnt(0)
    s_cmp_eq_u32 s95, 0
    {"s_memrealtime s[100:101]" if DIAG else ""}
    s_cbranch_scc1 L2_done
    @stamp 8
    """)
    def a_reads():
        for i in range(4):
            A(f"ds_read_b128 v[{AF+4*i}:{AF+4*i+3}], v{VA} offset:{32*i}")
    a_reads()
    if "noprio" not in XF_:
        A("s_setprio 3")
    A(f"""
    s_waitcnt lgkmcnt(0)
    s_cmp_lt_u32 s95, 2
    s_cbranch_scc1 L2_nodma1
    """)
    dma()
    A("L2_nodma1:")
    A(mf32(T0, AF, ID, None))
    A(mf32(T0, AF+4, ID+4, T0))
    A(mf32(T0, XF, EXT, T0))
    A("s_nop 10")
    A.ins.append(I(".p2align 6"))
    A("L2_loop:")
    def run(ops, ins):
        for i, v in enumerate(ops):
            for x in ins.get(i, []):
                if callable(x): x()
                else: A(x)
            A(v)
    ex = lambda e, t: [f"v_exp_f32 v{e+i}, v{t+i}" for i in range(16)]
    rc = lambda e: [f"v_rcp_f32 v{e+i}, v{e+i}" for i in range(16)]
    mu = lambda e, t: [f"v_pk_mul_f32 v[{e+2*i}:{e+2*i+1}], v[{e+2*i}:{e+2*i+1}], v[{t+2*i}:{t+2*i+1}]" for i in range(8)]
    if "nopk" in XF_:
        mu = lambda e, t: [f"v_mul_f32 v{e+i}, v{e+i}, v{t+i}" for i in range(16)]
    def dma_next():
        if "nodma" in XF_: return
        A("s_cmp_lt_u32 s95, 3")
        A("s_cbranch_scc1 L2_nodma2")
        dma()
        A("L2_nodma2:")
    def prio():
        if "noprio" in XF_: return
        A(f"""
        s_cmp_gt_u32 s95, s80
        s_cbranch_scc1 L2_prd
        s_setprio 2
        s_cmp_eq_u32 s95, 4
        s_cbranch_scc1 L2_prd
        s_setprio 1
        s_cmp_eq_u32 s95, 3
        s_cbranch_scc1 L2_prd
        s_setprio 0
        L2_prd:
        """)
    run(ex(E0, T0), {0: [mf32(T1, AF+8, ID, None)], 3: [mf32(T1, AF+12, ID+4, T1)], 6: [mf32(T1, XF, EXT+4, T1)],
                     10: [smf(AC1, SF, E1, SI)], 14: [smf(AC1, SF+4, E1+8, SI)]})
    run(ex(E1, T1), {2: [mf32(E0, ON, ON, E0)],
                     6: [f"v_med3_i32 v{SF+6}, v{VSC}, v{VLO}, v{VHI}"] +
                        [f"ds_read_b64_tr_b16 v[{SF+2*r}:{SF+2*r+1}], v{SF+6} offset:{16*r}" for r in range(4)],
                     10: [f"ds_read_b128 v[{XF}:{XF+3}], v{VX} offset:512", lambda: ixrd(VL, 0)],
                     14: [f"v_add_u32 v{VX}, s88, v{VX}", f"v_add_u32 v{VSC}, s88, v{VSC}", f"v_add_u32 v{VL}, s88, v{VL}"]})
    run(rc(E0), {2: [mf32(E1, ON, ON, E1)], 4: ([] if "nowait" in XF_ else ["s_waitcnt vmcnt(0)"]) + [a_reads]})
    run(mu(E0, T0), {})
    run(rc(E1), {0: ["s_waitcnt lgkmcnt(0)", mf32(T0, AF, ID, None)], 1: [dma_next], 3: [mf32(T0, AF+4, ID+4, T0)], 6: [mf32(T0, XF, EXT, T0)],
                 10: [smf(AC0, SF, E0, SI)], 14: [smf(AC0, SF+4, E0+8, SI)]})
    run(mu(E1, T1), {2: [prio], 6: ["s_sub_u32 s95, s95, 1", "s_cmp_lg_u32 s95, 0"]})
    A("s_cbranch_scc1 L2_loop")
    if "noprio" not in XF_:
        A("s_setprio 3")
    A(smf(AC1, SF, E1, SI))
    A(smf(AC1, SF+4, E1+8, SI))
    A("L2_done:")
    A("@stamp 9")
    FA, WV = 0, 8
    A(f"""
    s_cmp_lg_u32 s29, 0
    s_cbranch_scc1 L2_slownext
    L2_flush:
    v_mov_b32 v5, 0
    L2_flw:
    ds_read_b32 v6, v5 offset:{FLG}
    v_lshrrev_b32 v4, 5, v{LANE}
    v_and_b32 v7, 31, v{LANE}
    s_lshl_b32 s72, s25, 7
    s_add_u32 s76, s72, {WX}
    v_lshl_add_u32 v10, v7, 1, s76
    v_mov_b64 v[{WV}:{WV+1}], 0
    s_mul_i32 s77, s28, {MSTR}
    s_add_u32 s77, s77, s72
    s_add_u32 s77, s77, {MB - MSTR}
    ds_read_u16_d16_hi v{WV}, v10
    ds_read_u16_d16_hi v{WV+1}, v10 offset:64
    v_lshl_add_u32 v7, v7, 2, s77
    v_subrev_u32 v4, s28, v4
    s_movk_i32 s76, {MSTR}
    """)
    for q in range(4):
        if q: A(f"v_add_u32 v{FA+q}, {2*q}, v4")
        A(f"v_and_b32 v{FA+q}, 7, v{FA+q if q else 4}")
        A(f"v_mad_u32_u24 v{FA+q}, v{FA+q}, s76, v7")
    A(f"""
    s_and_b32 s56, s60, s62
    s_and_b32 s58, s64, s66
    s_andn2_b32 s58, s58, s56
    s_cmp_lg_u32 s73, 0
    s_cselect_b32 s56, -1, s56
    s_cselect_b32 s58, 0, s58
    s_mov_b32 s76, {f2u(DELTA)}
    s_waitcnt lgkmcnt(0)
    v_cmp_gt_u32 vcc, {12*16}, v6
    s_cbranch_vccnz L2_flw
    """)
    for q in range(4): A(f"v_mul_f32 v{AC0+4*q}, s76, v{AC0+4*q}")
    for q in range(4): A(f"v_mul_f32 v{AC1+4*q}, s76, v{AC1+4*q}")
    for q in range(4): A(f"v_cvt_pk_bf16_f32 v{AC0+4*q}, v{AC0+4*q}, v{AC1+4*q}")
    bit = lambda sl: (sl & 3) + 16 * (sl >> 2)
    for q in range(4):
        A(f"s_bfe_i32 exec_lo, s56, {0x10000 + bit(2*q)}")
        A(f"s_bfe_i32 exec_hi, s56, {0x10000 + bit(2*q+1)}")
        A(f"ds_write_b32 v{FA+q}, v{AC0+4*q}")
    for q in range(4):
        A(f"s_bfe_i32 exec_lo, s58, {0x10000 + bit(2*q)}")
        A(f"s_bfe_i32 exec_hi, s58, {0x10000 + bit(2*q+1)}")
        A(f"ds_pk_add_bf16 v{FA+q}, v{AC0+4*q}")
    A(f"""
    s_mov_b64 exec, 1
    ds_add_u32 v5, v{V16} offset:{FLG}
    s_mov_b64 exec, -1
    s_setprio 0
    @stamp 10
    """)
    for q in range(4):
        a, b = AC0 + 4*q, AC1 + 4*q
        A(f"v_mul_f32 v{a+1}, v{a+1}, v{WV}")
        A(f"v_pk_mul_f32 v[{a+2}:{a+3}], v[{a+2}:{a+3}], v[{WV}:{WV+1}] op_sel_hi:[1,0]")
        A(f"v_fmac_f32 v{a+1}, v{b+1}, v{WV+1}")
        A(f"v_pk_fma_f32 v[{a+2}:{a+3}], v[{b+2}:{b+3}], v[{WV}:{WV+1}], v[{a+2}:{a+3}] op_sel:[0,1,0]")
    A(f"""
    v_bfe_u32 v4, v{LANE}, 3, 1
    v_lshrrev_b32 v6, 4, v{LANE}
    v_bfrev_b32 v6, v6
    v_lshrrev_b32 v6, 30, v6
    v_lshl_add_u32 v4, v4, 2, v6
    """)
    for q in (0, 2):
        for c in (1, 2, 3):
            A(f"v_permlane16_swap_b32 v{AC0+4*q+c}, v{AC0+4*q+4+c}")
    A(f"""
    s_lshl_b32 s76, s24, 7
    s_add_u32 s76, s76, {PP}
    v_lshl_add_u32 v6, v4, 4, s76
    v_subrev_u32 v4, s28, v4
    """)
    for q in (0, 2):
        a = AC0 + 4*q
        A(f"v_add_f32 v{a+1}, v{a+1}, v{a+5}")
        A(f"v_pk_add_f32 v[{a+2}:{a+3}], v[{a+2}:{a+3}], v[{a+6}:{a+7}]")
    A(f"v_and_b32 v4, 7, v4")
    A(f"v_add_u32 v{AC0}, s28, v4")
    for c in (1, 2, 3):
        A(f"v_add_f32_dpp v{AC0+c}, v{AC0+c}, v{AC0+c} row_ror:8 row_mask:0xf bank_mask:0x3")
    for c in (1, 2, 3):
        A(f"v_add_f32_dpp v{AC0+c}, v{AC0+8+c}, v{AC0+8+c} row_ror:8 row_mask:0xf bank_mask:0xc")
    for m in ("row_half_mirror", "quad_perm:[1,0,3,2]", "quad_perm:[2,3,0,1]"):
        for c in (1, 2, 3):
            A(f"v_add_f32_dpp v{AC0+c}, v{AC0+c}, v{AC0+c} {m} row_mask:0xf bank_mask:0xf")
    A(f"""
    s_mov_b32 exec_lo, 0x01010101
    s_mov_b32 exec_hi, 0x01010101
    ds_write_b128 v6, v[{AC0}:{AC0+3}]
    s_mov_b64 exec, 1
    ds_add_rtn_u32 v4, v5, v{V16} offset:{FL3}
    s_mov_b64 exec, -1
    s_waitcnt lgkmcnt(0)
    v_readfirstlane_b32 s56, v4
    s_cmp_lg_u32 s27, 0
    s_cbranch_scc1 L2_other
    """)
    W, H, D = 0, 64, 112
    A(f"""
    v_lshlrev_b32 v140, 4, v{LANE}
    s_lshl_b32 s72, s24, 15
    v_and_b32 v141, 15, v{LANE}
    v_lshrrev_b32 v142, 4, v{LANE}
    v_lshlrev_b32 v143, 4, v142
    v_lshl_add_u32 v144, v141, 8, v143
    v_add_u32 v146, 4096, v144
    v_add_u32 v147, 8192, v144
    """)
    for k in range(4):
        A(f"s_add_u32 s{78+k}, s24, {k}")
        A(f"s_and_b32 s{78+k}, s{78+k}, 3")
        A(f"s_lshl_b32 s{82+k}, s{78+k}, 6")
        A(f"s_lshl_b32 s{78+k}, s{78+k}, 10")
        A(f"s_add_u32 s{78+k}, s{78+k}, s72")
        A(f"s_add_u32 s{86+k}, s{78+k}, 16384")
    for k in range(4):
        A(f"buffer_load_dwordx4 v[{W+4*k}:{W+4*k+3}], v140, s[48:51], s{78+k} offen")
        A(f"buffer_load_dwordx4 v[{W+32+4*k}:{W+32+4*k+3}], v140, s[48:51], s{86+k} offen")
        for nt in range(3):
            A(f"buffer_load_dwordx4 v[{H+16*nt+4*k}:{H+16*nt+4*k+3}], v{(144,146,147)[nt]}, s[52:55], s{82+k} offen")
    A("s_add_u32 s76, s72, 4096")
    A("s_add_u32 s77, s72, 20480")
    for k in range(4):
        A(f"buffer_load_dwordx4 v[{W+16+4*k}:{W+16+4*k+3}], v140, s[48:51], s76 offen offset:{1024*k}")
        A(f"buffer_load_dwordx4 v[{W+48+4*k}:{W+48+4*k+3}], v140, s[48:51], s77 offen offset:{1024*k}")
    A(f"""
    v_mov_b32 v145, {MB}
    v_mul_u32_u24 v148, {MSTR}, v141
    v_add3_u32 v145, v145, v148, v143
    s_add_u32 s60, s20, s71
    s_addc_u32 s61, s21, 0
    s_mov_b32 s62, s54
    s_mov_b32 s63, 0x00020000
    """)
    for k in range(4):
        A(f"s_waitcnt vmcnt({8 + 5*(3-k)})")
        for nt in range(3):
            for ab in range(2):
                d = D + 8 * nt + 4 * ab
                A(mf16(d, W+32*ab+4*k, H+16*nt+4*k, d if k else None))
    MF = [0, 32, 148]
    A(f"""
    s_mov_b32 s78, {NLOG2E}
    s_mov_b32 s79, {NLOG2E}
    s_mov_b32 s80, {NLN2}
    s_mov_b32 s81, {NLN2}
    """)
    for i in range(12):
        A(f"v_pk_mul_f32 v[{D+2*i}:{D+2*i+1}], v[{D+2*i}:{D+2*i+1}], s[78:79]")
    for nt in range(3):
        h = H + 16 * nt
        for i in range(4):
            A(f"v_lshlrev_b32 v{h+4+2*i}, 16, v{h+i}")
            A(f"v_and_b32 v{h+5+2*i}, 0xffff0000, v{h+i}")
    A(f"""
    v_mov_b32 v140, 0
    s_waitcnt vmcnt(0)
    s_setprio 3
    L2_gsp:
    ds_read_b32 v141, v140 offset:{FLG}
    s_waitcnt lgkmcnt(0)
    v_cmp_ne_u32 vcc, {24*16}, v141
    s_cbranch_vccz L2_gspd
    s_sleep {os.environ.get("GSL", "1")}
    s_branch L2_gsp
    L2_gspd:
    @stamp 11
    """)
    for nt in range(3):
        for k in range(4):
            A(f"ds_read_b128 v[{MF[nt]+4*k}:{MF[nt]+4*k+3}], v145 offset:{nt*16*MSTR + 64*k}")
    def mm(nt):
        o = []
        for k in range(4):
            o.append(f"s_waitcnt lgkmcnt({11 - 4*nt - k})")
            for ab in range(2):
                d = D + 8 * nt + 4 * ab
                o.append(mf16(d, W+16+32*ab+4*k, MF[nt]+4*k, d))
        return o
    def fin(nt):
        d = D + 8 * nt; tmp = MF[nt]; h = H + 16 * nt
        o = []
        o += [f"v_exp_f32 v{tmp+i}, v{d+i}" for i in range(8)]
        o += [f"v_pk_add_f32 v[{tmp+2*i}:{tmp+2*i+1}], v[{tmp+2*i}:{tmp+2*i+1}], 1.0 op_sel_hi:[1,0]" for i in range(4)]
        o += [f"v_rcp_f32 v{tmp+i}, v{tmp+i}" for i in range(8)]
        o += [f"v_pk_mul_f32 v[{tmp+2*i}:{tmp+2*i+1}], v[{tmp+2*i}:{tmp+2*i+1}], v[{d+2*i}:{d+2*i+1}]" for i in range(4)]
        o += [f"v_pk_fma_f32 v[{tmp+2*i}:{tmp+2*i+1}], v[{tmp+2*i}:{tmp+2*i+1}], s[80:81], v[{h+4+2*i}:{h+5+2*i}]" for i in range(4)]
        o += [f"v_cvt_pk_bf16_f32 v{h+i}, v{tmp+2*i}, v{tmp+2*i+1}" for i in range(4)]
        o += [f"buffer_store_dwordx4 v[{h}:{h+3}], v{(144,146,147)[nt]}, s[60:63], s82 offen"]
        return o
    for x in mm(0): A(x)
    for x in mm(1): A(x)
    f0 = fin(0); m2 = mm(2)
    for i, x in enumerate(f0):
        A(x)
        if i < 8 and i % 2 == 1:
            for y in m2[3*(i//2):3*(i//2)+3]: A(y)
    for x in fin(1): A(x)
    for x in fin(2): A(x)
    A(f"""
    @wait
    L2_other:
    @stamp 13
    @stamp 14 real
    @dump 8
    s_mov_b64 exec, -1
    {"s_cmp_eq_u32 s24, 11" if DIAG else ""}
    {"s_cbranch_scc1 L2_diag" if DIAG else ""}
    s_cmp_lg_u32 s56, {11*16}
    s_cbranch_scc1 L2_exit
    v_add_u32 v1, 1, v{LANE}
    v_and_b32 v4, 7, v1
    v_lshlrev_b32 v4, 4, v4
    v_add_u32 v4, {PP}, v4
    v_lshlrev_b32 v5, 2, v1
    """)
    for w in range(12):
        A(f"ds_read_b128 v[{20+4*w}:{23+4*w}], v4 offset:{128*w}")
    A(f"ds_read2st64_b32 v[12:13], v5 offset0:{NS//256+1} offset1:{NS//256+2}")
    A(f"ds_read_b32 v14, v5 offset:{NS+768}")
    A(f"""
    s_mul_i32 s72, s3, 6
    s_add_u32 s73, s72, 2560000
    s_add_u32 s60, s20, s73
    s_addc_u32 s61, s21, 0
    s_mul_i32 s62, s70, 6
    s_mov_b32 s63, 0x00020000
    v_mul_u32_u24 v2, 6, v{LANE}
    v_mov_b64 v[16:17], 0
    v_mov_b64 v[18:19], 0
    s_mov_b32 s76, {f2u(-0.6931471805599453 * DELTA)}
    """)
    for w in range(12):
        A(f"s_waitcnt lgkmcnt({13-w})")
        A(f"v_cmp_eq_u32 vcc, v{20+4*w}, v1")
        A(f"s_mov_b64 exec, vcc")
        A(f"v_add_f32 v17, v17, v{21+4*w}")
        A(f"v_pk_add_f32 v[18:19], v[18:19], v[{22+4*w}:{23+4*w}]")
        A(f"s_mov_b64 exec, -1")
    A(f"""
    s_waitcnt lgkmcnt(0)
    v_fma_f32 v12, v17, s76, v12
    v_fma_f32 v13, v18, s76, v13
    v_fma_f32 v14, v19, s76, v14
    v_cvt_pk_bf16_f32 v12, v12, v13
    v_cvt_pk_bf16_f32 v14, v14, v14
    buffer_store_short v12, v2, s[60:63], 0 offen
    buffer_store_short_d16_hi v12, v2, s[60:63], 0 offen offset:2
    buffer_store_short v14, v2, s[60:63], 0 offen offset:4
    L2_exit:
    s_endpgm
    """)
    if DIAG:
        A(f"""
        L2_diag:
        s_memrealtime s[92:93]
        s_add_u32 s76, s22, {DBG1_OFF}
        s_addc_u32 s77, s23, 0
        s_load_dwordx2 s[78:79], s[76:77], 0
        s_waitcnt lgkmcnt(0)
        """)
        A({"k2": "s_sub_u32 s80, s92, s98", "k1k2": "s_sub_u32 s80, s98, s78", "k1": "s_sub_u32 s80, s79, s78", "pro": "s_sub_u32 s80, s100, s98", "0": "s_mov_b32 s80, 0"}[DIAG])
        A(f"""
        s_min_u32 s80, s80, 4000
        s_add_u32 s80, s80, 150
        s_mov_b32 s81, 0
        L2_dl:
        s_sleep 2
        s_memrealtime s[94:95]
        s_add_u32 s81, s81, 1
        s_waitcnt lgkmcnt(0)
        s_sub_u32 s82, s94, s92
        s_cmp_gt_u32 s81, 2000
        s_cbranch_scc1 L2_exit2
        s_cmp_lt_u32 s82, s80
        s_cbranch_scc1 L2_dl
        L2_exit2:
        s_endpgm
        """)
    section(True)
    for f in OOL: f()
    A(f"""
    L2_spec:
    v_lshlrev_b32 v30, 4, v{LANE}
    s_cmp_eq_u32 s24, 11
    s_cbranch_scc1 L2_spec2
    s_add_u32 s32, s14, 65536
    s_addc_u32 s33, s15, 0
    s_mov_b32 m0, {WR}
    v_and_b32 v31, 16, v{LANE}
    v_lshlrev_b32 v31, 2, v31
    v_xor_b32 v31, v31, v30
    s_mov_b32 exec_hi, 0
    global_load_lds_dwordx4 v31, s[32:33]
    s_mov_b64 exec, -1
    s_branch L2_batch
    L2_spec2:
    s_mov_b32 m0, {WX}
    s_mov_b64 exec, 0xffff
    global_load_lds_dwordx4 v30, s[16:17]
    s_mov_b64 exec, -1
    s_branch L2_batch
    L2_ov1:
    s_cbranch_vccz L2_nolost
    v_mov_b32 v1, 0x100000
    ds_write_b32 v{VZ}, v1 offset:{CNT}
    L2_nolost:
    """)
    p1((3, 4)); pL((3, 4))
    A("s_branch L2_ov1_done")
    A(f"""
    L2_slownext:
    s_mov_b32 s29, 1
    s_add_u32 s30, s30, 768
    s_cmp_ge_u32 s30, 320000
    s_cbranch_scc1 L2_flush
    L2_goslow:
    s_add_u32 s29, s29, 1
    s_waitcnt vmcnt(0) lgkmcnt(0)
    s_barrier
    v_lshrrev_b32 v1, 4, v{TID16}
    v_add_u32 v1, s30, v1
    v_min_u32 v3, 319999, v1
    v_lshlrev_b32 v4, 2, v3
    v_lshlrev_b32 v3, 1, v3
    global_load_dword v7, v4, s[12:13]
    global_load_dword v8, v4, s[10:11]
    global_load_ushort v6, v3, s[8:9]
    s_mov_b32 s73, 320000
    s_mov_b32 s76, 0x05040100
    v_cmp_gt_u32 s[60:61], s73, v1
    s_waitcnt vmcnt(0)
    v_subrev_u32 v7, s3, v7
    v_cmp_gt_u32 s[62:63], s70, v7
    v_lshl_add_u32 v7, v8, 6, v7
    v_lshl_add_u32 v7, v7, 2, 4
    v_lshlrev_b32 v6, 16, v6
    v_mul_f32 v6, {NLOG2E}, v6
    v_cvt_pk_bf16_f32 v6, v6, v6
    v_perm_b32 v7, v6, v7, s76
    s_and_b64 s[60:61], s[60:61], s[62:63]
    v_cndmask_b32 v2, 0, v7, s[60:61]
    v_lshrrev_b32 v5, 8, v8
    v_mov_b64 v[6:7], 0
    v_mov_b64 v[8:9], 0
    v_mov_b32 v3, 0
    v_mov_b32 v4, 0
    s_branch L2_batch
    """)
    A.check_all_edges()
    return A
```

```python
import sys, os
from asmlib import Asm, I

NAME = "gather_scatter__cheap_equivariant_egnn__graph"
NB = 256
NCH = 96
CHE = 3336
ROWB = (NCH + 1) * 128
OV_OFF = 0
REC_OFF = NCH * 128
BT_OFF = int(os.environ.get('BTO', '12')) << 20
PK_OFF = 16 << 20
WS_SIZE = 32 << 20
NGEMM = 157
NWG1 = NCH + NGEMM + 3
LDS1 = 65536
NLOG2E = 0xBFB8AA3B
NLN2 = 0xBF317218
CSTR = 144
KOV = 256 * CSTR
KDUM = KOV + 128
KCNT = KDUM + 128
OVCAP = 16

def mf32(d, a, b, c):
    cs = "0" if c is None else f"v[{c}:{c+15}]"
    return f"v_mfma_f32_32x32x16_bf16 v[{d}:{d+15}], v[{a}:{a+3}], v[{b}:{b+3}], {cs}"
def smf(d, a, b, ix):
    return f"v_smfmac_f32_32x32x32_bf16 v[{d}:{d+15}], v[{a}:{a+3}], v[{b}:{b+7}], v{ix}"
def mf16(d, a, b, c):
    cs = "0" if c is None else f"v[{c}:{c+3}]"
    return f"v_mfma_f32_16x16x32_bf16 v[{d}:{d+3}], v[{a}:{a+3}], v[{b}:{b+3}], {cs}"

def srd(A, r, lo, hi, size, add=None):
    if add is None:
        A(f"s_mov_b32 s{r}, s{lo}")
        A(f"s_mov_b32 s{r+1}, s{hi}")
    else:
        A(f"s_add_u32 s{r}, s{lo}, {add}")
        A(f"s_addc_u32 s{r+1}, s{hi}, 0")
    A(f"s_mov_b32 s{r+2}, {size}")
    A(f"s_mov_b32 s{r+3}, 0x00020000")

STAMP = bool(os.environ.get("STAMP"))
XF_ = set(os.environ.get("X", "").split(","))
DBG1_OFF = 20 << 20
DBG2_OFF = 24 << 20
def stamp(A, reg, real=False):
    if not STAMP: return
    A(f"s_mem{'real' if real else ''}time s[96:97]")
    A("s_waitcnt lgkmcnt(0)")
    A(f"s_mov_b32 s{reg}, s96")
def dump(A, regs, wslo, off, wreg, vt=0):
    if not STAMP: return
    A(f"s_mov_b64 exec, -1")
    A(f"v_mov_b32 v{vt}, 0")
    for i, r in enumerate(regs):
        A(f"v_writelane_b32 v{vt}, s{r}, {i}")
    A(f"v_mbcnt_lo_u32_b32 v{vt+1}, -1, 0")
    A(f"s_lshl_b32 s96, s2, 4")
    A(f"s_add_u32 s96, s96, s{wreg}")
    A(f"s_lshl_b32 s96, s96, 6")
    A(f"s_add_u32 s96, s96, {off}")
    A(f"v_lshl_add_u32 v{vt+1}, v{vt+1}, 2, s96")
    A(f"s_mov_b64 exec, 0xffff")
    A(f"global_store_dword v{vt+1}, v{vt}, s[{wslo}:{wslo+1}]")

SSET = os.environ.get("SSET")
def mk_macro(regs, wslo, off, wreg, named=False):
    def macro(A, t):
        if t[0] == "stamp":
            i = int(t[1])
            if named and SSET and 2 <= i <= 11:
                names = SSET.split(",")
                if str(i) in names: stamp(A, regs[2 + names.index(str(i))])
                return
            stamp(A, regs[i], len(t) > 2)
        elif t[0] == "st":
            if SSET and t[1] in SSET.split(","): stamp(A, regs[2 + SSET.split(",").index(t[1])])
        elif t[0] == "wait":
            if STAMP: A("s_waitcnt vmcnt(0)")
        elif t[0] == "dump": dump(A, regs, wslo, off, wreg, int(t[1]) if len(t) > 1 else 0)
    return macro

DIAG = os.environ.get("DIAG")
DG1 = """s_memrealtime s[82:83]
    s_waitcnt lgkmcnt(0)
    v_mov_b32 v60, s80
    v_mov_b32 v61, s82
    s_lshl_b32 s84, s2, 3
    v_mov_b32 v62, s84
    v_add_u32 v62, %d, v62
    global_store_dwordx2 v62, v[60:61], s[20:21]""" % DBG1_OFF if DIAG else ""
def gen_k1():
    A = Asm()
    A.macro = mk_macro(list(range(60, 72)), 20, DBG1_OFF, 23)
    PF = os.environ.get("PFL", "nt").replace("_", " ")
    NR = 2 if "prec" in XF_ else 0
    A("k1_kernel:")
    A(f"""
    s_load_dwordx16 s[4:19], s[0:1], 0
    s_load_dwordx2 s[20:21], s[0:1], 80
    s_cmp_ge_u32 s2, {NWG1}
    s_cbranch_scc1 L1_exit
    {"s_sleep " + os.environ["K1SL"] if "K1SL" in os.environ else ""}
    {"s_memrealtime s[80:81]" if DIAG else ""}
    @stamp 0 real
    @stamp 1
    v_lshrrev_b32 v2, 6, v0
    v_lshlrev_b32 v1, 4, v0
    s_cmp_ge_u32 s2, {NCH}
    v_readfirstlane_b32 s23, v2
    s_cbranch_scc1 L1_gemm
    s_mul_i32 s3, s2, {CHE*4}
    s_add_u32 s22, s3, {CHE*4}
    s_min_u32 s22, s22, 1280000
    v_add_u32 v3, s3, v1
    v_lshrrev_b32 v5, 1, v3
    v_cmp_gt_u32 s[36:37], s22, v3
    v_mov_b64 v[24:25], 0
    v_mov_b64 v[26:27], 0
    s_waitcnt lgkmcnt(0)
    s_mov_b64 exec, s[36:37]
    s_cbranch_execz L1_nold
    global_load_dwordx4 v[8:11], v3, s[12:13]
    global_load_dwordx4 v[14:17], v3, s[10:11]
    global_load_dwordx2 v[20:21], v5, s[8:9]
    L1_nold:
    s_mov_b64 exec, -1
    v_lshlrev_b32 v2, 3, v0
    ds_write_b64 v2, v[24:25] offset:32768
    ds_write_b128 v1, v[24:27]
    ds_write_b128 v1, v[24:27] offset:16384
    v_mov_b32 v23, 33
    """)
    assert KCNT + 257 * 4 <= 32768 + 8192
    srd(A, 24, 20, 21, REC_OFF + NB * ROWB)
    A(f"""
    v_lshrrev_b32 v28, 3, v0
    v_and_b32 v29, 7, v0
    v_lshlrev_b32 v29, 4, v29
    v_mul_u32_u24 v30, {CSTR}, v28
    v_mul_u32_u24 v28, {ROWB}, v28
    v_add_u32 v28, v28, v29
    v_add_u32 v30, v30, v29
    s_lshl_b32 s31, s2, 7
    s_add_u32 s32, s31, {REC_OFF}
    s_add_u32 s33, s32, {128*ROWB}
    s_mov_b32 s38, 429497
    s_movk_i32 s39, 625
    s_mov_b32 s40, {NLOG2E}
    s_mov_b32 s41, {NLOG2E}
    s_mov_b32 s42, 0x05040100
    s_mov_b32 s43, 0x07060100
    s_movk_i32 s44, {24*33}
    {f"buffer_store_dwordx4 v[24:27], v28, s[24:27], s32 offen {PF}" if NR else ""}
    {f"buffer_store_dwordx4 v[24:27], v28, s[24:27], s33 offen {PF}" if NR else ""}
    s_waitcnt lgkmcnt(0)
    s_barrier
    @stamp 2
    s_mov_b64 exec, s[36:37]
    s_cbranch_execz L1_skip
    s_waitcnt vmcnt({2+NR})
    @stamp 3
    """)
    for j in range(4):
        A(f"v_mul_u32_u24 v{32+j}, s38, v{8+j}")
        A(f"v_lshrrev_b32 v{32+j}, 24, v{32+j}")
        A(f"v_lshlrev_b32 v{38+j}, 2, v{32+j}")
        A(f"ds_add_rtn_u32 v{44+j}, v{38+j}, v23 offset:{KCNT}")
    for j in range(4):
        A(f"v_mad_u32_u24 v{48+j}, v{32+j}, s39, -1")
        A(f"v_ashrrev_i32 v{48+j}, 4, v{48+j}")
        A(f"v_sub_u32 v{8+j}, v{8+j}, v{48+j}")
        A(f"v_mul_u32_u24 v{32+j}, {CSTR}, v{32+j}")
    A(f"s_waitcnt vmcnt({1+NR})")
    for j in range(4):
        A(f"v_lshlrev_b32 v{14+j}, 6, v{14+j}")
        A(f"v_add_lshl_u32 v{8+j}, v{14+j}, v{8+j}, 2")
    A(f"""
    s_waitcnt vmcnt({NR})
    v_lshlrev_b32 v48, 16, v20
    v_and_b32 v49, 0xffff0000, v20
    v_lshlrev_b32 v50, 16, v21
    v_and_b32 v51, 0xffff0000, v21
    v_pk_mul_f32 v[48:49], v[48:49], s[40:41]
    v_pk_mul_f32 v[50:51], v[50:51], s[40:41]
    v_cvt_pk_bf16_f32 v20, v48, v49
    v_cvt_pk_bf16_f32 v21, v50, v51
    """)
    for j in range(4):
        A(f"v_perm_b32 v{14+j}, v{20+j//2}, v{8+j}, s{42+(j&1)}")
    A(f"""
    s_waitcnt lgkmcnt(0)
    v_max3_u32 v50, v44, v45, v46
    v_max_u32 v50, v50, v47
    v_cmp_le_u32 vcc, s44, v50
    s_cbranch_vccnz L1_ovf
    L1_ovf_done:
    """)
    for j in range(4):
        A(f"v_bfe_u32 v{48+j}, v{44+j}, 3, 5")
        A(f"v_bfe_u32 v{44+j}, v{44+j}, 3, 2")
        A(f"v_lshl_add_u32 v{48+j}, v{48+j}, 2, v{32+j}")
        A(f"v_mad_i32_i24 v{44+j}, v{44+j}, -3, v{48+j}")
        A(f"ds_write_b32 v{48+j}, v{14+j}")
        A(f"ds_write_b8_d16_hi v{44+j}, v{8+j} offset:12")
    A(f"""
    L1_skip:
    s_mov_b64 exec, -1
    s_waitcnt lgkmcnt(0)
    @stamp 4
    s_barrier
    @stamp 5
    ds_read_b128 v[32:35], v30
    ds_read_b128 v[36:39], v30 offset:{128*CSTR}
    s_cmp_lg_u32 s23, 15
    s_cbranch_scc1 L1_noov
    {DG1}
    ds_read_b128 v[40:43], v29 offset:{KOV}
    s_mov_b64 exec, 0xff
    s_waitcnt lgkmcnt(0)
    buffer_store_dwordx4 v[40:43], v29, s[24:27], s31 offen
    s_mov_b64 exec, -1
    L1_noov:
    s_waitcnt lgkmcnt(1)
    buffer_store_dwordx4 v[32:35], v28, s[24:27], s32 offen
    s_waitcnt lgkmcnt(0)
    buffer_store_dwordx4 v[36:39], v28, s[24:27], s33 offen
    {"s_add_u32 s24, s24, 0x400000" if "rec2" in XF_ else ""}
    {"s_addc_u32 s25, s25, 0" if "rec2" in XF_ else ""}
    {"buffer_store_dwordx4 v[32:35], v28, s[24:27], s32 offen" if "rec2" in XF_ else ""}
    {"buffer_store_dwordx4 v[36:39], v28, s[24:27], s33 offen" if "rec2" in XF_ else ""}
    @stamp 6
    @wait
    @stamp 7
    @stamp 8 real
    @dump
    L1_exit:
    s_endpgm
    L1_ovf:
    v_mov_b32 v51, {256*4}
    v_mov_b32 v52, 8
    """)
    for j in range(4):
        A(f"""
        v_cmp_le_u32 vcc, s44, v{44+j}
        s_cbranch_vccz L1_ovf{j}
        s_mov_b64 exec, vcc
        ds_add_rtn_u32 v{44+j}, v51, v52 offset:{KCNT}
        v_lshrrev_b32 v50, 16, v{8+j}
        v_add_u32 v53, 4, v{38+j}
        v_lshl_or_b32 v50, v53, 6, v50
        v_mov_b32 v53, v{32+j}
        v_mov_b32 v{32+j}, {KDUM}
        s_waitcnt lgkmcnt(0)
        v_cmp_le_u32 vcc, {8*OVCAP}, v{44+j}
        v_min_u32 v{44+j}, {8*OVCAP}, v{44+j}
        v_add_u32 v{44+j}, {KOV}, v{44+j}
        ds_write2_b32 v{44+j}, v{14+j}, v50 offset0:0 offset1:1
        v_mov_b32 v{44+j}, 0
        s_cbranch_vccz L1_ovg{j}
        s_mov_b64 exec, vcc
        ds_write_b8 v53, v23 offset:15
        L1_ovg{j}:
        s_mov_b64 exec, s[36:37]
        L1_ovf{j}:
        """)
    A("s_branch L1_ovf_done")
    A(f"""
    L1_gemm:
    s_sub_u32 s3, s2, {NCH}
    v_and_b32 v2, 63, v0
    v_lshrrev_b32 v3, 4, v2
    v_and_b32 v4, 15, v2
    v_lshlrev_b32 v5, 2, v3
    v_xor_b32 v5, v5, v4
    v_lshlrev_b32 v5, 4, v5
    v_mov_b32 v8, v3
    s_lshl_b32 s41, s23, 11
    s_mov_b32 s53, s41
    s_add_u32 s54, s41, 1024
    s_cmp_eq_u32 s3, {NGEMM+1}
    s_cbranch_scc1 L1_perm
    L1_permd:
    v_lshl_add_u32 v5, v8, 8, v5
    s_lshl_b32 s42, s23, 2
    v_add_u32 v6, s42, v3
    v_xor_b32 v7, v6, v4
    v_and_b32 v7, 15, v7
    v_lshlrev_b32 v7, 4, v7
    v_lshl_add_u32 v6, v6, 8, v7
    s_lshl_b32 s46, s3, 14
    v_add_u32 v6, s46, v6
    s_lshl_b32 s45, s23, 10
    s_sub_u32 s22, s3, {NGEMM}
    s_and_b32 s40, s22, 1
    s_cmp_lt_u32 s3, {NGEMM}
    s_cselect_b32 s40, 1, s40
    s_lshl_b32 s40, s40, 15
    s_cmp_lt_u32 s22, 2
    s_waitcnt lgkmcnt(0)
    s_cselect_b32 s24, s18, s14
    s_cselect_b32 s25, s19, s15
    s_add_u32 s24, s24, s40
    s_addc_u32 s25, s25, 0
    s_mov_b32 m0, s45
    s_mov_b32 s26, 32768
    s_mov_b32 s27, 0x00020000
    """)
    srd(A, 28, 4, 5, 2560000)
    A(f"""
    buffer_load_dwordx4 v6, s[28:31], 0 offen lds
    s_add_u32 m0, s41, 16384
    s_and_b32 s43, s23, 3
    buffer_load_dwordx4 v5, s[24:27], s53 offen lds
    s_add_u32 m0, s41, 17408
    s_nop 0
    buffer_load_dwordx4 v5, s[24:27], s54 offen lds
    """)
    srd(A, 32, 20, 21, 16 << 20, add=BT_OFF)
    PF = os.environ.get("PFL", "nt").replace("_", " ")
    NP = 1 if "pbt" in XF_ else 0
    if NP: A(f"buffer_store_dwordx4 v[2:5], v6, s[32:35], 0 offen {PF}")
    A(f"""
    s_cmp_gt_u32 s23, 7
    s_cbranch_scc1 L1_help
    s_bfe_u32 s44, s23, 0x10002
    v_bfe_u32 v8, v2, 2, 2
    v_and_b32 v9, 3, v2
    v_xor_b32 v10, s43, v8
    v_lshlrev_b32 v10, 6, v10
    v_lshl_add_u32 v10, v8, 8, v10
    s_cmp_ge_u32 s3, {NGEMM}
    s_cbranch_scc1 L1_pack
    v_lshrrev_b32 v11, 5, v2
    v_lshl_add_u32 v10, v11, 11, v10
    v_bfe_u32 v12, v2, 4, 1
    v_and_b32 v13, 31, v2
    s_lshl_b32 s47, s44, 5
    v_add_u32 v14, s47, v13
    v_xor_b32 v15, v11, v14
    v_and_b32 v15, 15, v15
    v_lshlrev_b32 v15, 4, v15
    v_lshl_add_u32 v15, v14, 8, v15
    s_mov_b32 s48, {NLOG2E}
    s_mov_b32 s49, {NLOG2E}
    v_and_b32 v18, 1, v9
    v_lshrrev_b32 v19, 1, v9
    v_lshl_add_u32 v10, v18, 5, v10
    v_lshl_add_u32 v10, v12, 4, v10
    v_lshl_add_u32 v10, v19, 3, v10
    s_lshl_b32 s50, s43, 2
    v_lshl_add_u32 v17, v11, 1, s50
    v_xor_b32 v17, v17, v14
    v_and_b32 v17, 15, v17
    v_lshlrev_b32 v17, 4, v17
    v_lshl_add_u32 v17, v14, 8, v17
    v_xor_b32 v18, 16, v17
    """)
    for s in range(1, 8):
        A(f"v_xor_b32 v{20+s}, {s*32}, v15")
    A(f"""
    @stamp 2
    s_waitcnt vmcnt({NP})
    @stamp 3
    s_barrier
    @stamp 5
    """)
    for s in range(8):
        A(f"ds_read_b128 v[{64+4*s}:{64+4*s+3}], v{20+s if s else 15}")
        A(f"ds_read_b64_tr_b16 v[{32+4*s}:{32+4*s+1}], v10 offset:{16384+16*s*256}")
        A(f"ds_read_b64_tr_b16 v[{32+4*s+2}:{32+4*s+3}], v10 offset:{16384+(16*s+4)*256}")
    for s in range(8):
        A(f"s_waitcnt lgkmcnt({min(15, 3*(7-s))})")
        A(mf32(96, 32+4*s, 64+4*s, 96 if s else None))
    for i in range(8):
        A(f"v_pk_mul_f32 v[{96+2*i}:{96+2*i+1}], v[{96+2*i}:{96+2*i+1}], s[48:49]")
    for i in range(8):
        A(f"v_cvt_pk_bf16_f32 v{96+i}, v{96+2*i}, v{96+2*i+1}")
    A(f"""
    ds_write_b128 v17, v[96:99] offset:49152
    ds_write_b128 v18, v[100:103] offset:49152
    s_waitcnt lgkmcnt(0)
    @stamp 4
    L1_gst:
    s_barrier
    ds_read_b128 v[96:99], v1 offset:49152
    s_waitcnt lgkmcnt(0)
    buffer_store_dwordx4 v[96:99], v6, s[32:35], 0 offen {os.environ.get('BTST','').replace('_',' ')}
    @stamp 6
    @wait
    @stamp 7
    @stamp 8 real
    @dump
    s_endpgm
    L1_help:
    s_cmp_ge_u32 s3, {NGEMM}
    s_waitcnt vmcnt({NP})
    s_barrier
    s_cbranch_scc0 L1_gst
    s_endpgm
    L1_perm:
    v_lshrrev_b32 v8, 1, v3
    v_and_b32 v9, 1, v3
    v_lshl_add_u32 v8, v9, 5, v8
    s_lshr_b32 s53, s23, 3
    s_lshl_b32 s53, s53, 14
    s_and_b32 s54, s23, 7
    s_lshl_b32 s54, s54, 10
    s_add_u32 s53, s53, s54
    s_add_u32 s54, s53, 512
    s_branch L1_permd
    L1_pack:
    v_lshl_add_u32 v10, v3, 11, v10
    v_lshl_add_u32 v10, v9, 4, v10
    s_lshl_b32 s50, s44, 3
    v_add_u32 v10, s50, v10
    s_lshl_b32 s51, s43, 15
    s_lshl_b32 s52, s44, 14
    s_add_u32 s51, s51, s52
    s_lshl_b32 s52, s22, 12
    s_add_u32 s51, s51, s52
    s_add_u32 s51, s51, {PK_OFF - BT_OFF}
    v_lshlrev_b32 v17, 4, v2
    s_waitcnt vmcnt({NP})
    s_barrier
    """)
    for ks in range(4):
        A(f"ds_read_b64_tr_b16 v[{32+4*ks}:{32+4*ks+1}], v10 offset:{16384+32*ks*256}")
        A(f"ds_read_b64_tr_b16 v[{32+4*ks+2}:{32+4*ks+3}], v10 offset:{16384+(32*ks+4)*256}")
    for ks in range(4):
        A(f"s_waitcnt lgkmcnt({6-2*ks})")
        A(f"buffer_store_dwordx4 v[{32+4*ks}:{32+4*ks+3}], v17, s[32:35], s51 offen offset:{1024*ks}")
    A("s_endpgm")
    A.check_all_edges()
    fl = os.environ.get("K1ST")
    if fl:
        for x in A.ins:
            if x.op.startswith("buffer_store"): x.text += " " + fl.replace("_", " ")
    return A

HEAD = open(f"cdna_kernels/{NAME}.s.ref").read().split("; Override launch")[0]

def kdesc(name, nv):
    return f""".p2align 6
.amdhsa_kernel {name}
  .amdhsa_next_free_vgpr {nv}
  .amdhsa_next_free_sgpr 102
  .amdhsa_accum_offset {nv}
  .amdhsa_group_segment_fixed_size 0
  .amdhsa_kernarg_size 88
  .amdhsa_user_sgpr_count 2
  .amdhsa_user_sgpr_kernarg_segment_ptr 1
  .amdhsa_system_sgpr_workgroup_id_x 1
.end_amdhsa_kernel
"""

def build(kernels):
    s = HEAD
    for (name, A, grid, block, lds, nv) in kernels:
        s += f"; @launch kernel={name} grid=({grid},1,1) block=({block},1,1) lds={lds}\n"
    s += '.amdgcn_target "amdgcn-amd-amdhsa--gfx950"\n.text\n'
    for (name, A, grid, block, lds, nv) in kernels:
        s += f".globl {name}\n.p2align 8\n.type {name},@function\n" + A.text()
    s += '.section .rodata,"a"\n'
    for (name, A, grid, block, lds, nv) in kernels:
        s += kdesc(name, nv)
    return s

if __name__ == "__main__":
    from g2 import gen_k2, LDS2
    k1 = gen_k1(); k2 = gen_k2()
    out = sys.argv[1]
    open(out, "w").write(build([("k1_kernel", k1, NWG1, 1024, LDS1, 112), ("k2_kernel", k2, NB, 768, LDS2, 168)]))
    print("written", out, "nops", k1.nops, k2.nops, "instrs", len(k1.ins), len(k2.ins))
```

```python
from g1 import *

CAPT = 48
C1S = 0
OH = (32 * CAPT + 336) * 16
CNT = OH + CAPT * 512
NS = CNT
AL0 = 55296
assert NS + 768 == AL0 and AL0 % 2048 == 0
AL = AL0 + 256
WR = AL + 48 * 256
WX = WR + 512
SLOT = 4192
SLE = WX + 256
TAB = SLE + 8 * SLOT
LDS2 = TAB + 59 * 1024
assert LDS2 <= 163840
FLG = CNT + 252
ZA = CNT + 176
MB = TAB
MSTR = 272
SLL = MB + 13056
PP = SLL + 4 * SLOT
assert PP + 1536 <= LDS2 and SLL % 16 == 0 and PP % 16 == 0

T0, T1, E0, E1, AC0, AC1, AF, ON, SF, ID, EXT, XF, IX = 0, 16, 32, 48, 64, 80, 96, 112, 120, 128, 136, 144, 148
SI, LC, VX, VSC, VL, VA, VLO, VHI = 156, 157, 158, 159, 160, 161, 162, 163
FL3 = CNT + 232
import struct
f2u = lambda x: struct.unpack("<I", struct.pack("<f", x))[0]
DELTA = 1.00268
LANE, VZ = 164, 108
V16, V1B, TID16 = 165, 166, 167
CK, MK, B1, B2, J4, CJ = 144, 145, 146, 147, VLO, VHI
INC, EXC = 20, 21
GW = AC0
GD = [96, 100, 104, 112, 116, 124]
GH = [[116, 120, 32, 36], [40, 52, 56, 60], [136, 140, 152, 148]]
GQ = 48
XA = 16
env = lambda k, d: int(os.environ.get(k, str(d)))

def gen_ct(A):
    o = lambda p, i: 32 + 4 * p + i
    L, KG, JS, JE = 2, 10, 11, 12
    A(f"""
    L1_ct:
    v_lshlrev_b32 v17, 4, v{L}
    v_mov_b64 v[32:33], 0
    v_mov_b64 v[34:35], 0
    s_add_u32 s40, s14, 65536
    s_addc_u32 s41, s15, 0
    v_and_b32 v3, 16, v{L}
    v_lshlrev_b32 v3, 2, v3
    v_xor_b32 v3, v3, v17
    v_add_u32 v4, -512, v17
    s_mov_b32 exec_hi, 0
    global_load_dwordx4 v[32:35], v3, s[40:41]
    s_mov_b32 exec_lo, 0
    s_mov_b32 exec_hi, 0xffff
    global_load_dwordx4 v[32:35], v4, s[16:17]
    s_mov_b64 exec, -1
    v_and_b32 v5, 31, v{L}
    v_lshrrev_b32 v{KG}, 5, v{L}
    v_lshlrev_b32 v6, 3, v{KG}
    v_sub_u32 v5, v5, v6
    v_and_b32 v6, 1, v5
    v_lshlrev_b32 v6, 4, v6
    v_mov_b32 v7, 0x3f80
    v_lshlrev_b32 v6, v6, v7
    v_ashrrev_i32 v5, 1, v5
    """)
    for h in range(2):
        for r in range(4):
            A(f"v_cmp_eq_u32 vcc, {r + 8*h}, v5")
            A(f"v_cndmask_b32 v{o(1+h, r)}, 0, v6, vcc")
    A(f"""
    v_and_b32 v5, 7, v{L}
    v_xor_b32 v6, v5, v{KG}
    v_lshlrev_b32 v{o(5,1)}, 4, v6
    v_lshlrev_b32 v{o(7,1)}, 4, v6
    v_lshlrev_b32 v{o(7,3)}, 4, v6
    v_mov_b32 v{o(5,0)}, 0xdddddddd
    v_and_b32 v7, 8, v{L}
    v_and_b32 v8, 3, v{L}
    v_lshl_add_u32 v8, v8, 1, v7
    v_bfe_u32 v7, v{L}, 4, 1
    v_add_u32 v8, v8, v7
    v_bfe_u32 v9, v{L}, 2, 1
    v_lshl_add_u32 v8, v8, 1, v9
    v_xor_b32 v9, 1, v{KG}
    v_mul_u32_u24 v9, {OH}, v9
    v_lshl_add_u32 v{o(5,2)}, v8, 4, v9
    v_lshrrev_b32 v9, 3, v8
    v_mul_u32_u24 v9, 1056, v9
    v_and_b32 v8, 7, v8
    v_lshl_add_u32 v9, v8, 7, v9
    v_and_b32 v6, 1, v6
    v_lshl_add_u32 v{o(6,1)}, v6, 4, v9
    v_lshrrev_b32 v6, 3, v{L}
    v_lshlrev_b32 v{o(6,0)}, 4, v6
    v_and_b32 v5, 3, v{L}
    v_lshl_add_u32 v{JS}, v7, 2, v5
    v_bfe_u32 v{JE}, v{L}, 2, 2
    v_lshl_add_u32 v7, v{KG}, 2, v{JE}
    v_lshl_add_u32 v{o(5,3)}, v7, 6, 8
    v_lshlrev_b32 v{o(6,2)}, 2, v{JS}
    v_sub_u32 v{o(6,3)}, 28, v{o(6,2)}
    """)
    for hf in range(2):
        ck, mk, b1, b2 = [o(3+hf, i) for i in range(4)]
        A(f"""
        v_sub_u32 v{ck}, 7, v{JE}
        v_lshlrev_b32 v{ck}, 8, v{ck}
        v_mov_b32 v{mk}, 0xfffff800
        v_add_u32 v5, 3, v{JE}
        v_sub_u32 v5, v5, v{KG}
        v_and_b32 v5, 3, v5
        v_xor_b32 v5, {2*hf}, v5
        v_lshl_add_u32 v5, v{JE}, 2, v5
        v_lshlrev_b32 v5, 6, v5
        v_lshl_add_u32 v{b1}, v{JS}, 3, v5
        v_add_u32 v{b2}, 1024, v{b1}
        s_mov_b32 exec_lo, 0
        v_mov_b32 v{mk}, 0
        v_add_u32 v{b1}, {WR - 512}, v{b1}
        v_mov_b32 v{b2}, {ZA}
        s_mov_b32 exec_hi, 0x00ff00ff
        v_mov_b32 v{b1}, {ZA}
        s_mov_b64 exec, -1
        """)
    A(f"""
    v_and_b32 v5, 15, v{L}
    v_lshrrev_b32 v6, 4, v{L}
    v_xor_b32 v7, v5, v6
    v_lshlrev_b32 v7, 4, v7
    v_lshl_add_u32 v{o(7,0)}, v5, 8, v7
    v_and_b32 v7, 3, v{L}
    v_lshlrev_b32 v7, 2, v7
    v_add_lshl_u32 v7, v7, v6, 4
    v_lshl_add_u32 v{o(7,2)}, v5, 8, v7
    s_mov_b32 s40, {PK_OFF - BT_OFF + CT_REL}
    s_mov_b32 s41, {PK_OFF - BT_OFF + CT_REL + 4096}
    s_waitcnt vmcnt(0)
    """)
    for p in range(8):
        A(f"buffer_store_dwordx4 v[{o(p,0)}:{o(p,3)}], v17, s[32:35], s{40 + p//4} offen offset:{1024*(p&3)}")
    A("s_endpgm")

def gen_k2():
    ROT0 = "s_mul_i32 s78, s24, 5120" if "rot" not in XF_ else "s_lshr_b32 s78, s2, 3\n s_mul_i32 s78, s78, 5\n s_lshr_b32 s78, s78, 5\n s_mul_i32 s78, s78, 12288\n s_add_u32 s78, s78, s34"
    A = Asm()
    A.macro = mk_macro([98, 99, 36, 37, 38, 39, 91, 92, 93, 100, 101, 74, 75, 59, 18, 19], 22, DBG2_OFF, 24, True)
    RD = [2, 3, 4, 6, 8]; RH = [5, 5, 5, 7, 9]; SEL = [81, 82, 83, 81, 81]
    RA, RK, RL = 10, 15, 22
    mask = lambda j: f"s[{60+2*j}:{61+2*j}]"
    A("k2_kernel:")
    A(f"""
    s_load_dwordx2 s[22:23], s[0:1], 80
    s_load_dwordx16 s[4:19], s[0:1], 0
    s_load_dwordx2 s[20:21], s[0:1], 64
    s_cmp_ge_u32 s2, {NB}
    s_cbranch_scc1 L2_exit
    {"s_memrealtime s[98:99]" if DIAG else ""}
    @stamp 0 real
    @stamp 1
    v_lshrrev_b32 v1, 6, v0
    v_lshlrev_b32 v{TID16}, 4, v0
    v_readfirstlane_b32 s24, v1
    v_and_b32 v{LANE}, 63, v0
    s_mul_i32 s76, s2, {ROWB}
    s_add_u32 s76, s76, {REC_OFF}
    s_mul_i32 s3, s2, 625
    s_add_u32 s70, s3, {625+15}
    s_add_u32 s3, s3, 15
    s_lshr_b32 s3, s3, 4
    s_lshr_b32 s70, s70, 4
    s_sub_u32 s70, s70, s3
    s_lshl_b32 s71, s3, 8
    s_lshl_b32 s54, s70, 8
    s_mov_b32 s55, 0x00020000
    v_lshrrev_b32 v39, 4, v0
    v_xor_b32 v40, v39, v0
    v_and_b32 v40, 15, v40
    v_lshlrev_b32 v40, 4, v40
    v_lshl_add_u32 v39, v39, 8, v40
    s_mov_b32 s29, 0
    s_mov_b32 s30, 0
    s_lshl_b32 s34, s24, 10
    s_add_u32 m0, s34, {AL}
    s_mov_b32 s50, {CT_REL + 8192}
    s_mov_b32 s51, 0x00020000
    s_waitcnt lgkmcnt(0)
    s_add_u32 s32, s22, s76
    s_addc_u32 s33, s23, 0
    global_load_dwordx4 v[2:5], v{TID16}, s[32:33]
    global_load_dwordx4 v[6:9], v{TID16}, s[22:23]
    s_add_u32 s52, s4, s71
    s_addc_u32 s53, s5, 0
    s_add_u32 s48, s22, {PK_OFF}
    s_addc_u32 s49, s23, 0
    buffer_load_dwordx4 v39, s[52:55], 0 offen lds
    s_and_b32 s25, s24, 1
    s_bfe_u32 s26, s24, 0x10001
    s_lshr_b32 s27, s24, 2
    s_mul_i32 s31, s24, {SLOT}
    s_mov_b32 s77, {SLL}
    s_cmp_eq_u32 s27, 0
    s_cselect_b32 s77, s77, {SLE - 4*SLOT}
    s_cselect_b32 s57, 1, 0
    s_add_u32 s31, s31, s77
    s_mov_b32 s44, s6
    s_mov_b32 s45, s7
    s_mov_b32 s46, 60000
    s_mov_b32 s47, 0x00020000
    s_lshl_b32 s85, s25, 7
    s_add_u32 s85, s85, {BT_OFF - 4096}
    s_add_u32 s40, s22, s85
    s_addc_u32 s41, s23, {256 << 16}
    s_mov_b32 s42, {2560000 + 4096 - 128}
    s_mov_b32 s43, 0x00020000
    v_mov_b32 v{V16}, 16
    v_mov_b32 v{V1B}, 0x3f80
    L2_batch:
    @st a
    v_lshlrev_b32 v30, 4, v{LANE}
    s_add_u32 m0, s34, {WR}
    s_add_u32 s78, s34, {CT_REL}
    v_mov_b64 v[{VZ}:{VZ+1}], 0
    v_mov_b64 v[{VZ+2}:{VZ+3}], 0
    buffer_load_dwordx4 v30, s[48:51], s78 offen lds
    v_lshrrev_b32 v1, 1, v{TID16}
    """)
    for i in range(4):
        A(f"ds_write_b128 v{TID16}, v[{VZ}:{VZ+3}] offset:{12288*i}")
    A(f"""
    v_cmp_eq_u32 vcc, {CNT + 160 - 49152}, v1
    v_mov_b32 v44, 0
    v_mov_b32 v45, 0x1000000
    {ROT0}
    v_cndmask_b32 v45, 0, v45, vcc
    v_cmp_gt_u32 vcc, {CNT + 256 - 49152}, v1
    s_add_u32 m0, s78, {TAB}
    v_lshlrev_b32 v29, 2, v{LANE}
    s_mov_b64 exec, vcc
    ds_write_b64 v1, v[44:45] offset:49152
    s_mov_b64 exec, -1
    s_add_u32 s76, s2, 1
    s_lshl_b32 s76, s76, 8
    s_movk_i32 s77, 256
    s_mov_b32 s81, 0x0c0c0401
    s_mov_b32 s82, 0x0c0c0501
    s_mov_b32 s83, 0x0c0c0601
    s_mov_b32 s79, 0xffffff
    s_lshl_b32 s80, s25, 10
    v_add_u32 v27, {WR}, v30
    v_add_u32 v31, s80, v27
    s_sub_u32 s72, 23, s24
    s_lshl_b32 s72, s72, 10
    v_add_u32 v28, s72, v30
    """)
    TB = [int(x) for x in os.environ.get("TB", "0,1,2").split(",")]
    def tab(lo, hi):
        for i in range(lo, hi):
            if "rot" in XF_:
                A(f"""
                s_min_u32 s89, s78, {58*1024}
                s_add_u32 m0, s89, {TAB}
                s_add_u32 s78, s78, 12288
                buffer_load_dwordx4 v30, s[44:47], s89 offen lds
                """)
                if i < 4:
                    A(f"""
                    s_sub_u32 s89, s78, 61440
                    s_min_u32 s78, s78, s89
                    """)
                continue
            if i < 4:
                A(f"buffer_load_dwordx4 v30, s[44:47], s78 offen offset:{1024*i} lds")
            else:
                A(f"""
                s_add_u32 s78, s78, 4096
                s_min_u32 s78, s78, {58*1024}
                s_add_u32 m0, s78, {TAB}
                s_nop 0
                buffer_load_dwordx4 v30, s[44:47], s78 offen lds
                """)
    tab(0, TB[0])
    A(f"""
    s_waitcnt lgkmcnt(0)
    @st b
    s_barrier
    @st c
    """)
    tab(TB[0], TB[0] + TB[1])
    A(f"""
    @stamp 2
    s_waitcnt vmcnt({2 + TB[0] + TB[1]})
    @stamp 3
    """)
    def p1(js):
        for j in js:
            A(f"v_and_b32 v{RA+j}, 0xfc, v{RD[j]}")
        for j in js:
            A(f"s_mov_b64 exec, {mask(j)}")
            A(f"ds_add_rtn_u32 v{RK+j}, v{RA+j}, v{V16} offset:{CNT}")
        A("s_mov_b64 exec, -1")
    def pL(js):
        for j in js:
            A(f"v_perm_b32 v{RL+j}, v{RH[j]}, v{RD[j]}, s{SEL[j]}")
    for j in range(3):
        A(f"v_cmp_ne_u32 {mask(j)}, 0, v{RD[j]}")
    p1(range(3))
    A(f"""
    v_xor_b32 v7, s76, v7
    v_xor_b32 v9, s76, v9
    v_cmp_gt_u32 {mask(3)}, s77, v7
    v_cmp_gt_u32 {mask(4)}, s77, v9
    v_cmp_lt_u32 vcc, s79, v5
    """)
    pL(range(3))
    A(f"""
    s_or_b64 s[84:85], {mask(3)}, {mask(4)}
    s_cselect_b32 s90, 1, 0
    s_or_b64 s[84:85], s[84:85], vcc
    s_cbranch_scc1 L2_ov1
    L2_ov1_done:
    """)
    tab(TB[0] + TB[1], sum(TB))
    A(f"""
    s_cmp_lg_u32 s57, 0
    s_waitcnt vmcnt({sum(TB)}) lgkmcnt(0)
    s_barrier
    @stamp 4
    ds_read_b32 v{EXC}, v29 offset:{CNT}
    ds_read_b128 v[{VL}:{VL+3}], v27 offset:{6*1024}
    ds_read_b128 v[{SI}:{SI+3}], v27 offset:{5*1024}
    ds_read_b128 v[{CK}:{CK+3}], v31 offset:{3*1024}
    ds_read_b128 v[{ID}:{ID+3}], v27 offset:{1*1024}
    ds_read_b128 v[{ID+4}:{ID+7}], v27 offset:{2*1024}
    s_cbranch_scc1 L2_secG
    """)
    def ixrd(reg, t):
        for i in range(4):
            A(f"ds_read_b32 v{IX+2*i}, v{reg} offset:{512*t+128*i}")
    def lcset():
        for i in range(4):
            A(f"v_mov_b32 v{IX+2*i+1}, v{LC}")
    def dma():
        for i in range(4):
            A(f"buffer_load_dwordx4 v[{IX+2*i}:{IX+2*i+1}], s[40:43], s{84+i} idxen offen offset:{1056*i} {os.environ.get('BTLD','').replace('_',' ')} lds")
    def p2(js, w):
        A(f"s_waitcnt lgkmcnt({w})")
        for n, j in enumerate(js):
            A(f"s_mov_b64 exec, {mask(j)}")
            A(f"v_add_u32 v{RK+j}, v{RK+j}, v{RA+j}")
            A(f"ds_write2_b32 v{RK+j}, v{RL+j}, v{RD[j]} offset0:0 offset1:1")
        A("s_mov_b64 exec, -1")
    class D: pass
    DS = []
    for k in range(2):
        d = D(); d.pos = TID16 if k == 0 else 28
        d.e = 2 + 2 * k; d.ta = 6 + 2 * k; d.a = 7 + 2 * k; d.u = 26 + k
        d.P = [[44, 45, 46], [47, 24, 25]][k]; d.N = [10 + 3 * k + c for c in range(3)]; d.m = f"s[{76+2*k}:{77+2*k}]"
        DS.append(d)
    OOL = []

    def section(G):
        sx = "G" if G else ""
        def X(k):
            if not G: return
            A(f"s_waitcnt vmcnt({6-2*k})")
            for nt in range(3):
                for ab in range(2):
                    d = GD[2*nt+ab]
                    A(mf16(d, GW+16*ab+4*k, GH[nt][k], d if k else None))
        def d_rd(d):
            A(f"v_mad_u32_u24 v{d.ta}, v{d.e}, 6, s82")
            A(f"v_bfe_u32 v{d.u}, v{d.e+1}, 2, 6")
            A(f"v_mad_u32_u24 v{d.a}, v{d.u}, 6, s83")
            for c in range(3):
                A(f"ds_read_u16_d16_hi v{d.P[c]}, v{d.ta} offset:{2*c}")
            for c in range(3):
                A(f"ds_read_u16_d16_hi v{d.N[c]}, v{d.a} offset:{2*c}")
        def d_ad(d):
            A(f"v_cmp_ne_u32 {d.m}, 0, v{d.e+1}")
            A(f"v_bfe_u32 v{d.ta}, v{d.e+1}, 1, 4")
            A(f"v_add_u32 v{d.ta}, v{d.ta}, v{d.pos}")
            A(f"v_lshl_add_u32 v{d.a}, v{d.u}, 7, v{d.pos}")
        def d_math(d):
            for c in range(3):
                A(f"v_sub_f32 v{d.N[c]}, v{d.N[c]}, v{d.P[c]}")
            A(f"v_cvt_pk_bf16_f32 v{d.e}, 1.0, v{d.N[0]}")
            A(f"v_cvt_pk_bf16_f32 v{d.e+1}, v{d.N[1]}, v{d.N[2]}")
            A(f"v_dot2_f32_bf16 v{d.N[0]}, v{d.e}, v{d.e}, -1.0")
            A(f"v_dot2_f32_bf16 v{d.N[0]}, v{d.e+1}, v{d.e+1}, v{d.N[0]}")
            A(f"s_mov_b64 exec, {d.m}")
            A(f"ds_write_b16 v{d.ta}, v{V1B} offset:{OH}")
            A(f"ds_write_b64 v{d.a}, v[{d.e}:{d.e+1}] offset:8")
            A(f"v_mul_f32 v{d.N[0]}, {NLOG2E}, v{d.N[0]}")
            A(f"v_cvt_pk_bf16_f32 v{d.N[0]}, v{d.N[0]}, v{d.N[0]}")
            A(f"ds_write_b16 v{d.pos}, v{d.N[0]} offset:4")
            A("s_mov_b64 exec, -1")
        if G:
            A("L2_secG:")
            A(f"ds_read_b128 v[{GQ}:{GQ+3}], v27 offset:{7*1024}")
        else:
            A(f"ds_read_b128 v[{IX}:{IX+3}], v27 offset:{7*1024}")
            A(f"ds_read_b128 v[{IX+4}:{IX+7}], v27 offset:{7*1024}")
        tab(sum(TB), 5)
        A(f"""
        s_waitcnt lgkmcnt({6 if G else 7})
        v_add_u32_dpp v{INC}, v{EXC}, v{EXC} row_shr:1 row_mask:0xf bank_mask:0xf bound_ctrl:0
        s_mov_b32 m0, s31
        s_mov_b32 s84, 4096
        v_add_u32_dpp v{INC}, v{INC}, v{INC} row_shr:2 row_mask:0xf bank_mask:0xf bound_ctrl:0
        s_mov_b32 s85, {4096-1056}
        s_mov_b32 s86, {4096-2112}
        v_add_u32_dpp v{INC}, v{INC}, v{INC} row_shr:4 row_mask:0xf bank_mask:0xf bound_ctrl:0
        s_mov_b32 s87, {4096-3168}
        s_mov_b32 s88, 512
        v_add_u32_dpp v{INC}, v{INC}, v{INC} row_shr:8 row_mask:0xf bank_mask:0xf bound_ctrl:0
        s_lshl_b32 s32, s24, 15
        s_add_u32 s32, s32, 8192
        v_add_u32_dpp v{INC}, v{INC}, v{INC} row_bcast:15 row_mask:0xa bank_mask:0xf
        s_add_u32 s33, s32, 16384
        s_lshl_b32 s35, s24, 6
        v_add_u32_dpp v{INC}, v{INC}, v{INC} row_bcast:31 row_mask:0xc bank_mask:0xf
        v_sub_u32 v{EXC}, v{INC}, v{EXC}
        """)
        for j in range(3):
            A(f"ds_bpermute_b32 v{RA+j}, v{RA+j}, v{EXC}")
        if G:
            A("s_waitcnt lgkmcnt(3)")
            for k in range(4):
                if k: A(f"v_xor_b32 v{GQ+1}, {64*k}, v{GQ}")
                for nt in range(3):
                    h = GH[nt][k]
                    A(f"ds_read_b128 v[{h}:{h+3}], v{GQ+1 if k else GQ} offset:{AL+4096*nt}")
        A(f"""
        v_readlane_b32 s80, v{INC}, 40
        v_readlane_b32 s81, v{INC}, 16
        v_readlane_b32 s82, v{INC}, 24
        s_cmp_gt_u32 s80, {CAPT*512}
        s_cbranch_scc1 L2_goslow
        """)
        p2(range(3), 12 if G else 0)
        A(f"""
        s_cmp_lg_u32 s90, 0
        s_cbranch_scc1 L2_ov2{sx}
        L2_ov2_done{sx}:
        """)
        WP = env("WP", 0)
        def wl():
            for k in range(4):
                A(f"buffer_load_dwordx4 v[{GW+4*k}:{GW+4*k+3}], v30, s[48:51], s32 offen offset:{1024*k}")
                A(f"buffer_load_dwordx4 v[{GW+16+4*k}:{GW+16+4*k+3}], v30, s[48:51], s33 offen offset:{1024*k}")
        if G and WP == 0: wl()
        A(f"""
        @st e
        s_add_u32 s83, s80, 1023
        s_lshr_b32 s83, s83, 10
        s_lshl_b32 s83, s83, 9
        s_add_u32 s79, s80, 511
        s_andn2_b32 s79, s79, 511
        s_cmp_eq_u32 s26, 0
        s_cselect_b32 s76, 0, s83
        s_cselect_b32 s77, s83, s79
        v_cmp_ge_u32 vcc, s76, v{INC}
        s_min_u32 s78, s83, s80
        s_cmp_lt_u32 s82, s78
        s_cselect_b32 s73, 1, s29
        s_cmp_gt_u32 s81, s83
        s_cselect_b32 s73, 1, s73
        {"s_mov_b32 s73, 1" if "fixed" in XF_ else ""}
        s_min_u32 s78, s77, s80
        s_bcnt1_i32_b64 s28, vcc
        s_add_u32 s79, s28, 7
        s_cmp_lg_u32 s73, 0
        v_readlane_b32 s81, v{INC}, s79
        s_cbranch_scc1 L2_fixed{sx}
        s_andn2_b32 s82, s81, 511
        s_min_u32 s82, s82, s77
        v_cmp_ge_u32 vcc, s82, v{INC}
        s_cmp_eq_u32 s27, 1
        s_cselect_b32 s94, s76, s82
        v_mov_b64 v[44:45], 0
        s_bcnt1_i32_b64 s83, vcc
        s_add_u32 s79, s83, 7
        v_readlane_b32 s64, v{INC}, s79
        s_andn2_b32 s65, s64, 511
        s_min_u32 s65, s65, s77
        v_cmp_ge_u32 vcc, s65, v{INC}
        s_mov_b32 s66, s82
        s_mov_b32 s67, s65
        s_bcnt1_i32_b64 s68, vcc
        s_add_u32 s79, s68, 7
        v_readlane_b32 s69, v{INC}, s79
        s_cmp_lt_u32 s69, s78
        s_cbranch_scc1 L2_chfix{sx}
        L2_chsel{sx}:
        s_cmp_eq_u32 s27, 1
        s_cselect_b32 s95, s66, s67
        s_cselect_b32 s28, s28, s83
        s_cmp_eq_u32 s27, 0
        s_cselect_b32 s94, s65, s94
        s_cselect_b32 s95, s77, s95
        s_cselect_b32 s28, s68, s28
        L2_chdone{sx}:
        @st f
        s_lshl_b32 s79, s28, 2
        s_movk_i32 s81, -32
        v_add_u32 v23, s79, v{CJ}
        v_and_or_b32 v23, v23, s81, v{J4}
        v_min_u32 v23, 164, v23
        ds_bpermute_b32 v{VLO}, v23, v{EXC}
        ds_bpermute_b32 v{VHI}, v23, v{INC}
        s_min_u32 s58, s95, s80
        s_sub_u32 s95, s95, s94
        s_lshr_b32 s95, s95, 9
        {"s_min_u32 s95, s95, 64" if "clamp" in XF_ else ""}
        v_add_u32 v{VL}, s94, v{VL}
        s_lshl_b32 s79, s28, 8
        s_add_u32 s79, s79, {AL0}
        s_sub_u32 s78, s79, 1024
        v_add_u32 v{XA}, s79, v{CK}
        v_add_u32 v{XA+1}, s78, v{CK}
        v_add_u32 v{VX}, s94, v{VX}
        v_lshlrev_b32 v22, 5, v23
        v_and_or_b32 v{XA}, v{XA}, v{MK}, v{B1}
        v_and_or_b32 v{XA+1}, v{XA+1}, v{MK}, v{B2}
        v_add3_u32 v{VSC}, v{VSC}, v22, s94
        v_xor_b32 v{XA+2}, 64, v{XA}
        v_xor_b32 v{XA+3}, 64, v{XA+1}
        v_add_u32 v{VA}, s31, v{VA}
        v_mov_b64 v[46:47], 0
        v_mov_b64 v[24:25], 0
        v_mov_b64 v[10:11], 0
        v_mov_b64 v[12:13], 0
        v_mov_b64 v[14:15], 0
        v_add_u32 v29, {MB}, v{TID16}
        {f"v_xor_b32 v{GQ+2}, s35, v{GQ+2}" if G else ""}
        s_movk_i32 s78, -56
        s_movk_i32 s79, 72
        s_mov_b32 s82, {TAB}
        s_mul_i32 s83, s3, 6
        s_add_u32 s83, s83, {TAB - 6}
        s_mov_b32 s75, s95
        s_waitcnt lgkmcnt(0)
        v_cmp_le_u32 s[60:61], s94, v{VLO}
        v_cmp_ge_u32 s[62:63], s58, v{VHI}
        v_cmp_gt_u32 s[64:65], s58, v{VLO}
        v_cmp_lt_u32 s[66:67], s94, v{VHI}
        v_add_u32 v{VHI}, -16, v{VHI}
        v_and_b32 v{VLO}, 0xffffffc0, v{VLO}
        v_and_b32 v{VHI}, 0xffffffc0, v{VHI}
        v_add3_u32 v{VLO}, v{VLO}, v22, s78
        v_add3_u32 v{VHI}, v{VHI}, v22, s79
        @stamp 5
        """)
        if G and WP == 1: wl()
        A(f"""
        s_waitcnt vmcnt({8 if G else 0})
        s_barrier
        @stamp 6
        """)
        A(f"ds_read_b64 v[2:3], v{TID16}")
        A(f"ds_read_b64 v[4:5], v28")
        if not G: ixrd(VL, 0)
        X(0)
        A(f"s_waitcnt lgkmcnt({1 if G else 5})")
        d_rd(DS[0])
        A(f"""
        s_cmp_ge_u32 s72, s80
        s_waitcnt lgkmcnt(6)
        s_cbranch_scc1 L2_nod1{sx}
        """)
        d_rd(DS[1])
        A(f"L2_nod1{sx}:")
        A("@st d1")
        def early(lbl, cond):
            A(f"""
            {cond}
            s_cbranch_scc1 {lbl}
            """)
            dma()
            ixrd(VL, 1)
            A(f"{lbl}:")
        ED = env("ED", 3)
        if not G:
            if ED == 3: early("L2_late0", "s_cmp_eq_u32 s27, 0")
            elif ED == 1: early("L2_late0", "s_cmp_lg_u32 s27, 1")
        X(1)
        A("@st d2")
        d_ad(DS[0])
        X(2)
        A(f"s_waitcnt lgkmcnt(0)")
        A("@st d4")
        d_math(DS[0])
        A("@st d5")
        X(3)
        A(f"""
        s_cmp_ge_u32 s72, s80
        s_cbranch_scc1 L2_nod2{sx}
        """)
        d_ad(DS[1])
        d_math(DS[1])
        A(f"L2_nod2{sx}:")
        if G:
            ixrd(VL, 0)
            lcset()
            A(f"s_mov_b32 s76, {NLOG2E}")
            A(f"s_mov_b32 s77, {NLOG2E}")
            A(f"s_mov_b32 s57, 0")
            for nt in range(3):
                for ab in range(2):
                    d = GD[2*nt+ab]
                    A(f"v_pk_mul_f32 v[{d}:{d+1}], v[{d}:{d+1}], s[76:77]")
                    A(f"v_pk_mul_f32 v[{d+2}:{d+3}], v[{d+2}:{d+3}], s[76:77]")
                o = 32 + 4 * nt
                for ab in range(2):
                    d = GD[2*nt+ab]
                    A(f"v_cvt_pk_bf16_f32 v{o+2*ab}, v{d}, v{d+1}")
                    A(f"v_cvt_pk_bf16_f32 v{o+2*ab+1}, v{d+2}, v{d+3}")
                A(f"ds_write_b128 v{GQ+2}, v[{o}:{o+3}] offset:{AL+4096*nt}")
            A("s_branch L2_b3")
        else:
            if ED == 1: early("L2_late1", "s_cmp_lg_u32 s27, 2")
            elif ED == 0: early("L2_late1", "s_cmp_eq_u32 s27, 0")
        def ool():
            A(f"""
            L2_fixed{sx}:
            v_mov_b64 v[44:45], 0
            s_add_u32 s79, s27, 2
            s_sub_u32 s82, s27, 1
            s_cmp_eq_u32 s27, 0
            s_cselect_b32 s79, s79, s82
            s_mul_i32 s82, s26, 3
            s_add_u32 s79, s79, s82
            s_lshl_b32 s79, s79, 3
            s_add_u32 s28, s79, 1
            s_add_u32 s82, s79, 8
            v_readlane_b32 s94, v{INC}, s79
            v_readlane_b32 s95, v{INC}, s82
            s_min_u32 s95, s95, s80
            s_cmp_eq_u32 s94, s95
            s_cselect_b32 s82, 0, 511
            s_add_u32 s95, s95, s82
            s_andn2_b32 s94, s94, 511
            s_andn2_b32 s95, s95, 511
            s_branch L2_chdone{sx}
            L2_ov2{sx}:
            """)
            for j in (3, 4):
                A(f"ds_bpermute_b32 v{RA+j}, v{RA+j}, v{EXC}")
            p2((3, 4), 0)
            A(f"""
            s_branch L2_ov2_done{sx}
            L2_chfix{sx}:
            s_add_u32 s67, s64, 511
            s_andn2_b32 s67, s67, 511
            s_min_u32 s67, s67, s77
            s_add_u32 s68, s83, 8
            s_min_u32 s68, s68, 41
            s_add_u32 s79, s68, 7
            v_readlane_b32 s69, v{INC}, s79
            s_cmp_ge_u32 s69, s78
            s_cbranch_scc1 L2_chsel{sx}
            s_add_u32 s66, s81, 511
            s_andn2_b32 s66, s66, 511
            s_min_u32 s66, s66, s77
            s_add_u32 s83, s28, 8
            s_min_u32 s83, s83, 41
            s_add_u32 s79, s83, 7
            v_readlane_b32 s64, v{INC}, s79
            s_andn2_b32 s65, s64, 511
            s_min_u32 s65, s65, s77
            s_add_u32 s67, s64, 511
            s_andn2_b32 s67, s67, 511
            s_min_u32 s67, s67, s77
            s_add_u32 s68, s83, 8
            s_min_u32 s68, s68, 41
            s_branch L2_chsel{sx}
            """)
        OOL.append(ool)
    section(False)
    assert ZA & 64 == 0
    A(f"""
    L2_b3:
    @st d6
    s_cmp_lg_u32 s27, 0
    s_waitcnt lgkmcnt(0)
    @st d7
    s_barrier
    s_cbranch_scc1 L2_w1
    """)
    dma()
    ixrd(VL, 1)
    A(f"""
    L2_w1:
    @stamp 7
    ds_read_b64_tr_b16 v[{EXT}:{EXT+1}], v{XA}
    ds_read_b64_tr_b16 v[{EXT+2}:{EXT+3}], v{XA+1}
    ds_read_b128 v[{XF}:{XF+3}], v{VX}
    ds_read_b64_tr_b16 v[{EXT+4}:{EXT+5}], v{XA+2}
    ds_read_b64_tr_b16 v[{EXT+6}:{EXT+7}], v{XA+3}
    v_mov_b64 v[{SF}:{SF+1}], 0
    v_mov_b64 v[{SF+2}:{SF+3}], 0
    s_waitcnt vmcnt(0)
    """)
    def a_reads():
        for i in range(4):
            A(f"ds_read_b128 v[{AF+4*i}:{AF+4*i+3}], v{VA} offset:{32*i}")
    a_reads()
    A(f"""
    ds_write_b128 v29, v[{SF}:{SF+3}]
    s_mov_b64 exec, 1
    ds_add_u32 v{SF}, v{V16} offset:{FLG}
    s_mov_b64 exec, -1
    s_cmp_gt_u32 s29, 1
    s_cbranch_scc1 L2_noz
    """)
    A(mf32(AC0, SF, SF, None))
    A(mf32(AC1, SF, SF, None))
    A("L2_noz:")
    A(mf32(E1, SF, SF, None))
    A(f"""
    v_mov_b64 v[{SF+4}:{SF+5}], 0
    v_mov_b64 v[{SF+6}:{SF+7}], 0
    s_mov_b32 s76, 0x3e803e80
    s_mov_b32 s77, 0x3e803e80
    v_mov_b64 v[{ON}:{ON+1}], s[76:77]
    v_mov_b64 v[{ON+2}:{ON+3}], s[76:77]
    v_add_u32 v{VL}, 1024, v{VL}
    s_cmp_eq_u32 s27, 0
    s_cselect_b32 s80, {os.environ.get("PR0", "0")}, 4
    s_cmp_eq_u32 s95, 0
    s_waitcnt lgkmcnt(2)
    {"s_memrealtime s[100:101]" if DIAG else ""}
    s_cbranch_scc1 L2_done
    @stamp 8
    {"s_setprio 3" if "noprio" not in XF_ else ""}
    s_cmp_lt_u32 s95, 2
    s_cbranch_scc1 L2_nodma1
    """)
    dma()
    A("L2_nodma1:")
    A(mf32(T0, AF, ID, None))
    A(mf32(T0, AF+4, ID+4, T0))
    A(mf32(T0, XF, EXT, T0))
    A("s_nop 10")
    A.ins.append(I(".p2align 6"))
    A("L2_loop:")
    def run(ops, ins):
        for i, v in enumerate(ops):
            for x in ins.get(i, []):
                if callable(x): x()
                else: A(x)
            A(v)
    ex = lambda e, t: [f"v_exp_f32 v{e+i}, v{t+i}" for i in range(16)]
    rc = lambda e: [f"v_rcp_f32 v{e+i}, v{e+i}" for i in range(16)]
    mu = lambda e, t: [f"v_pk_mul_f32 v[{e+2*i}:{e+2*i+1}], v[{e+2*i}:{e+2*i+1}], v[{t+2*i}:{t+2*i+1}]" for i in range(8)]
    if "nopk" in XF_:
        mu = lambda e, t: [f"v_mul_f32 v{e+i}, v{e+i}, v{t+i}" for i in range(16)]
    def dma_next():
        if "nodma" in XF_: return
        A("s_cmp_lt_u32 s95, 3")
        A("s_cbranch_scc1 L2_nodma2")
        dma()
        A("L2_nodma2:")
    def prio():
        if "noprio" in XF_: return
        A(f"""
        s_cmp_gt_u32 s95, s80
        s_cbranch_scc1 L2_prd
        s_setprio 2
        s_cmp_eq_u32 s95, 4
        s_cbranch_scc1 L2_prd
        s_setprio 1
        s_cmp_eq_u32 s95, 3
        s_cbranch_scc1 L2_prd
        s_setprio 0
        L2_prd:
        """)
    run(ex(E0, T0), {0: [mf32(T1, AF+8, ID, None)], 3: [mf32(T1, AF+12, ID+4, T1)], 6: [mf32(T1, XF, EXT+4, T1)],
                     10: [smf(AC1, SF, E1, SI)], 14: [smf(AC1, SF+4, E1+8, SI)]})
    run(ex(E1, T1), {2: [mf32(E0, ON, ON, E0)],
                     6: [f"v_med3_i32 v{SF+6}, v{VSC}, v{VLO}, v{VHI}"] +
                        [f"ds_read_b64_tr_b16 v[{SF+2*r}:{SF+2*r+1}], v{SF+6} offset:{16*r}" for r in range(4)],
                     10: [f"ds_read_b128 v[{XF}:{XF+3}], v{VX} offset:512", lambda: ixrd(VL, 0)],
                     14: [f"v_add_u32 v{VX}, s88, v{VX}", f"v_add_u32 v{VSC}, s88, v{VSC}", f"v_add_u32 v{VL}, s88, v{VL}"]})
    run(rc(E0), {2: [mf32(E1, ON, ON, E1)], 4: ([] if "nowait" in XF_ else ["s_waitcnt vmcnt(0)"]) + [a_reads]})
    run(mu(E0, T0), {})
    run(rc(E1), {0: ["s_waitcnt lgkmcnt(0)", mf32(T0, AF, ID, None)], 1: [dma_next], 3: [mf32(T0, AF+4, ID+4, T0)], 6: [mf32(T0, XF, EXT, T0)],
                 10: [smf(AC0, SF, E0, SI)], 14: [smf(AC0, SF+4, E0+8, SI)]})
    run(mu(E1, T1), {2: [prio], 6: ["s_sub_u32 s95, s95, 1", "s_cmp_lg_u32 s95, 0"]})
    A("s_cbranch_scc1 L2_loop")
    if "noprio" not in XF_:
        A("s_setprio 3")
    A(smf(AC1, SF, E1, SI))
    A(smf(AC1, SF+4, E1+8, SI))
    A("L2_done:")
    A("@stamp 9")
    FA, WV = 0, 8
    A(f"""
    s_cmp_lg_u32 s29, 0
    s_cbranch_scc1 L2_slownext
    L2_flush:
    v_mov_b32 v5, 0
    L2_flw:
    ds_read_b32 v6, v5 offset:{FLG}
    v_lshrrev_b32 v4, 5, v{LANE}
    v_and_b32 v7, 31, v{LANE}
    s_lshl_b32 s72, s25, 7
    s_add_u32 s76, s72, {WX}
    v_lshl_add_u32 v10, v7, 1, s76
    v_mov_b64 v[{WV}:{WV+1}], 0
    s_mul_i32 s77, s28, {MSTR}
    s_add_u32 s77, s77, s72
    s_add_u32 s77, s77, {MB - MSTR}
    ds_read_u16_d16_hi v{WV}, v10
    ds_read_u16_d16_hi v{WV+1}, v10 offset:64
    v_lshl_add_u32 v7, v7, 2, s77
    v_subrev_u32 v4, s28, v4
    s_movk_i32 s76, {MSTR}
    """)
    for q in range(4):
        if q: A(f"v_add_u32 v{FA+q}, {2*q}, v4")
        A(f"v_and_b32 v{FA+q}, 7, v{FA+q if q else 4}")
        A(f"v_mad_u32_u24 v{FA+q}, v{FA+q}, s76, v7")
    A(f"""
    s_and_b32 s56, s60, s62
    s_and_b32 s58, s64, s66
    s_andn2_b32 s58, s58, s56
    s_cmp_lg_u32 s73, 0
    s_cselect_b32 s56, -1, s56
    s_cselect_b32 s58, 0, s58
    s_mov_b32 s76, {f2u(DELTA)}
    s_waitcnt lgkmcnt(0)
    v_cmp_gt_u32 vcc, {12*16}, v6
    s_cbranch_vccnz L2_flw
    """)
    for q in range(4): A(f"v_mul_f32 v{AC0+4*q}, s76, v{AC0+4*q}")
    for q in range(4): A(f"v_mul_f32 v{AC1+4*q}, s76, v{AC1+4*q}")
    for q in range(4): A(f"v_cvt_pk_bf16_f32 v{AC0+4*q}, v{AC0+4*q}, v{AC1+4*q}")
    bit = lambda sl: (sl & 3) + 16 * (sl >> 2)
    for q in range(4):
        A(f"s_bfe_i32 exec_lo, s56, {0x10000 + bit(2*q)}")
        A(f"s_bfe_i32 exec_hi, s56, {0x10000 + bit(2*q+1)}")
        A(f"ds_write_b32 v{FA+q}, v{AC0+4*q}")
    for q in range(4):
        A(f"s_bfe_i32 exec_lo, s58, {0x10000 + bit(2*q)}")
        A(f"s_bfe_i32 exec_hi, s58, {0x10000 + bit(2*q+1)}")
        A(f"ds_pk_add_bf16 v{FA+q}, v{AC0+4*q}")
    A(f"""
    s_mov_b64 exec, 1
    ds_add_u32 v5, v{V16} offset:{FLG}
    s_mov_b64 exec, -1
    s_setprio 0
    @stamp 10
    """)
    for q in range(4):
        a, b = AC0 + 4*q, AC1 + 4*q
        A(f"v_mul_f32 v{a+1}, v{a+1}, v{WV}")
        A(f"v_pk_mul_f32 v[{a+2}:{a+3}], v[{a+2}:{a+3}], v[{WV}:{WV+1}] op_sel_hi:[1,0]")
        A(f"v_fmac_f32 v{a+1}, v{b+1}, v{WV+1}")
        A(f"v_pk_fma_f32 v[{a+2}:{a+3}], v[{b+2}:{b+3}], v[{WV}:{WV+1}], v[{a+2}:{a+3}] op_sel:[0,1,0]")
    A(f"""
    v_bfe_u32 v4, v{LANE}, 3, 1
    v_lshrrev_b32 v6, 4, v{LANE}
    v_bfrev_b32 v6, v6
    v_lshrrev_b32 v6, 30, v6
    v_lshl_add_u32 v4, v4, 2, v6
    """)
    for q in (0, 2):
        for c in (1, 2, 3):
            A(f"v_permlane16_swap_b32 v{AC0+4*q+c}, v{AC0+4*q+4+c}")
    A(f"""
    s_lshl_b32 s76, s24, 7
    s_add_u32 s76, s76, {PP}
    v_lshl_add_u32 v6, v4, 4, s76
    v_subrev_u32 v4, s28, v4
    """)
    for q in (0, 2):
        a = AC0 + 4*q
        A(f"v_add_f32 v{a+1}, v{a+1}, v{a+5}")
        A(f"v_pk_add_f32 v[{a+2}:{a+3}], v[{a+2}:{a+3}], v[{a+6}:{a+7}]")
    A(f"v_and_b32 v4, 7, v4")
    A(f"v_add_u32 v{AC0}, s28, v4")
    for c in (1, 2, 3):
        A(f"v_add_f32_dpp v{AC0+c}, v{AC0+c}, v{AC0+c} row_ror:8 row_mask:0xf bank_mask:0x3")
    for c in (1, 2, 3):
        A(f"v_add_f32_dpp v{AC0+c}, v{AC0+8+c}, v{AC0+8+c} row_ror:8 row_mask:0xf bank_mask:0xc")
    for m in ("row_half_mirror", "quad_perm:[1,0,3,2]", "quad_perm:[2,3,0,1]"):
        for c in (1, 2, 3):
            A(f"v_add_f32_dpp v{AC0+c}, v{AC0+c}, v{AC0+c} {m} row_mask:0xf bank_mask:0xf")
    A(f"""
    s_mov_b32 exec_lo, 0x01010101
    s_mov_b32 exec_hi, 0x01010101
    ds_write_b128 v6, v[{AC0}:{AC0+3}]
    s_mov_b64 exec, 1
    ds_add_rtn_u32 v4, v5, v{V16} offset:{FL3}
    s_mov_b64 exec, -1
    s_waitcnt lgkmcnt(0)
    v_readfirstlane_b32 s56, v4
    s_cmp_lg_u32 s27, 0
    s_cbranch_scc1 L2_other
    """)
    W, H, D = 0, 64, 112
    A(f"""
    v_lshlrev_b32 v140, 4, v{LANE}
    s_lshl_b32 s72, s24, 15
    v_and_b32 v141, 15, v{LANE}
    v_lshrrev_b32 v142, 4, v{LANE}
    v_lshlrev_b32 v143, 4, v142
    v_lshl_add_u32 v144, v141, 8, v143
    v_add_u32 v146, 4096, v144
    v_add_u32 v147, 8192, v144
    """)
    for k in range(4):
        A(f"s_add_u32 s{78+k}, s24, {k}")
        A(f"s_and_b32 s{78+k}, s{78+k}, 3")
        A(f"s_lshl_b32 s{82+k}, s{78+k}, 6")
        A(f"s_lshl_b32 s{78+k}, s{78+k}, 10")
        A(f"s_add_u32 s{78+k}, s{78+k}, s72")
        A(f"s_add_u32 s{86+k}, s{78+k}, 16384")
    for k in range(4):
        A(f"buffer_load_dwordx4 v[{W+4*k}:{W+4*k+3}], v140, s[48:51], s{78+k} offen")
        A(f"buffer_load_dwordx4 v[{W+32+4*k}:{W+32+4*k+3}], v140, s[48:51], s{86+k} offen")
        for nt in range(3):
            A(f"buffer_load_dwordx4 v[{H+16*nt+4*k}:{H+16*nt+4*k+3}], v{(144,146,147)[nt]}, s[52:55], s{82+k} offen")
    A("s_add_u32 s76, s72, 4096")
    A("s_add_u32 s77, s72, 20480")
    for k in range(4):
        A(f"buffer_load_dwordx4 v[{W+16+4*k}:{W+16+4*k+3}], v140, s[48:51], s76 offen offset:{1024*k}")
        A(f"buffer_load_dwordx4 v[{W+48+4*k}:{W+48+4*k+3}], v140, s[48:51], s77 offen offset:{1024*k}")
    A(f"""
    v_mov_b32 v145, {MB}
    v_mul_u32_u24 v148, {MSTR}, v141
    v_add3_u32 v145, v145, v148, v143
    s_add_u32 s60, s20, s71
    s_addc_u32 s61, s21, 0
    s_mov_b32 s62, s54
    s_mov_b32 s63, 0x00020000
    """)
    for k in range(4):
        A(f"s_waitcnt vmcnt({8 + 5*(3-k)})")
        for nt in range(3):
            for ab in range(2):
                d = D + 8 * nt + 4 * ab
                A(mf16(d, W+32*ab+4*k, H+16*nt+4*k, d if k else None))
    MF = [0, 32, 148]
    A(f"""
    s_mov_b32 s78, {NLOG2E}
    s_mov_b32 s79, {NLOG2E}
    s_mov_b32 s80, {NLN2}
    s_mov_b32 s81, {NLN2}
    """)
    for i in range(12):
        A(f"v_pk_mul_f32 v[{D+2*i}:{D+2*i+1}], v[{D+2*i}:{D+2*i+1}], s[78:79]")
    for nt in range(3):
        h = H + 16 * nt
        for i in range(4):
            A(f"v_lshlrev_b32 v{h+4+2*i}, 16, v{h+i}")
            A(f"v_and_b32 v{h+5+2*i}, 0xffff0000, v{h+i}")
    A(f"""
    v_mov_b32 v140, 0
    s_waitcnt vmcnt(0)
    s_setprio 3
    L2_gsp:
    ds_read_b32 v141, v140 offset:{FLG}
    s_waitcnt lgkmcnt(0)
    v_cmp_ne_u32 vcc, {24*16}, v141
    s_cbranch_vccz L2_gspd
    s_sleep {os.environ.get("GSL", "1")}
    s_branch L2_gsp
    L2_gspd:
    @stamp 11
    """)
    for nt in range(3):
        for k in range(4):
            A(f"ds_read_b128 v[{MF[nt]+4*k}:{MF[nt]+4*k+3}], v145 offset:{nt*16*MSTR + 64*k}")
    def mm(nt):
        o = []
        for k in range(4):
            o.append(f"s_waitcnt lgkmcnt({11 - 4*nt - k})")
            for ab in range(2):
                d = D + 8 * nt + 4 * ab
                o.append(mf16(d, W+16+32*ab+4*k, MF[nt]+4*k, d))
        return o
    def fin(nt):
        d = D + 8 * nt; tmp = MF[nt]; h = H + 16 * nt
        o = []
        o += [f"v_exp_f32 v{tmp+i}, v{d+i}" for i in range(8)]
        o += [f"v_pk_add_f32 v[{tmp+2*i}:{tmp+2*i+1}], v[{tmp+2*i}:{tmp+2*i+1}], 1.0 op_sel_hi:[1,0]" for i in range(4)]
        o += [f"v_rcp_f32 v{tmp+i}, v{tmp+i}" for i in range(8)]
        o += [f"v_pk_mul_f32 v[{tmp+2*i}:{tmp+2*i+1}], v[{tmp+2*i}:{tmp+2*i+1}], v[{d+2*i}:{d+2*i+1}]" for i in range(4)]
        o += [f"v_pk_fma_f32 v[{tmp+2*i}:{tmp+2*i+1}], v[{tmp+2*i}:{tmp+2*i+1}], s[80:81], v[{h+4+2*i}:{h+5+2*i}]" for i in range(4)]
        o += [f"v_cvt_pk_bf16_f32 v{h+i}, v{tmp+2*i}, v{tmp+2*i+1}" for i in range(4)]
        o += [f"buffer_store_dwordx4 v[{h}:{h+3}], v{(144,146,147)[nt]}, s[60:63], s82 offen"]
        return o
    for x in mm(0): A(x)
    for x in mm(1): A(x)
    f0 = fin(0); m2 = mm(2)
    for i, x in enumerate(f0):
        A(x)
        if i < 8 and i % 2 == 1:
            for y in m2[3*(i//2):3*(i//2)+3]: A(y)
    for x in fin(1): A(x)
    for x in fin(2): A(x)
    A(f"""
    @wait
    L2_other:
    @stamp 13
    @stamp 14 real
    @dump 8
    s_mov_b64 exec, -1
    {"s_cmp_eq_u32 s24, 11" if DIAG else ""}
    {"s_cbranch_scc1 L2_diag" if DIAG else ""}
    s_cmp_lg_u32 s56, {11*16}
    s_cbranch_scc1 L2_exit
    v_add_u32 v1, 1, v{LANE}
    v_and_b32 v4, 7, v1
    v_lshlrev_b32 v4, 4, v4
    v_add_u32 v4, {PP}, v4
    s_mul_i32 s72, s3, 6
    v_mul_u32_u24 v2, 6, v{LANE}
    v_mov_b64 v[12:13], 0
    v_mov_b32 v14, 0
    buffer_load_short_d16_hi v12, v2, s[44:47], s72 offen
    buffer_load_short_d16_hi v13, v2, s[44:47], s72 offen offset:2
    buffer_load_short_d16_hi v14, v2, s[44:47], s72 offen offset:4
    """)
    for w in range(12):
        A(f"ds_read_b128 v[{20+4*w}:{23+4*w}], v4 offset:{128*w}")
    A(f"""
    s_add_u32 s73, s72, 2560000
    s_add_u32 s60, s20, s73
    s_addc_u32 s61, s21, 0
    s_mul_i32 s62, s70, 6
    s_mov_b32 s63, 0x00020000
    v_mov_b64 v[16:17], 0
    v_mov_b64 v[18:19], 0
    s_mov_b32 s76, {f2u(-0.6931471805599453 * DELTA)}
    """)
    for w in range(12):
        A(f"s_waitcnt lgkmcnt({11-w})")
        A(f"v_cmp_eq_u32 vcc, v{20+4*w}, v1")
        A(f"s_mov_b64 exec, vcc")
        A(f"v_add_f32 v17, v17, v{21+4*w}")
        A(f"v_pk_add_f32 v[18:19], v[18:19], v[{22+4*w}:{23+4*w}]")
        A(f"s_mov_b64 exec, -1")
    A(f"""
    s_waitcnt vmcnt(0)
    v_fma_f32 v12, v17, s76, v12
    v_fma_f32 v13, v18, s76, v13
    v_fma_f32 v14, v19, s76, v14
    v_cvt_pk_bf16_f32 v12, v12, v13
    v_cvt_pk_bf16_f32 v14, v14, v14
    buffer_store_short v12, v2, s[60:63], 0 offen
    buffer_store_short_d16_hi v12, v2, s[60:63], 0 offen offset:2
    buffer_store_short v14, v2, s[60:63], 0 offen offset:4
    L2_exit:
    s_endpgm
    """)
    if DIAG:
        A(f"""
        L2_diag:
        s_memrealtime s[92:93]
        s_add_u32 s76, s22, {DBG1_OFF}
        s_addc_u32 s77, s23, 0
        s_load_dwordx2 s[78:79], s[76:77], 0
        s_waitcnt lgkmcnt(0)
        """)
        A({"k2": "s_sub_u32 s80, s92, s98", "k1k2": "s_sub_u32 s80, s98, s78", "k1": "s_sub_u32 s80, s79, s78", "pro": "s_sub_u32 s80, s100, s98", "0": "s_mov_b32 s80, 0"}[DIAG])
        A(f"""
        s_min_u32 s80, s80, 4000
        s_add_u32 s80, s80, 150
        s_mov_b32 s81, 0
        L2_dl:
        s_sleep 2
        s_memrealtime s[94:95]
        s_add_u32 s81, s81, 1
        s_waitcnt lgkmcnt(0)
        s_sub_u32 s82, s94, s92
        s_cmp_gt_u32 s81, 2000
        s_cbranch_scc1 L2_exit2
        s_cmp_lt_u32 s82, s80
        s_cbranch_scc1 L2_dl
        L2_exit2:
        s_endpgm
        """)
    section(True)
    for f in OOL: f()
    A(f"""
    L2_ov1:
    s_cbranch_vccz L2_nolost
    v_mov_b32 v1, 0x100000
    ds_write_b32 v{VZ}, v1 offset:{CNT}
    L2_nolost:
    """)
    p1((3, 4)); pL((3, 4))
    A("s_branch L2_ov1_done")
    A(f"""
    L2_slownext:
    s_mov_b32 s29, 1
    s_add_u32 s30, s30, 768
    s_cmp_ge_u32 s30, 320000
    s_cbranch_scc1 L2_flush
    L2_goslow:
    s_add_u32 s29, s29, 1
    s_waitcnt vmcnt(0) lgkmcnt(0)
    s_barrier
    v_lshrrev_b32 v1, 4, v{TID16}
    v_add_u32 v1, s30, v1
    v_min_u32 v3, 319999, v1
    v_lshlrev_b32 v4, 2, v3
    v_lshlrev_b32 v3, 1, v3
    global_load_dword v7, v4, s[12:13]
    global_load_dword v8, v4, s[10:11]
    global_load_ushort v6, v3, s[8:9]
    s_mov_b32 s73, 320000
    s_mov_b32 s76, 0x05040100
    v_cmp_gt_u32 s[60:61], s73, v1
    s_waitcnt vmcnt(0)
    v_subrev_u32 v7, s3, v7
    v_cmp_gt_u32 s[62:63], s70, v7
    v_lshl_add_u32 v7, v8, 6, v7
    v_lshl_add_u32 v7, v7, 2, 4
    v_lshlrev_b32 v6, 16, v6
    v_mul_f32 v6, {NLOG2E}, v6
    v_cvt_pk_bf16_f32 v6, v6, v6
    v_perm_b32 v7, v6, v7, s76
    s_and_b64 s[60:61], s[60:61], s[62:63]
    v_cndmask_b32 v2, 0, v7, s[60:61]
    v_lshrrev_b32 v5, 8, v8
    v_mov_b64 v[6:7], 0
    v_mov_b64 v[8:9], 0
    v_mov_b32 v3, 0
    v_mov_b32 v4, 0
    s_branch L2_batch
    """)
    A.check_all_edges()
    return A
```

```python
import sys, os
from asmlib import Asm, I

NAME = "gather_scatter__cheap_equivariant_egnn__graph"
NB = 256
NCH = 96
CHE = 3336
ROWB = (NCH + 1) * 128
OV_OFF = 0
REC_OFF = NCH * 128
BT_OFF = int(os.environ.get('BTO', '12')) << 20
PK_OFF = 16 << 20
CT_REL = 131072
WS_SIZE = 32 << 20
NGEMM = 157
NWG1 = NCH + NGEMM + 3
LDS1 = 65536
NLOG2E = 0xBFB8AA3B
NLN2 = 0xBF317218
CSTR = 144
KOV = 256 * CSTR
KDUM = KOV + 128
KCNT = KDUM + 128
OVCAP = 16

def mf32(d, a, b, c):
    cs = "0" if c is None else f"v[{c}:{c+15}]"
    return f"v_mfma_f32_32x32x16_bf16 v[{d}:{d+15}], v[{a}:{a+3}], v[{b}:{b+3}], {cs}"
def smf(d, a, b, ix):
    return f"v_smfmac_f32_32x32x32_bf16 v[{d}:{d+15}], v[{a}:{a+3}], v[{b}:{b+7}], v{ix}"
def mf16(d, a, b, c):
    cs = "0" if c is None else f"v[{c}:{c+3}]"
    return f"v_mfma_f32_16x16x32_bf16 v[{d}:{d+3}], v[{a}:{a+3}], v[{b}:{b+3}], {cs}"

def srd(A, r, lo, hi, size, add=None):
    if add is None:
        A(f"s_mov_b32 s{r}, s{lo}")
        A(f"s_mov_b32 s{r+1}, s{hi}")
    else:
        A(f"s_add_u32 s{r}, s{lo}, {add}")
        A(f"s_addc_u32 s{r+1}, s{hi}, 0")
    A(f"s_mov_b32 s{r+2}, {size}")
    A(f"s_mov_b32 s{r+3}, 0x00020000")

STAMP = bool(os.environ.get("STAMP"))
XF_ = set(os.environ.get("X", "").split(","))
DBG1_OFF = 20 << 20
DBG2_OFF = 24 << 20
def stamp(A, reg, real=False):
    if not STAMP: return
    A(f"s_mem{'real' if real else ''}time s[96:97]")
    A("s_waitcnt lgkmcnt(0)")
    A(f"s_mov_b32 s{reg}, s96")
def dump(A, regs, wslo, off, wreg, vt=0):
    if not STAMP: return
    A(f"s_mov_b64 exec, -1")
    A(f"v_mov_b32 v{vt}, 0")
    for i, r in enumerate(regs):
        A(f"v_writelane_b32 v{vt}, s{r}, {i}")
    A(f"v_mbcnt_lo_u32_b32 v{vt+1}, -1, 0")
    A(f"s_lshl_b32 s96, s2, 4")
    A(f"s_add_u32 s96, s96, s{wreg}")
    A(f"s_lshl_b32 s96, s96, 6")
    A(f"s_add_u32 s96, s96, {off}")
    A(f"v_lshl_add_u32 v{vt+1}, v{vt+1}, 2, s96")
    A(f"s_mov_b64 exec, 0xffff")
    A(f"global_store_dword v{vt+1}, v{vt}, s[{wslo}:{wslo+1}]")

SSET = os.environ.get("SSET")
def mk_macro(regs, wslo, off, wreg, named=False):
    def macro(A, t):
        if t[0] == "stamp":
            i = int(t[1])
            if named and SSET and 2 <= i <= 11:
                names = SSET.split(",")
                if str(i) in names: stamp(A, regs[2 + names.index(str(i))])
                return
            stamp(A, regs[i], len(t) > 2)
        elif t[0] == "st":
            if SSET and t[1] in SSET.split(","): stamp(A, regs[2 + SSET.split(",").index(t[1])])
        elif t[0] == "wait":
            if STAMP: A("s_waitcnt vmcnt(0)")
        elif t[0] == "dump": dump(A, regs, wslo, off, wreg, int(t[1]) if len(t) > 1 else 0)
    return macro

DIAG = os.environ.get("DIAG")
DG1 = """s_memrealtime s[82:83]
    s_waitcnt lgkmcnt(0)
    v_mov_b32 v60, s80
    v_mov_b32 v61, s82
    s_lshl_b32 s84, s2, 3
    v_mov_b32 v62, s84
    v_add_u32 v62, %d, v62
    global_store_dwordx2 v62, v[60:61], s[20:21]""" % DBG1_OFF if DIAG else ""
def gen_k1():
    A = Asm()
    A.macro = mk_macro(list(range(60, 72)), 20, DBG1_OFF, 23)
    PF = os.environ.get("PFL", "nt").replace("_", " ")
    NR = 2 if "prec" in XF_ else 0
    A("k1_kernel:")
    A(f"""
    s_load_dwordx16 s[4:19], s[0:1], 0
    s_load_dwordx2 s[20:21], s[0:1], 80
    s_cmp_ge_u32 s2, {NWG1}
    s_cbranch_scc1 L1_exit
    {"s_sleep " + os.environ["K1SL"] if "K1SL" in os.environ else ""}
    {"s_memrealtime s[80:81]" if DIAG else ""}
    @stamp 0 real
    @stamp 1
    v_lshrrev_b32 v2, 6, v0
    v_lshlrev_b32 v1, 4, v0
    s_cmp_ge_u32 s2, {NCH}
    v_readfirstlane_b32 s23, v2
    s_cbranch_scc1 L1_gemm
    s_mul_i32 s3, s2, {CHE*4}
    s_add_u32 s22, s3, {CHE*4}
    s_min_u32 s22, s22, 1280000
    v_add_u32 v3, s3, v1
    v_lshrrev_b32 v5, 1, v3
    v_cmp_gt_u32 s[36:37], s22, v3
    v_mov_b64 v[24:25], 0
    v_mov_b64 v[26:27], 0
    s_waitcnt lgkmcnt(0)
    s_mov_b64 exec, s[36:37]
    s_cbranch_execz L1_nold
    global_load_dwordx4 v[8:11], v3, s[12:13]
    global_load_dwordx4 v[14:17], v3, s[10:11]
    global_load_dwordx2 v[20:21], v5, s[8:9]
    L1_nold:
    s_mov_b64 exec, -1
    v_lshlrev_b32 v2, 3, v0
    ds_write_b64 v2, v[24:25] offset:32768
    ds_write_b128 v1, v[24:27]
    ds_write_b128 v1, v[24:27] offset:16384
    v_mov_b32 v23, 33
    """)
    assert KCNT + 257 * 4 <= 32768 + 8192
    srd(A, 24, 20, 21, REC_OFF + NB * ROWB)
    A(f"""
    v_lshrrev_b32 v28, 3, v0
    v_and_b32 v29, 7, v0
    v_lshlrev_b32 v29, 4, v29
    v_mul_u32_u24 v30, {CSTR}, v28
    v_mul_u32_u24 v28, {ROWB}, v28
    v_add_u32 v28, v28, v29
    v_add_u32 v30, v30, v29
    s_lshl_b32 s31, s2, 7
    s_add_u32 s32, s31, {REC_OFF}
    s_add_u32 s33, s32, {128*ROWB}
    s_mov_b32 s38, 429497
    s_movk_i32 s39, 625
    s_mov_b32 s40, {NLOG2E}
    s_mov_b32 s41, {NLOG2E}
    s_mov_b32 s42, 0x05040100
    s_mov_b32 s43, 0x07060100
    s_movk_i32 s44, {24*33}
    {f"buffer_store_dwordx4 v[24:27], v28, s[24:27], s32 offen {PF}" if NR else ""}
    {f"buffer_store_dwordx4 v[24:27], v28, s[24:27], s33 offen {PF}" if NR else ""}
    s_waitcnt lgkmcnt(0)
    s_barrier
    @stamp 2
    s_mov_b64 exec, s[36:37]
    s_cbranch_execz L1_skip
    s_waitcnt vmcnt({2+NR})
    @stamp 3
    """)
    for j in range(4):
        A(f"v_mul_u32_u24 v{32+j}, s38, v{8+j}")
        A(f"v_lshrrev_b32 v{32+j}, 24, v{32+j}")
        A(f"v_lshlrev_b32 v{38+j}, 2, v{32+j}")
        A(f"ds_add_rtn_u32 v{44+j}, v{38+j}, v23 offset:{KCNT}")
    for j in range(4):
        A(f"v_mad_u32_u24 v{48+j}, v{32+j}, s39, -1")
        A(f"v_ashrrev_i32 v{48+j}, 4, v{48+j}")
        A(f"v_sub_u32 v{8+j}, v{8+j}, v{48+j}")
        A(f"v_mul_u32_u24 v{32+j}, {CSTR}, v{32+j}")
    A(f"s_waitcnt vmcnt({1+NR})")
    for j in range(4):
        A(f"v_lshlrev_b32 v{14+j}, 6, v{14+j}")
        A(f"v_add_lshl_u32 v{8+j}, v{14+j}, v{8+j}, 2")
    A(f"""
    s_waitcnt vmcnt({NR})
    v_lshlrev_b32 v48, 16, v20
    v_and_b32 v49, 0xffff0000, v20
    v_lshlrev_b32 v50, 16, v21
    v_and_b32 v51, 0xffff0000, v21
    v_pk_mul_f32 v[48:49], v[48:49], s[40:41]
    v_pk_mul_f32 v[50:51], v[50:51], s[40:41]
    v_cvt_pk_bf16_f32 v20, v48, v49
    v_cvt_pk_bf16_f32 v21, v50, v51
    """)
    for j in range(4):
        A(f"v_perm_b32 v{14+j}, v{20+j//2}, v{8+j}, s{42+(j&1)}")
    A(f"""
    s_waitcnt lgkmcnt(0)
    v_max3_u32 v50, v44, v45, v46
    v_max_u32 v50, v50, v47
    v_cmp_le_u32 vcc, s44, v50
    s_cbranch_vccnz L1_ovf
    L1_ovf_done:
    """)
    for j in range(4):
        A(f"v_bfe_u32 v{48+j}, v{44+j}, 3, 5")
        A(f"v_bfe_u32 v{44+j}, v{44+j}, 3, 2")
        A(f"v_lshl_add_u32 v{48+j}, v{48+j}, 2, v{32+j}")
        A(f"v_mad_i32_i24 v{44+j}, v{44+j}, -3, v{48+j}")
        A(f"ds_write_b32 v{48+j}, v{14+j}")
        A(f"ds_write_b8_d16_hi v{44+j}, v{8+j} offset:12")
    A(f"""
    L1_skip:
    s_mov_b64 exec, -1
    s_waitcnt lgkmcnt(0)
    @stamp 4
    s_barrier
    @stamp 5
    ds_read_b128 v[32:35], v30
    ds_read_b128 v[36:39], v30 offset:{128*CSTR}
    s_cmp_lg_u32 s23, 15
    s_cbranch_scc1 L1_noov
    {DG1}
    ds_read_b128 v[40:43], v29 offset:{KOV}
    s_mov_b64 exec, 0xff
    s_waitcnt lgkmcnt(0)
    buffer_store_dwordx4 v[40:43], v29, s[24:27], s31 offen
    s_mov_b64 exec, -1
    L1_noov:
    s_waitcnt lgkmcnt(1)
    buffer_store_dwordx4 v[32:35], v28, s[24:27], s32 offen
    s_waitcnt lgkmcnt(0)
    buffer_store_dwordx4 v[36:39], v28, s[24:27], s33 offen
    {"s_add_u32 s24, s24, 0x400000" if "rec2" in XF_ else ""}
    {"s_addc_u32 s25, s25, 0" if "rec2" in XF_ else ""}
    {"buffer_store_dwordx4 v[32:35], v28, s[24:27], s32 offen" if "rec2" in XF_ else ""}
    {"buffer_store_dwordx4 v[36:39], v28, s[24:27], s33 offen" if "rec2" in XF_ else ""}
    @stamp 6
    @wait
    @stamp 7
    @stamp 8 real
    @dump
    L1_exit:
    s_endpgm
    L1_ovf:
    v_mov_b32 v51, {256*4}
    v_mov_b32 v52, 8
    """)
    for j in range(4):
        A(f"""
        v_cmp_le_u32 vcc, s44, v{44+j}
        s_cbranch_vccz L1_ovf{j}
        s_mov_b64 exec, vcc
        ds_add_rtn_u32 v{44+j}, v51, v52 offset:{KCNT}
        v_lshrrev_b32 v50, 16, v{8+j}
        v_add_u32 v53, 4, v{38+j}
        v_lshl_or_b32 v50, v53, 6, v50
        v_mov_b32 v53, v{32+j}
        v_mov_b32 v{32+j}, {KDUM}
        s_waitcnt lgkmcnt(0)
        v_cmp_le_u32 vcc, {8*OVCAP}, v{44+j}
        v_min_u32 v{44+j}, {8*OVCAP}, v{44+j}
        v_add_u32 v{44+j}, {KOV}, v{44+j}
        ds_write2_b32 v{44+j}, v{14+j}, v50 offset0:0 offset1:1
        v_mov_b32 v{44+j}, 0
        s_cbranch_vccz L1_ovg{j}
        s_mov_b64 exec, vcc
        ds_write_b8 v53, v23 offset:15
        L1_ovg{j}:
        s_mov_b64 exec, s[36:37]
        L1_ovf{j}:
        """)
    A("s_branch L1_ovf_done")
    A(f"""
    L1_gemm:
    s_sub_u32 s3, s2, {NCH}
    v_and_b32 v2, 63, v0
    v_lshrrev_b32 v3, 4, v2
    v_and_b32 v4, 15, v2
    v_lshlrev_b32 v5, 2, v3
    v_xor_b32 v5, v5, v4
    v_lshlrev_b32 v5, 4, v5
    v_mov_b32 v8, v3
    s_lshl_b32 s41, s23, 11
    s_mov_b32 s53, s41
    s_add_u32 s54, s41, 1024
    s_cmp_eq_u32 s3, {NGEMM+1}
    s_cbranch_scc1 L1_perm
    L1_permd:
    v_lshl_add_u32 v5, v8, 8, v5
    s_lshl_b32 s42, s23, 2
    v_add_u32 v6, s42, v3
    v_xor_b32 v7, v6, v4
    v_and_b32 v7, 15, v7
    v_lshlrev_b32 v7, 4, v7
    v_lshl_add_u32 v6, v6, 8, v7
    s_lshl_b32 s46, s3, 14
    v_add_u32 v6, s46, v6
    s_lshl_b32 s45, s23, 10
    s_sub_u32 s22, s3, {NGEMM}
    s_and_b32 s40, s22, 1
    s_cmp_lt_u32 s3, {NGEMM}
    s_cselect_b32 s40, 1, s40
    s_lshl_b32 s40, s40, 15
    s_cmp_lt_u32 s22, 2
    s_waitcnt lgkmcnt(0)
    s_cselect_b32 s24, s18, s14
    s_cselect_b32 s25, s19, s15
    s_add_u32 s24, s24, s40
    s_addc_u32 s25, s25, 0
    s_mov_b32 m0, s45
    s_mov_b32 s26, 32768
    s_mov_b32 s27, 0x00020000
    """)
    srd(A, 28, 4, 5, 2560000)
    A(f"""
    buffer_load_dwordx4 v6, s[28:31], 0 offen lds
    s_add_u32 m0, s41, 16384
    s_and_b32 s43, s23, 3
    buffer_load_dwordx4 v5, s[24:27], s53 offen lds
    s_add_u32 m0, s41, 17408
    s_nop 0
    buffer_load_dwordx4 v5, s[24:27], s54 offen lds
    """)
    srd(A, 32, 20, 21, 16 << 20, add=BT_OFF)
    PF = os.environ.get("PFL", "nt").replace("_", " ")
    NP = 1 if "pbt" in XF_ else 0
    if NP: A(f"buffer_store_dwordx4 v[2:5], v6, s[32:35], 0 offen {PF}")
    A(f"""
    s_cmp_gt_u32 s23, 7
    s_cbranch_scc1 L1_help
    s_bfe_u32 s44, s23, 0x10002
    v_bfe_u32 v8, v2, 2, 2
    v_and_b32 v9, 3, v2
    v_xor_b32 v10, s43, v8
    v_lshlrev_b32 v10, 6, v10
    v_lshl_add_u32 v10, v8, 8, v10
    s_cmp_ge_u32 s3, {NGEMM}
    s_cbranch_scc1 L1_pack
    v_lshrrev_b32 v11, 5, v2
    v_lshl_add_u32 v10, v11, 11, v10
    v_bfe_u32 v12, v2, 4, 1
    v_and_b32 v13, 31, v2
    s_lshl_b32 s47, s44, 5
    v_add_u32 v14, s47, v13
    v_xor_b32 v15, v11, v14
    v_and_b32 v15, 15, v15
    v_lshlrev_b32 v15, 4, v15
    v_lshl_add_u32 v15, v14, 8, v15
    s_mov_b32 s48, {NLOG2E}
    s_mov_b32 s49, {NLOG2E}
    v_and_b32 v18, 1, v9
    v_lshrrev_b32 v19, 1, v9
    v_lshl_add_u32 v10, v18, 5, v10
    v_lshl_add_u32 v10, v12, 4, v10
    v_lshl_add_u32 v10, v19, 3, v10
    s_lshl_b32 s50, s43, 2
    v_lshl_add_u32 v17, v11, 1, s50
    v_xor_b32 v17, v17, v14
    v_and_b32 v17, 15, v17
    v_lshlrev_b32 v17, 4, v17
    v_lshl_add_u32 v17, v14, 8, v17
    v_xor_b32 v18, 16, v17
    """)
    for s in range(1, 8):
        A(f"v_xor_b32 v{20+s}, {s*32}, v15")
    A(f"""
    @stamp 2
    s_waitcnt vmcnt({NP})
    @stamp 3
    s_barrier
    @stamp 5
    """)
    for s in range(8):
        A(f"ds_read_b128 v[{64+4*s}:{64+4*s+3}], v{20+s if s else 15}")
        A(f"ds_read_b64_tr_b16 v[{32+4*s}:{32+4*s+1}], v10 offset:{16384+16*s*256}")
        A(f"ds_read_b64_tr_b16 v[{32+4*s+2}:{32+4*s+3}], v10 offset:{16384+(16*s+4)*256}")
    for s in range(8):
        A(f"s_waitcnt lgkmcnt({min(15, 3*(7-s))})")
        A(mf32(96, 32+4*s, 64+4*s, 96 if s else None))
    for i in range(8):
        A(f"v_pk_mul_f32 v[{96+2*i}:{96+2*i+1}], v[{96+2*i}:{96+2*i+1}], s[48:49]")
    for i in range(8):
        A(f"v_cvt_pk_bf16_f32 v{96+i}, v{96+2*i}, v{96+2*i+1}")
    A(f"""
    ds_write_b128 v17, v[96:99] offset:49152
    ds_write_b128 v18, v[100:103] offset:49152
    s_waitcnt lgkmcnt(0)
    @stamp 4
    L1_gst:
    s_barrier
    ds_read_b128 v[96:99], v1 offset:49152
    s_waitcnt lgkmcnt(0)
    buffer_store_dwordx4 v[96:99], v6, s[32:35], 0 offen {os.environ.get('BTST','').replace('_',' ')}
    @stamp 6
    @wait
    @stamp 7
    @stamp 8 real
    @dump
    s_endpgm
    L1_help:
    s_cmp_ge_u32 s3, {NGEMM}
    s_waitcnt vmcnt({NP})
    s_barrier
    s_cbranch_scc0 L1_gst
    s_lshl_b32 s40, s22, 4
    s_add_u32 s40, s40, s23
    s_cmp_eq_u32 s40, 8
    s_cbranch_scc1 L1_ct
    s_endpgm
    L1_perm:
    v_lshrrev_b32 v8, 1, v3
    v_and_b32 v9, 1, v3
    v_lshl_add_u32 v8, v9, 5, v8
    s_lshr_b32 s53, s23, 3
    s_lshl_b32 s53, s53, 14
    s_and_b32 s54, s23, 7
    s_lshl_b32 s54, s54, 10
    s_add_u32 s53, s53, s54
    s_add_u32 s54, s53, 512
    s_branch L1_permd
    L1_pack:
    v_lshl_add_u32 v10, v3, 11, v10
    v_lshl_add_u32 v10, v9, 4, v10
    s_lshl_b32 s50, s44, 3
    v_add_u32 v10, s50, v10
    s_lshl_b32 s51, s43, 15
    s_lshl_b32 s52, s44, 14
    s_add_u32 s51, s51, s52
    s_lshl_b32 s52, s22, 12
    s_add_u32 s51, s51, s52
    s_add_u32 s51, s51, {PK_OFF - BT_OFF}
    v_lshlrev_b32 v17, 4, v2
    s_waitcnt vmcnt({NP})
    s_barrier
    """)
    for ks in range(4):
        A(f"ds_read_b64_tr_b16 v[{32+4*ks}:{32+4*ks+1}], v10 offset:{16384+32*ks*256}")
        A(f"ds_read_b64_tr_b16 v[{32+4*ks+2}:{32+4*ks+3}], v10 offset:{16384+(32*ks+4)*256}")
    for ks in range(4):
        A(f"s_waitcnt lgkmcnt({6-2*ks})")
        A(f"buffer_store_dwordx4 v[{32+4*ks}:{32+4*ks+3}], v17, s[32:35], s51 offen offset:{1024*ks}")
    A("s_endpgm")
    from g2 import gen_ct
    gen_ct(A)
    A.check_all_edges()
    fl = os.environ.get("K1ST")
    if fl:
        for x in A.ins:
            if x.op.startswith("buffer_store"): x.text += " " + fl.replace("_", " ")
    return A

HEAD = open(f"cdna_kernels/{NAME}.s.ref").read().split("; Override launch")[0]

def kdesc(name, nv):
    return f""".p2align 6
.amdhsa_kernel {name}
  .amdhsa_next_free_vgpr {nv}
  .amdhsa_next_free_sgpr 102
  .amdhsa_accum_offset {nv}
  .amdhsa_group_segment_fixed_size 0
  .amdhsa_kernarg_size 88
  .amdhsa_user_sgpr_count 2
  .amdhsa_user_sgpr_kernarg_segment_ptr 1
  .amdhsa_system_sgpr_workgroup_id_x 1
.end_amdhsa_kernel
"""

def build(kernels):
    s = HEAD
    for (name, A, grid, block, lds, nv) in kernels:
        s += f"; @launch kernel={name} grid=({grid},1,1) block=({block},1,1) lds={lds}\n"
    s += '.amdgcn_target "amdgcn-amd-amdhsa--gfx950"\n.text\n'
    for (name, A, grid, block, lds, nv) in kernels:
        s += f".globl {name}\n.p2align 8\n.type {name},@function\n" + A.text()
    s += '.section .rodata,"a"\n'
    for (name, A, grid, block, lds, nv) in kernels:
        s += kdesc(name, nv)
    return s

if __name__ == "__main__":
    from g2 import gen_k2, LDS2
    k1 = gen_k1(); k2 = gen_k2()
    out = sys.argv[1]
    open(out, "w").write(build([("k1_kernel", k1, NWG1, 1024, LDS1, 112), ("k2_kernel", k2, NB, 768, LDS2, 168)]))
    print("written", out, "nops", k1.nops, k2.nops, "instrs", len(k1.ins), len(k2.ins))
```

```python
from g1 import *

CAPT = 48
C1S = 0
OH = (32 * CAPT + 336) * 16
CNT = OH + CAPT * 512
NS = CNT
AL0 = 55296
assert NS + 768 == AL0 and AL0 % 2048 == 0
AL = AL0 + 256
WR = AL + 48 * 256
WX = WR + 512
SLOT = 4192
SLE = WX + 256
TAB = SLE + 8 * SLOT
LDS2 = TAB + 59 * 1024
assert LDS2 <= 163840
FLG = CNT + 252
ZA = CNT + 176
MB = TAB
MSTR = 272
SLL = MB + 13056
PP = SLL + 4 * SLOT
H2 = (PP + 1536 + 255) & ~255
assert H2 + 12288 <= LDS2 and SLL % 16 == 0 and PP % 16 == 0

T0, T1, E0, E1, AC0, AC1, AF, ON, SF, ID, EXT, XF, IX = 0, 16, 32, 48, 64, 80, 96, 112, 120, 128, 136, 144, 148
SI, LC, VX, VSC, VL, VA, VLO, VHI = 156, 157, 158, 159, 160, 161, 162, 163
FL3 = CNT + 232
import struct
f2u = lambda x: struct.unpack("<I", struct.pack("<f", x))[0]
DELTA = 1.00268
LANE, VZ = 164, 108
V16, V1B, TID16 = 165, 166, 167
CK, MK, B1, B2, J4, CJ = 144, 145, 146, 147, VLO, VHI
INC, EXC = 20, 21
GW = AC0
GD = [96, 100, 104, 112, 116, 124]
GH = [[116, 120, 32, 36], [40, 52, 56, 60], [136, 140, 152, 148]]
GQ = 48
XA = 16
env = lambda k, d: int(os.environ.get(k, str(d)))

def gen_ct(A):
    o = lambda p, i: 32 + 4 * p + i
    L, KG, JS, JE = 2, 10, 11, 12
    A(f"""
    L1_ct:
    v_lshlrev_b32 v17, 4, v{L}
    v_mov_b64 v[32:33], 0
    v_mov_b64 v[34:35], 0
    s_add_u32 s40, s14, 65536
    s_addc_u32 s41, s15, 0
    v_and_b32 v3, 16, v{L}
    v_lshlrev_b32 v3, 2, v3
    v_xor_b32 v3, v3, v17
    v_add_u32 v4, -512, v17
    s_mov_b32 exec_hi, 0
    global_load_dwordx4 v[32:35], v3, s[40:41]
    s_mov_b32 exec_lo, 0
    s_mov_b32 exec_hi, 0xffff
    global_load_dwordx4 v[32:35], v4, s[16:17]
    s_mov_b64 exec, -1
    v_and_b32 v5, 31, v{L}
    v_lshrrev_b32 v{KG}, 5, v{L}
    v_lshlrev_b32 v6, 3, v{KG}
    v_sub_u32 v5, v5, v6
    v_and_b32 v6, 1, v5
    v_lshlrev_b32 v6, 4, v6
    v_mov_b32 v7, 0x3f80
    v_lshlrev_b32 v6, v6, v7
    v_ashrrev_i32 v5, 1, v5
    """)
    for h in range(2):
        for r in range(4):
            A(f"v_cmp_eq_u32 vcc, {r + 8*h}, v5")
            A(f"v_cndmask_b32 v{o(1+h, r)}, 0, v6, vcc")
    A(f"""
    v_and_b32 v5, 7, v{L}
    v_xor_b32 v6, v5, v{KG}
    v_lshlrev_b32 v{o(5,1)}, 4, v6
    v_lshlrev_b32 v{o(7,1)}, 4, v6
    v_lshlrev_b32 v{o(7,3)}, 4, v6
    v_mov_b32 v{o(5,0)}, 0xdddddddd
    v_and_b32 v7, 8, v{L}
    v_and_b32 v8, 3, v{L}
    v_lshl_add_u32 v8, v8, 1, v7
    v_bfe_u32 v7, v{L}, 4, 1
    v_add_u32 v8, v8, v7
    v_bfe_u32 v9, v{L}, 2, 1
    v_lshl_add_u32 v8, v8, 1, v9
    v_xor_b32 v9, 1, v{KG}
    v_mul_u32_u24 v9, {OH}, v9
    v_lshl_add_u32 v{o(5,2)}, v8, 4, v9
    v_lshrrev_b32 v9, 3, v8
    v_mul_u32_u24 v9, 1056, v9
    v_and_b32 v8, 7, v8
    v_lshl_add_u32 v9, v8, 7, v9
    v_and_b32 v6, 1, v6
    v_lshl_add_u32 v{o(6,1)}, v6, 4, v9
    v_lshrrev_b32 v6, 3, v{L}
    v_lshlrev_b32 v{o(6,0)}, 4, v6
    v_and_b32 v5, 3, v{L}
    v_lshl_add_u32 v{JS}, v7, 2, v5
    v_bfe_u32 v{JE}, v{L}, 2, 2
    v_lshl_add_u32 v7, v{KG}, 2, v{JE}
    v_lshl_add_u32 v{o(5,3)}, v7, 6, 8
    v_lshlrev_b32 v{o(6,2)}, 2, v{JS}
    v_sub_u32 v{o(6,3)}, 28, v{o(6,2)}
    """)
    for hf in range(2):
        ck, mk, b1, b2 = [o(3+hf, i) for i in range(4)]
        A(f"""
        v_sub_u32 v{ck}, 7, v{JE}
        v_lshlrev_b32 v{ck}, 8, v{ck}
        v_mov_b32 v{mk}, 0xfffff800
        v_add_u32 v5, 3, v{JE}
        v_sub_u32 v5, v5, v{KG}
        v_and_b32 v5, 3, v5
        v_xor_b32 v5, {2*hf}, v5
        v_lshl_add_u32 v5, v{JE}, 2, v5
        v_lshlrev_b32 v5, 6, v5
        v_lshl_add_u32 v{b1}, v{JS}, 3, v5
        v_add_u32 v{b2}, 1024, v{b1}
        s_mov_b32 exec_lo, 0
        v_mov_b32 v{mk}, 0
        v_add_u32 v{b1}, {WR - 512}, v{b1}
        v_mov_b32 v{b2}, {ZA}
        s_mov_b32 exec_hi, 0x00ff00ff
        v_mov_b32 v{b1}, {ZA}
        s_mov_b64 exec, -1
        """)
    A(f"""
    v_and_b32 v5, 15, v{L}
    v_lshrrev_b32 v6, 4, v{L}
    v_xor_b32 v7, v5, v6
    v_lshlrev_b32 v7, 4, v7
    v_lshl_add_u32 v{o(7,0)}, v5, 8, v7
    v_and_b32 v7, 3, v{L}
    v_lshlrev_b32 v7, 2, v7
    v_add_lshl_u32 v7, v7, v6, 4
    v_lshl_add_u32 v{o(7,2)}, v5, 8, v7
    s_mov_b32 s40, {PK_OFF - BT_OFF + CT_REL}
    s_mov_b32 s41, {PK_OFF - BT_OFF + CT_REL + 4096}
    s_waitcnt vmcnt(0)
    """)
    for p in range(8):
        A(f"buffer_store_dwordx4 v[{o(p,0)}:{o(p,3)}], v17, s[32:35], s{40 + p//4} offen offset:{1024*(p&3)}")
    A("s_endpgm")

def gen_k2():
    P0 = env("P0", 2)
    ED = env("ED", 3)
    PG = env("PG", 0)
    TH = [int(x) for x in os.environ.get("TH", "4,2,1").split(",")]
    ROT0 = "s_mul_i32 s89, s24, 5120"
    A = Asm()
    A.macro = mk_macro([98, 99, 36, 37, 38, 39, 91, 92, 93, 100, 101, 74, 75, 59, 18, 19], 22, DBG2_OFF, 24, True)
    RD = [2, 3, 4, 6, 8]; RH = [5, 5, 5, 7, 9]; SEL = [81, 82, 83, 81, 81]
    RA, RK, RL = 10, 15, 22
    MR = [60, 62, 14, 66, 68]
    mask = lambda j: f"s[{MR[j]}:{MR[j]+1}]"
    RP = 32
    A("k2_kernel:")
    A(f"""
    s_load_dwordx2 s[22:23], s[0:1], 80
    s_load_dwordx16 s[4:19], s[0:1], 0
    s_load_dwordx2 s[20:21], s[0:1], 64
    s_cmp_ge_u32 s2, {NB}
    s_cbranch_scc1 L2_exit
    {"s_memrealtime s[98:99]" if DIAG else ""}
    @stamp 0 real
    @stamp 1
    v_lshrrev_b32 v1, 6, v0
    v_lshlrev_b32 v{TID16}, 4, v0
    v_readfirstlane_b32 s24, v1
    v_and_b32 v{LANE}, 63, v0
    s_mul_i32 s76, s2, {ROWB}
    s_add_u32 s76, s76, {REC_OFF}
    s_mul_i32 s3, s2, 625
    s_add_u32 s70, s3, {625+15}
    s_add_u32 s3, s3, 15
    s_lshr_b32 s3, s3, 4
    s_lshr_b32 s70, s70, 4
    s_sub_u32 s70, s70, s3
    s_lshl_b32 s71, s3, 8
    s_lshl_b32 s54, s70, 8
    s_mov_b32 s55, 0x00020000
    v_lshrrev_b32 v39, 4, v0
    v_xor_b32 v40, v39, v0
    v_and_b32 v40, 15, v40
    v_lshlrev_b32 v40, 4, v40
    v_lshl_add_u32 v39, v39, 8, v40
    s_mov_b32 s29, 0
    s_mov_b32 s30, 0
    s_lshl_b32 s34, s24, 10
    s_add_u32 m0, s34, {AL}
    s_mov_b32 s50, {CT_REL + 8192}
    s_mov_b32 s51, 0x00020000
    s_waitcnt lgkmcnt(0)
    s_add_u32 s32, s22, s76
    s_addc_u32 s33, s23, 0
    global_load_dwordx4 v[2:5], v{TID16}, s[32:33]
    {"v_mov_b32 v41, 0" if "xov" in XF_ else ""}
    global_load_dwordx4 v[6:9], v{41 if "xov" in XF_ else TID16}, s[22:23]
    s_add_u32 s52, s4, s71
    s_addc_u32 s53, s5, 0
    s_add_u32 s48, s22, {PK_OFF}
    s_addc_u32 s49, s23, 0
    buffer_load_dwordx4 v39, s[52:55], 0 offen lds
    s_and_b32 s25, s24, 1
    s_bfe_u32 s26, s24, 0x10001
    s_lshr_b32 s27, s24, 2
    s_mul_i32 s31, s24, {SLOT}
    s_mov_b32 s77, {SLL}
    s_cmp_eq_u32 s27, 0
    s_cselect_b32 s77, s77, {SLE - 4*SLOT}
    s_cselect_b32 s57, 1, 0
    s_add_u32 s31, s31, s77
    s_mov_b32 s44, s6
    s_mov_b32 s45, s7
    s_mov_b32 s46, {env("TABSZ", 60000)}
    s_mov_b32 s47, 0x00020000
    s_lshl_b32 s85, s25, 7
    s_add_u32 s85, s85, {BT_OFF - 4096}
    s_add_u32 s40, s22, s85
    s_addc_u32 s41, s23, {256 << 16}
    s_mov_b32 s42, {2560000 + 4096 - 128}
    s_mov_b32 s43, 0x00020000
    v_mov_b32 v{V16}, 16
    v_mov_b32 v{V1B}, 0x3f80
    L2_batch:
    @st a
    v_lshlrev_b32 v30, 4, v{LANE}
    s_add_u32 m0, s34, {WR}
    s_add_u32 s78, s34, {CT_REL}
    v_mov_b64 v[{VZ}:{VZ+1}], 0
    v_mov_b64 v[{VZ+2}:{VZ+3}], 0
    buffer_load_dwordx4 v30, s[48:51], s78 offen lds
    v_lshrrev_b32 v1, 1, v{TID16}
    """)
    for i in range(4):
        A(f"ds_write_b128 v{TID16}, v[{VZ}:{VZ+3}] offset:{12288*i}")
    A(f"""
    v_cmp_eq_u32 vcc, {CNT + 160 - 49152}, v1
    v_mov_b32 v44, 0
    v_mov_b32 v45, 0x1000000
    {ROT0}
    v_cndmask_b32 v45, 0, v45, vcc
    v_cmp_gt_u32 vcc, {CNT + 256 - 49152}, v1
    s_add_u32 m0, s89, {TAB}
    v_lshlrev_b32 v29, 2, v{LANE}
    s_mov_b64 exec, vcc
    ds_write_b64 v1, v[44:45] offset:49152
    s_mov_b64 exec, -1
    s_add_u32 s76, s2, 1
    s_lshl_b32 s76, s76, 8
    s_movk_i32 s77, 256
    s_mov_b32 s81, 0x0c0c0401
    s_mov_b32 s82, 0x0c0c0501
    s_mov_b32 s83, 0x0c0c0601
    s_mov_b32 s79, 0xffffff
    s_lshl_b32 s80, s25, 10
    v_add_u32 v27, {WR}, v30
    v_add_u32 v31, s80, v27
    s_sub_u32 s72, 23, s24
    s_lshl_b32 s72, s72, 10
    v_add_u32 v28, s72, v30
    """)
    TBP = [int(x) for x in os.environ.get("TBP", "1,2,2,4,5").split(",")]
    ntb = lambda p: sum(1 for x in TBP if x <= p)
    def tab(p):
        for i in range(5):
            if TBP[i] != p: continue
            if i < 4:
                A(f"buffer_load_dwordx4 v30, s[44:47], s89 offen offset:{1024*i} lds")
            else:
                A(f"""
                s_add_u32 s89, s89, 4096
                s_min_u32 s89, s89, {58*1024}
                s_add_u32 m0, s89, {TAB}
                s_nop 0
                buffer_load_dwordx4 v30, s[44:47], s89 offen lds
                """)
    tab(0)
    A(f"""
    s_waitcnt lgkmcnt(0)
    @st b
    s_barrier
    @st c
    """)
    tab(1)
    A(f"""
    @stamp 2
    s_waitcnt vmcnt({2 + ntb(1)})
    @stamp 3
    """)
    def p1(js):
        for j in js:
            A(f"v_and_b32 v{RA+j}, 0xfc, v{RD[j]}")
        for j in js:
            A(f"s_mov_b64 exec, {mask(j)}")
            A(f"ds_add_rtn_u32 v{RK+j}, v{RA+j}, v{V16} offset:{CNT}")
        A("s_mov_b64 exec, -1")
    def pL(js):
        for j in js:
            A(f"v_perm_b32 v{RP+2*j}, v{RH[j]}, v{RD[j]}, s{SEL[j]}")
            A(f"v_mov_b32 v{RP+2*j+1}, v{RD[j]}")
    for j in range(3):
        A(f"v_cmp_ne_u32 {mask(j)}, 0, v{RD[j]}")
    p1(range(3))
    A(f"""
    v_xor_b32 v7, s76, v7
    v_xor_b32 v9, s76, v9
    v_cmp_gt_u32 {mask(3)}, s77, v7
    v_cmp_gt_u32 {mask(4)}, s77, v9
    v_cmp_lt_u32 vcc, s79, v5
    """)
    pL(range(3))
    A(f"""
    s_or_b64 s[84:85], {mask(3)}, {mask(4)}
    s_cselect_b32 s90, 1, 0
    s_or_b64 s[84:85], s[84:85], vcc
    s_cbranch_scc1 L2_ov1
    L2_ov1_done:
    """)
    A("@st p")
    tab(2)
    A(f"""
    @st q
    s_cmp_lg_u32 s57, 0
    s_waitcnt vmcnt({ntb(2)}) lgkmcnt(0)
    @st r
    s_barrier
    @stamp 4
    ds_read_b32 v{EXC}, v29 offset:{CNT}
    s_cbranch_scc1 L2_secG
    """)
    def ixrd(reg, t):
        for i in range(4):
            A(f"ds_read_b32 v{IX+2*i}, v{reg} offset:{512*t+128*i}")
    def lcset():
        for i in range(4):
            A(f"v_mov_b32 v{IX+2*i+1}, v{LC}")
    def dma():
        for i in range(4):
            A(f"buffer_load_dwordx4 v[{IX+2*i}:{IX+2*i+1}], s[40:43], s{84+i} idxen offen offset:{1056*i} {os.environ.get('BTLD','').replace('_',' ')} lds")
    def p2(js, w):
        if w is not None: A(f"s_waitcnt lgkmcnt({w})")
        for n, j in enumerate(js):
            A(f"s_mov_b64 exec, {mask(j)}")
            A(f"v_add_u32 v{RK+j}, v{RK+j}, v{RA+j}")
            A(f"ds_write_b64 v{RK+j}, v[{RP+2*j}:{RP+2*j+1}]")
        A("s_mov_b64 exec, -1")
    class D: pass
    DS = []
    for k in range(2):
        d = D(); d.pos = TID16 if k == 0 else 28
        d.e = 2 + 2 * k; d.ta = 6 + 2 * k; d.a = 7 + 2 * k; d.u = 26 + k
        d.P = [[44, 45, 46], [47, 24, 25]][k]; d.N = [10 + 3 * k + c for c in range(3)]; d.m = f"s[{76+2*k}:{77+2*k}]"
        DS.append(d)
    OOL = []

    def section(G):
        sx = "G" if G else ""
        def X(k):
            if not G: return
            A(f"s_waitcnt vmcnt({6-2*k})")
            for nt in range(3):
                for ab in range(2):
                    d = GD[2*nt+ab]
                    A(mf16(d, GW+16*ab+4*k, GH[nt][k], d if k else None))
        def d_rd(d):
            A(f"v_mad_u32_u24 v{d.ta}, v{d.e}, 6, s82")
            A(f"v_bfe_u32 v{d.u}, v{d.e+1}, 2, 6")
            A(f"v_mad_u32_u24 v{d.a}, v{d.u}, 6, s83")
            for c in range(3):
                A(f"ds_read_u16_d16_hi v{d.P[c]}, v{d.ta} offset:{2*c}")
            for c in range(3):
                A(f"ds_read_u16_d16_hi v{d.N[c]}, v{d.a} offset:{2*c}")
        def d_ad(d):
            A(f"v_cmp_ne_u32 {d.m}, 0, v{d.e+1}")
            A(f"v_bfe_u32 v{d.ta}, v{d.e+1}, 1, 4")
            A(f"v_add_u32 v{d.ta}, v{d.ta}, v{d.pos}")
            A(f"v_lshl_add_u32 v{d.a}, v{d.u}, 7, v{d.pos}")
        def d_math(d):
            for c in range(3):
                A(f"v_sub_f32 v{d.N[c]}, v{d.N[c]}, v{d.P[c]}")
            A(f"v_cvt_pk_bf16_f32 v{d.e}, 1.0, v{d.N[0]}")
            A(f"v_cvt_pk_bf16_f32 v{d.e+1}, v{d.N[1]}, v{d.N[2]}")
            A(f"v_dot2_f32_bf16 v{d.N[0]}, v{d.e}, v{d.e}, -1.0")
            A(f"v_dot2_f32_bf16 v{d.N[0]}, v{d.e+1}, v{d.e+1}, v{d.N[0]}")
            A(f"s_mov_b64 exec, {d.m}")
            A(f"ds_write_b16 v{d.ta}, v{V1B} offset:{OH}")
            A(f"ds_write_b64 v{d.a}, v[{d.e}:{d.e+1}] offset:8")
            A(f"v_mul_f32 v{d.N[0]}, {NLOG2E}, v{d.N[0]}")
            A(f"v_cvt_pk_bf16_f32 v{d.N[0]}, v{d.N[0]}, v{d.N[0]}")
            A(f"ds_write_b16 v{d.pos}, v{d.N[0]} offset:4")
            A("s_mov_b64 exec, -1")
        if G:
            A("L2_secG:")
            A(f"ds_read_b128 v[{GQ}:{GQ+3}], v27 offset:{7*1024}")
        tab(3)
        A(f"""
        s_waitcnt lgkmcnt({1 if G else 0})
        @st x1
        v_add_u32_dpp v{INC}, v{EXC}, v{EXC} row_shr:1 row_mask:0xf bank_mask:0xf bound_ctrl:0
        s_nop 0
        s_mov_b32 s84, 4096
        v_add_u32_dpp v{INC}, v{INC}, v{INC} row_shr:2 row_mask:0xf bank_mask:0xf bound_ctrl:0
        s_mov_b32 s85, {4096-1056}
        s_mov_b32 s86, {4096-2112}
        v_add_u32_dpp v{INC}, v{INC}, v{INC} row_shr:4 row_mask:0xf bank_mask:0xf bound_ctrl:0
        s_mov_b32 s87, {4096-3168}
        s_mov_b32 s88, 512
        v_add_u32_dpp v{INC}, v{INC}, v{INC} row_shr:8 row_mask:0xf bank_mask:0xf bound_ctrl:0
        s_lshl_b32 s32, s24, 15
        s_add_u32 s32, s32, {8192 + (1 << 20 if "xw" in XF_ else 0)}
        v_add_u32_dpp v{INC}, v{INC}, v{INC} row_bcast:15 row_mask:0xa bank_mask:0xf
        s_add_u32 s33, s32, 16384
        s_lshl_b32 s35, s24, 6
        v_add_u32_dpp v{INC}, v{INC}, v{INC} row_bcast:31 row_mask:0xc bank_mask:0xf
        v_sub_u32 v{EXC}, v{INC}, v{EXC}
        """)
        for j in range(3):
            A(f"ds_bpermute_b32 v{RA+j}, v{RA+j}, v{EXC}")
        A("@st x2")
        tab(4)
        A("@st x3")
        A(f"""
        v_readlane_b32 s80, v{INC}, 40
        v_readlane_b32 s81, v{INC}, 16
        v_readlane_b32 s82, v{INC}, 24
        s_cmp_gt_u32 s80, {CAPT*512}
        s_cbranch_scc1 L2_goslow
        """)
        LATE = env("P2L", 1) == 1 and not G
        if not LATE: p2(range(3), 0)
        A(f"""
        s_cmp_lg_u32 s90, 0
        s_cbranch_scc1 L2_ov2{sx}
        L2_ov2_done{sx}:
        @st x4
        ds_read_b128 v[{VL}:{VL+3}], v27 offset:{6*1024}
        ds_read_b128 v[{SI}:{SI+3}], v27 offset:{5*1024}
        ds_read_b128 v[{CK}:{CK+3}], v31 offset:{3*1024}
        ds_read_b128 v[{ID}:{ID+3}], v27 offset:{1*1024}
        ds_read_b128 v[{ID+4}:{ID+7}], v27 offset:{2*1024}
        """)
        if G:
            for k in range(4):
                if k: A(f"v_xor_b32 v{GQ+1}, {64*k}, v{GQ}")
                for nt in range(3):
                    h = GH[nt][k]
                    A(f"ds_read_b128 v[{h}:{h+3}], v{GQ+1 if k else GQ} offset:{AL+4096*nt}")
        else:
            A(f"ds_read_b128 v[{IX}:{IX+3}], v27 offset:{7*1024}")
            A(f"ds_read_b128 v[{IX+4}:{IX+7}], v27 offset:{7*1024}")
        A("@st x5")
        tab(5)
        WP = env("WP", 1)
        def wl():
            for k in range(4):
                A(f"buffer_load_dwordx4 v[{GW+4*k}:{GW+4*k+3}], v30, s[48:51], s32 offen offset:{1024*k}")
                A(f"buffer_load_dwordx4 v[{GW+16+4*k}:{GW+16+4*k+3}], v30, s[48:51], s33 offen offset:{1024*k}")
        assert WP == 1
        A(f"""
        @st e
        s_add_u32 s83, s80, 1023
        s_lshr_b32 s83, s83, 10
        s_lshl_b32 s83, s83, 9
        s_add_u32 s79, s80, 511
        s_andn2_b32 s79, s79, 511
        s_cmp_eq_u32 s26, 0
        s_cselect_b32 s76, 0, s83
        s_cselect_b32 s77, s83, s79
        v_cmp_ge_u32 vcc, s76, v{INC}
        s_min_u32 s78, s83, s80
        s_cmp_lt_u32 s82, s78
        s_cselect_b32 s73, 1, s29
        s_cmp_gt_u32 s81, s83
        s_cselect_b32 s73, 1, s73
        {"s_mov_b32 s73, 1" if "fixed" in XF_ else ""}
        s_min_u32 s78, s77, s80
        s_bcnt1_i32_b64 s28, vcc
        s_add_u32 s79, s28, 7
        s_cmp_lg_u32 s73, 0
        v_readlane_b32 s81, v{INC}, s79
        s_cbranch_scc1 L2_fixed{sx}
        s_andn2_b32 s82, s81, 511
        s_min_u32 s82, s82, s77
        v_cmp_ge_u32 vcc, s82, v{INC}
        s_cmp_eq_u32 s27, 1
        s_cselect_b32 s94, s76, s82
        v_mov_b64 v[44:45], 0
        s_bcnt1_i32_b64 s83, vcc
        s_add_u32 s79, s83, 7
        v_readlane_b32 s64, v{INC}, s79
        s_andn2_b32 s65, s64, 511
        s_min_u32 s65, s65, s77
        v_cmp_ge_u32 vcc, s65, v{INC}
        s_mov_b32 s66, s82
        s_mov_b32 s67, s65
        s_bcnt1_i32_b64 s68, vcc
        s_add_u32 s79, s68, 7
        v_readlane_b32 s69, v{INC}, s79
        s_cmp_lt_u32 s69, s78
        s_cbranch_scc1 L2_chfix{sx}
        L2_chsel{sx}:
        s_cmp_eq_u32 s27, 1
        s_cselect_b32 s95, s66, s67
        s_cselect_b32 s28, s28, s83
        s_cmp_eq_u32 s27, 0
        s_cselect_b32 s94, s65, s94
        s_cselect_b32 s95, s77, s95
        s_cselect_b32 s28, s68, s28
        L2_chdone{sx}:
        @st f
        """)
        tab(6)
        A(f"""
        s_lshl_b32 s79, s28, 2
        s_movk_i32 s81, -32
        s_waitcnt lgkmcnt({14 if G else 4})
        v_add_u32 v23, s79, v{CJ}
        v_and_or_b32 v23, v23, s81, v{J4}
        v_min_u32 v23, 164, v23
        ds_bpermute_b32 v{VLO}, v23, v{EXC}
        ds_bpermute_b32 v{VHI}, v23, v{INC}
        """)
        if LATE: p2(range(3), None)
        def post1():
            A(f"""
            s_min_u32 s58, s95, s80
            s_sub_u32 s95, s95, s94
            s_lshr_b32 s95, s95, 9
            {"s_min_u32 s95, s95, 64" if "clamp" in XF_ else ""}
            s_lshl_b32 s79, s28, 8
            s_add_u32 s79, s79, {AL0}
            s_sub_u32 s78, s79, 1024
            v_add_u32 v{XA}, s79, v{CK}
            v_add_u32 v{XA+1}, s78, v{CK}
            v_add_u32 v{VX}, s94, v{VX}
            v_lshlrev_b32 v22, 5, v23
            v_and_or_b32 v{XA}, v{XA}, v{MK}, v{B1}
            v_and_or_b32 v{XA+1}, v{XA+1}, v{MK}, v{B2}
            v_add3_u32 v{VSC}, v{VSC}, v22, s94
            v_xor_b32 v{XA+2}, 64, v{XA}
            v_xor_b32 v{XA+3}, 64, v{XA+1}
            v_add_u32 v{VA}, s31, v{VA}
            v_add_u32 v29, {MB}, v{TID16}
            {f"v_xor_b32 v{GQ+2}, s35, v{GQ+2}" if G else ""}
            s_mov_b32 s75, s95
            """)
        def post2():
            A(f"""
            s_movk_i32 s78, -56
            s_movk_i32 s79, 72
            v_cmp_le_u32 s[60:61], s94, v{VLO}
            v_cmp_ge_u32 s[62:63], s58, v{VHI}
            v_cmp_gt_u32 s[64:65], s58, v{VLO}
            v_cmp_lt_u32 s[66:67], s94, v{VHI}
            v_add_u32 v{VHI}, -16, v{VHI}
            v_and_b32 v{VLO}, 0xffffffc0, v{VLO}
            v_and_b32 v{VHI}, 0xffffffc0, v{VHI}
            v_add3_u32 v{VLO}, v{VLO}, v22, s78
            v_add3_u32 v{VHI}, v{VHI}, v22, s79
            """)
        PM = env("PMG" if G else "PM", 2)
        A(f"""
        v_add_u32 v{VL}, s94, v{VL}
        v_mov_b64 v[46:47], 0
        v_mov_b64 v[24:25], 0
        v_mov_b64 v[10:11], 0
        v_mov_b64 v[12:13], 0
        v_mov_b64 v[14:15], 0
        s_mov_b32 s82, {TAB}
        s_mul_i32 s83, s3, 6
        s_add_u32 s83, s83, {TAB - 6}
        """)
        WE = env("WE", 0)
        if G and WE: wl()
        if PM < 2: post1()
        if PM < 1:
            A(f"s_waitcnt lgkmcnt({3 if LATE else 0})")
            post2()
        A("@stamp 5")
        tab(7)
        if G and not WE: wl()
        A(f"""
        s_mov_b32 m0, s31
        s_waitcnt vmcnt({8 if G else 0}) lgkmcnt(0)
        s_barrier
        @stamp 6
        """)
        A(f"ds_read_b64 v[2:3], v{TID16}")
        A(f"ds_read_b64 v[4:5], v28")
        if not G: ixrd(VL, 0)
        XP = [int(x) for x in os.environ.get("XP", "3,3,4,4").split(",")]
        def XX(p):
            for k in range(4):
                if XP[k] == p: X(k)
        if PM == 2: post1()
        XX(0)
        A(f"s_waitcnt lgkmcnt({1 if G else 5})")
        d_rd(DS[0])
        A(f"""
        s_cmp_ge_u32 s72, s80
        s_waitcnt lgkmcnt(6)
        s_cbranch_scc1 L2_nod1{sx}
        """)
        d_rd(DS[1])
        A(f"L2_nod1{sx}:")
        A("@st d1")
        def early(lbl, cond):
            A(f"""
            {cond}
            s_cbranch_scc1 {lbl}
            """)
            dma()
            ixrd(VL, 1)
            A(f"{lbl}:")
        if not G:
            if ED == 3: early("L2_late0", "s_cmp_eq_u32 s27, 0")
            elif ED in (1, 2): early("L2_late0", "s_cmp_lg_u32 s27, 1")
        XX(1)
        A("@st d2")
        if PM >= 1: post2()
        d_ad(DS[0])
        XX(2)
        A(f"s_waitcnt lgkmcnt(0)")
        A("@st d4")
        d_math(DS[0])
        A("@st d5")
        XX(3)
        A(f"""
        s_cmp_ge_u32 s72, s80
        s_cbranch_scc1 L2_nod2{sx}
        """)
        d_ad(DS[1])
        d_math(DS[1])
        A(f"L2_nod2{sx}:")
        XX(4)
        if G:
            ixrd(VL, 0)
            lcset()
            A(f"s_mov_b32 s76, {NLOG2E}")
            A(f"s_mov_b32 s77, {NLOG2E}")
            A(f"s_mov_b32 s57, 0")
            for nt in range(3):
                for ab in range(2):
                    d = GD[2*nt+ab]
                    A(f"v_pk_mul_f32 v[{d}:{d+1}], v[{d}:{d+1}], s[76:77]")
                    A(f"v_pk_mul_f32 v[{d+2}:{d+3}], v[{d+2}:{d+3}], s[76:77]")
                o = 32 + 4 * nt
                for ab in range(2):
                    d = GD[2*nt+ab]
                    A(f"v_cvt_pk_bf16_f32 v{o+2*ab}, v{d}, v{d+1}")
                    A(f"v_cvt_pk_bf16_f32 v{o+2*ab+1}, v{d+2}, v{d+3}")
                A(f"ds_write_b128 v{GQ+2}, v[{o}:{o+3}] offset:{AL+4096*nt}")
            A("s_branch L2_b3")
        else:
            if ED == 1: early("L2_late1", "s_cmp_lg_u32 s27, 2")
            elif ED == 0: early("L2_late1", "s_cmp_eq_u32 s27, 0")
        def ool():
            A(f"""
            L2_fixed{sx}:
            v_mov_b64 v[44:45], 0
            s_add_u32 s79, s27, 2
            s_sub_u32 s82, s27, 1
            s_cmp_eq_u32 s27, 0
            s_cselect_b32 s79, s79, s82
            s_mul_i32 s82, s26, 3
            s_add_u32 s79, s79, s82
            s_lshl_b32 s79, s79, 3
            s_add_u32 s28, s79, 1
            s_add_u32 s82, s79, 8
            v_readlane_b32 s94, v{INC}, s79
            v_readlane_b32 s95, v{INC}, s82
            s_min_u32 s95, s95, s80
            s_cmp_eq_u32 s94, s95
            s_cselect_b32 s82, 0, 511
            s_add_u32 s95, s95, s82
            s_andn2_b32 s94, s94, 511
            s_andn2_b32 s95, s95, 511
            s_branch L2_chdone{sx}
            L2_ov2{sx}:
            """)
            for j in (3, 4):
                A(f"ds_bpermute_b32 v{RA+j}, v{RA+j}, v{EXC}")
            p2((3, 4), 0)
            A(f"""
            s_branch L2_ov2_done{sx}
            L2_chfix{sx}:
            s_add_u32 s67, s64, 511
            s_andn2_b32 s67, s67, 511
            s_min_u32 s67, s67, s77
            s_add_u32 s68, s83, 8
            s_min_u32 s68, s68, 41
            s_add_u32 s79, s68, 7
            v_readlane_b32 s69, v{INC}, s79
            s_cmp_ge_u32 s69, s78
            s_cbranch_scc1 L2_chsel{sx}
            s_add_u32 s66, s81, 511
            s_andn2_b32 s66, s66, 511
            s_min_u32 s66, s66, s77
            s_add_u32 s83, s28, 8
            s_min_u32 s83, s83, 41
            s_add_u32 s79, s83, 7
            v_readlane_b32 s64, v{INC}, s79
            s_andn2_b32 s65, s64, 511
            s_min_u32 s65, s65, s77
            s_add_u32 s67, s64, 511
            s_andn2_b32 s67, s67, 511
            s_min_u32 s67, s67, s77
            s_add_u32 s68, s83, 8
            s_min_u32 s68, s68, 41
            s_branch L2_chsel{sx}
            """)
        OOL.append(ool)
    section(False)
    assert ZA & 64 == 0
    A(f"""
    L2_b3:
    @st d6
    {"s_cmp_eq_u32 s27, 1" if ED == 2 else "s_cmp_lg_u32 s27, 0"}
    s_waitcnt lgkmcnt(0)
    @st d7
    s_barrier
    s_cbranch_scc1 L2_w1
    """)
    dma()
    ixrd(VL, 1)
    A(f"""
    {"s_cmp_lg_u32 s27, 0" if ED == 2 else ""}
    {"s_cbranch_scc1 L2_w1" if ED == 2 else ""}
    v_lshrrev_b32 v{AF}, 4, v{TID16}
    s_add_u32 m0, s34, {H2}
    v_and_b32 v{AF}, 0xf0, v{AF}
    s_movk_i32 s76, 8192
    v_xor_b32 v{AF}, v{AF}, v{TID16}
    buffer_load_dwordx4 v{AF}, s[52:55], 0 offen lds
    s_add_u32 m0, s34, {H2 + 4096}
    s_nop 0
    buffer_load_dwordx4 v{AF}, s[52:55], s84 offen lds
    s_add_u32 m0, s34, {H2 + 8192}
    s_nop 0
    buffer_load_dwordx4 v{AF}, s[52:55], s76 offen lds
    s_mov_b32 m0, s31
    L2_w1:
    @stamp 7
    ds_read_b64_tr_b16 v[{EXT}:{EXT+1}], v{XA}
    ds_read_b64_tr_b16 v[{EXT+2}:{EXT+3}], v{XA+1}
    ds_read_b128 v[{XF}:{XF+3}], v{VX}
    ds_read_b64_tr_b16 v[{EXT+4}:{EXT+5}], v{XA+2}
    ds_read_b64_tr_b16 v[{EXT+6}:{EXT+7}], v{XA+3}
    v_mov_b64 v[{SF}:{SF+1}], 0
    v_mov_b64 v[{SF+2}:{SF+3}], 0
    s_waitcnt vmcnt(0)
    """)
    def a_reads():
        for i in range(4):
            A(f"ds_read_b128 v[{AF+4*i}:{AF+4*i+3}], v{VA} offset:{32*i}")
    a_reads()
    A(f"""
    ds_write_b128 v29, v[{SF}:{SF+3}]
    s_mov_b64 exec, 1
    ds_add_u32 v{SF}, v{V16} offset:{FLG}
    s_mov_b64 exec, -1
    s_cmp_gt_u32 s29, 1
    s_cbranch_scc1 L2_noz
    """)
    A(mf32(AC0, SF, SF, None))
    A(mf32(AC1, SF, SF, None))
    A("L2_noz:")
    A(mf32(E1, SF, SF, None))
    A(f"""
    v_mov_b64 v[{SF+4}:{SF+5}], 0
    v_mov_b64 v[{SF+6}:{SF+7}], 0
    s_mov_b32 s76, 0x3e803e80
    s_mov_b32 s77, 0x3e803e80
    v_mov_b64 v[{ON}:{ON+1}], s[76:77]
    v_mov_b64 v[{ON+2}:{ON+3}], s[76:77]
    v_add_u32 v{VL}, 1024, v{VL}
    s_cmp_eq_u32 s27, 0
    s_cselect_b32 s80, {os.environ.get("PR0", "0")}, {TH[0]}
    s_cmp_eq_u32 s95, 0
    s_waitcnt lgkmcnt(2)
    {"s_memrealtime s[100:101]" if DIAG else ""}
    s_cbranch_scc1 L2_zero
    @stamp 8
    {"s_setprio 3" if "noprio" not in XF_ else ""}
    {"s_cmp_lg_u32 s27, 0" if P0 < 3 else ""}
    {"s_cbranch_scc1 L2_p3" if P0 < 3 else ""}
    {f"s_setprio {P0}" if P0 < 3 else ""}
    {"L2_p3:" if P0 < 3 else ""}
    s_cmp_lt_u32 s95, 2
    s_cbranch_scc1 L2_nodma1
    """)
    dma()
    A("L2_nodma1:")
    A(mf32(T0, AF, ID, None))
    A(mf32(T0, AF+4, ID+4, T0))
    A(mf32(T0, XF, EXT, T0))
    A("s_nop 9")
    A("s_cbranch_scc1 L2_last")
    A.ins.append(I(".p2align 6"))
    A("L2_loop:")
    def run(ops, ins):
        for i, v in enumerate(ops):
            for x in ins.get(i, []):
                if callable(x): x()
                else: A(x)
            A(v)
    ex = lambda e, t: [f"v_exp_f32 v{e+i}, v{t+i}" for i in range(16)]
    rc = lambda e: [f"v_rcp_f32 v{e+i}, v{e+i}" for i in range(16)]
    mu = lambda e, t: [f"v_pk_mul_f32 v[{e+2*i}:{e+2*i+1}], v[{e+2*i}:{e+2*i+1}], v[{t+2*i}:{t+2*i+1}]" for i in range(8)]
    if "nopk" in XF_:
        mu = lambda e, t: [f"v_mul_f32 v{e+i}, v{e+i}, v{t+i}" for i in range(16)]
    def dma_next():
        if "nodma" in XF_: return
        A("s_cmp_lt_u32 s95, 3")
        A("s_cbranch_scc1 L2_nodma2")
        dma()
        A("L2_nodma2:")
    def prio():
        if "noprio" in XF_: return
        A(f"""
        s_cmp_gt_u32 s95, s80
        s_cbranch_scc1 L2_prd
        s_setprio 2
        s_cmp_gt_u32 s95, {TH[1]}
        s_cbranch_scc1 L2_prd
        s_setprio 1
        s_cmp_gt_u32 s95, {TH[2]}
        s_cbranch_scc1 L2_prd
        s_setprio 0
        L2_prd:
        """)
    run(ex(E0, T0), {0: [mf32(T1, AF+8, ID, None)], 3: [mf32(T1, AF+12, ID+4, T1)], 6: [mf32(T1, XF, EXT+4, T1)],
                     10: [smf(AC1, SF, E1, SI)], 14: [smf(AC1, SF+4, E1+8, SI)]})
    run(ex(E1, T1), {2: [mf32(E0, ON, ON, E0)],
                     6: [f"v_med3_i32 v{SF+6}, v{VSC}, v{VLO}, v{VHI}"] +
                        [f"ds_read_b64_tr_b16 v[{SF+2*r}:{SF+2*r+1}], v{SF+6} offset:{16*r}" for r in range(4)],
                     10: [f"ds_read_b128 v[{XF}:{XF+3}], v{VX} offset:512", lambda: ixrd(VL, 0)],
                     14: [f"v_add_u32 v{VX}, s88, v{VX}", f"v_add_u32 v{VSC}, s88, v{VSC}", f"v_add_u32 v{VL}, s88, v{VL}"]})
    run(rc(E0), {2: [mf32(E1, ON, ON, E1)], 4: ([] if "nowait" in XF_ else ["s_waitcnt vmcnt(0)"]) + [a_reads]})
    run(mu(E0, T0), {})
    run(rc(E1), {0: ["s_waitcnt lgkmcnt(0)", mf32(T0, AF, ID, None)], 1: [dma_next], 3: [mf32(T0, AF+4, ID+4, T0)], 6: [mf32(T0, XF, EXT, T0)],
                 10: [smf(AC0, SF, E0, SI)], 14: [smf(AC0, SF+4, E0+8, SI)]})
    run(mu(E1, T1), {2: [prio], 6: ["s_sub_u32 s95, s95, 1", "s_cmp_gt_u32 s95, 1"]})
    A("s_cbranch_scc1 L2_loop")
    W0 = [[96, 100, 104, 108], [128, 132, 136, 140]]
    W1 = [[144, 148, 152, 116], [0, 4, 8, 12]]
    def pf1():
        A(f"""
        v_lshlrev_b32 v{VL}, 4, v{LANE}
        s_lshl_b32 s72, s24, 15
        """)
        for k in range(4):
            A(f"s_add_u32 s{78+k}, s24, {k}")
            A(f"s_and_b32 s{78+k}, s{78+k}, 3")
            A(f"s_lshl_b32 s{82+k}, s{78+k}, 6")
            A(f"s_lshl_b32 s{78+k}, s{78+k}, 10")
            A(f"s_add_u32 s{78+k}, s{78+k}, s72")
            A(f"s_add_u32 s{86+k}, s{78+k}, 16384")
            A(f"buffer_load_dwordx4 v[{W0[0][k]}:{W0[0][k]+3}], v{VL}, s[48:51], s{78+k} offen")
            A(f"buffer_load_dwordx4 v[{W0[1][k]}:{W0[1][k]+3}], v{VL}, s[48:51], s{86+k} offen")
        A("s_add_u32 s76, s72, 4096")
        A("s_add_u32 s77, s72, 20480")
        for k in range(4):
            A(f"buffer_load_dwordx4 v[{W1[0][k]}:{W1[0][k]+3}], v{VL}, s[48:51], s76 offen offset:{1024*k}")
    def pf2():
        for k in range(4):
            A(f"buffer_load_dwordx4 v[{W1[1][k]}:{W1[1][k]+3}], v{VL}, s[48:51], s77 offen offset:{1024*k}")
    def cond(f, lbl):
        def g():
            A("s_cmp_lg_u32 s27, 0")
            A(f"s_cbranch_scc1 {lbl}")
            f()
            A(f"{lbl}:")
        return g
    A("L2_last:")
    run(ex(E0, T0), {0: [mf32(T1, AF+8, ID, None)], 3: [mf32(T1, AF+12, ID+4, T1)], 6: [mf32(T1, XF, EXT+4, T1)],
                     8: [cond(pf1, "L2_npf1")],
                     10: [smf(AC1, SF, E1, SI)], 14: [smf(AC1, SF+4, E1+8, SI)]})
    run(ex(E1, T1), {2: [mf32(E0, ON, ON, E0)],
                     6: [f"v_med3_i32 v{SF+6}, v{VSC}, v{VLO}, v{VHI}"] +
                        [f"ds_read_b64_tr_b16 v[{SF+2*r}:{SF+2*r+1}], v{SF+6} offset:{16*r}" for r in range(4)]})
    run(rc(E0), {2: [mf32(E1, ON, ON, E1)]})
    run(mu(E0, T0), {})
    run(rc(E1), {0: ["s_waitcnt lgkmcnt(0)", cond(pf2, "L2_npf2")],
                 2: [smf(AC0, SF, E0, SI)], 6: [smf(AC0, SF+4, E0+8, SI)]})
    if "noprio" not in XF_:
        A("s_setprio 3")
    run(mu(E1, T1), {6: [smf(AC1, SF, E1, SI)]})
    A(smf(AC1, SF+4, E1+8, SI))
    A("L2_done:")
    A("@stamp 9")
    def zero():
        A("L2_zero:")
        A("s_cmp_lg_u32 s27, 0")
        A("s_cbranch_scc1 L2_done")
        pf1(); pf2()
        A("s_branch L2_done")
    OOL.append(zero)
    FA, WV, t4, t5, t6, t7, t10 = 112, 162, 157, 158, 159, 160, 161
    H, D = 16, 64
    A(f"""
    s_cmp_lg_u32 s29, 0
    s_cbranch_scc1 L2_slownext
    L2_flush:
    v_mov_b32 v{t5}, 0
    L2_flw:
    ds_read_b32 v{t6}, v{t5} offset:{FLG}
    v_lshrrev_b32 v{t4}, 5, v{LANE}
    v_and_b32 v{t7}, 31, v{LANE}
    s_lshl_b32 s72, s25, 7
    s_add_u32 s76, s72, {WX}
    v_lshl_add_u32 v{t10}, v{t7}, 1, s76
    v_mov_b64 v[{WV}:{WV+1}], 0
    s_mul_i32 s77, s28, {MSTR}
    s_add_u32 s77, s77, s72
    s_add_u32 s77, s77, {MB - MSTR}
    ds_read_u16_d16_hi v{WV}, v{t10}
    ds_read_u16_d16_hi v{WV+1}, v{t10} offset:64
    v_lshl_add_u32 v{t7}, v{t7}, 2, s77
    v_subrev_u32 v{t4}, s28, v{t4}
    s_movk_i32 s76, {MSTR}
    """)
    for q in range(4):
        if q: A(f"v_add_u32 v{FA+q}, {2*q}, v{t4}")
        A(f"v_and_b32 v{FA+q}, 7, v{FA+q if q else t4}")
        A(f"v_mad_u32_u24 v{FA+q}, v{FA+q}, s76, v{t7}")
    A(f"""
    s_and_b32 s56, s60, s62
    s_and_b32 s58, s64, s66
    s_andn2_b32 s58, s58, s56
    s_cmp_lg_u32 s73, 0
    s_cselect_b32 s56, -1, s56
    s_cselect_b32 s58, 0, s58
    s_mov_b32 s76, {f2u(DELTA)}
    s_waitcnt lgkmcnt(0)
    v_cmp_gt_u32 vcc, {12*16}, v{t6}
    s_cbranch_vccnz L2_flw
    """)
    for q in range(4): A(f"v_mul_f32 v{AC0+4*q}, s76, v{AC0+4*q}")
    for q in range(4): A(f"v_mul_f32 v{AC1+4*q}, s76, v{AC1+4*q}")
    for q in range(4): A(f"v_cvt_pk_bf16_f32 v{AC0+4*q}, v{AC0+4*q}, v{AC1+4*q}")
    bit = lambda sl: (sl & 3) + 16 * (sl >> 2)
    for q in range(4):
        A(f"s_bfe_i32 exec_lo, s56, {0x10000 + bit(2*q)}")
        A(f"s_bfe_i32 exec_hi, s56, {0x10000 + bit(2*q+1)}")
        A(f"ds_write_b32 v{FA+q}, v{AC0+4*q}")
    for q in range(4):
        A(f"s_bfe_i32 exec_lo, s58, {0x10000 + bit(2*q)}")
        A(f"s_bfe_i32 exec_hi, s58, {0x10000 + bit(2*q+1)}")
        A(f"ds_pk_add_bf16 v{FA+q}, v{AC0+4*q}")
    R15, G4, SA = 120, 121, 124
    A(f"""
    s_mov_b64 exec, 1
    ds_add_u32 v{t5}, v{V16} offset:{FLG}
    s_mov_b64 exec, -1
    s_cmp_lg_u32 s27, 0
    s_setprio 0
    s_cbranch_scc1 L2_kp
    {f"s_setprio {PG}" if PG else ""}
    v_and_b32 v{R15}, 15, v{LANE}
    v_lshrrev_b32 v{G4}, 4, v{LANE}
    v_xor_b32 v122, v{R15}, v{G4}
    v_lshl_add_u32 v122, v{R15}, 4, v122
    s_mov_b32 s76, {H2}
    v_lshl_add_u32 v122, v122, 4, s76
    """)
    for k in range(4):
        A(f"v_xor_b32 v123, s{82+k}, v122")
        for nt in range(3):
            A(f"ds_read_b128 v[{H+16*nt+4*k}:{H+16*nt+4*k+3}], v123 offset:{4096*nt}")
    A(f"""
    L2_kp:
    @stamp 10
    """)
    for q in range(4):
        a, b = AC0 + 4*q, AC1 + 4*q
        A(f"v_mul_f32 v{a+1}, v{a+1}, v{WV}")
        A(f"v_pk_mul_f32 v[{a+2}:{a+3}], v[{a+2}:{a+3}], v[{WV}:{WV+1}] op_sel_hi:[1,0]")
        A(f"v_fmac_f32 v{a+1}, v{b+1}, v{WV+1}")
        A(f"v_pk_fma_f32 v[{a+2}:{a+3}], v[{b+2}:{b+3}], v[{WV}:{WV+1}], v[{a+2}:{a+3}] op_sel:[0,1,0]")
    A(f"""
    v_bfe_u32 v{t4}, v{LANE}, 3, 1
    v_lshrrev_b32 v{t6}, 4, v{LANE}
    v_bfrev_b32 v{t6}, v{t6}
    v_lshrrev_b32 v{t6}, 30, v{t6}
    v_lshl_add_u32 v{t4}, v{t4}, 2, v{t6}
    """)
    for q in (0, 2):
        for c in (1, 2, 3):
            A(f"v_permlane16_swap_b32 v{AC0+4*q+c}, v{AC0+4*q+4+c}")
    A(f"""
    s_lshl_b32 s76, s24, 7
    s_add_u32 s76, s76, {PP}
    v_lshl_add_u32 v{t6}, v{t4}, 4, s76
    v_subrev_u32 v{t4}, s28, v{t4}
    """)
    for q in (0, 2):
        a = AC0 + 4*q
        A(f"v_add_f32 v{a+1}, v{a+1}, v{a+5}")
        A(f"v_pk_add_f32 v[{a+2}:{a+3}], v[{a+2}:{a+3}], v[{a+6}:{a+7}]")
    A(f"v_and_b32 v{t4}, 7, v{t4}")
    A(f"v_add_u32 v{AC0}, s28, v{t4}")
    for c in (1, 2, 3):
        A(f"v_add_f32_dpp v{AC0+c}, v{AC0+c}, v{AC0+c} row_ror:8 row_mask:0xf bank_mask:0x3")
    for c in (1, 2, 3):
        A(f"v_add_f32_dpp v{AC0+c}, v{AC0+8+c}, v{AC0+8+c} row_ror:8 row_mask:0xf bank_mask:0xc")
    for m in ("row_half_mirror", "quad_perm:[1,0,3,2]", "quad_perm:[2,3,0,1]"):
        for c in (1, 2, 3):
            A(f"v_add_f32_dpp v{AC0+c}, v{AC0+c}, v{AC0+c} {m} row_mask:0xf bank_mask:0xf")
    A(f"""
    s_mov_b32 exec_lo, 0x01010101
    s_mov_b32 exec_hi, 0x01010101
    ds_write_b128 v{t6}, v[{AC0}:{AC0+3}]
    s_mov_b64 exec, 1
    ds_add_rtn_u32 v{t4}, v{t5}, v{V16} offset:{FL3}
    s_mov_b64 exec, -1
    s_cmp_lg_u32 s27, 0
    s_cbranch_scc1 L2_other0
    """)
    D = 68
    A(f"s_waitcnt vmcnt(8) lgkmcnt(2)")
    for k in range(4):
        for nt in range(3):
            for ab in range(2):
                d = D + 8 * nt + 4 * ab
                A(mf16(d, W0[ab][k], H+16*nt+4*k, d if k else None))
        if k == 0:
            A(f"""
            v_lshlrev_b32 v{G4}, 4, v{G4}
            v_lshl_add_u32 v{SA}, v{R15}, 8, v{G4}
            v_add_u32 v{SA+1}, 4096, v{SA}
            v_add_u32 v{SA+2}, 8192, v{SA}
            """)
        if k == 1:
            A(f"""
            v_mul_u32_u24 v{R15}, {MSTR}, v{R15}
            s_mov_b32 s76, {MB}
            v_add3_u32 v{SA+3}, s76, v{R15}, v{G4}
            s_add_u32 s60, s20, s71
            s_addc_u32 s61, s21, 0
            s_mov_b32 s62, s54
            s_mov_b32 s63, 0x00020000
            """)
    MF = [W0[0], W0[1], [H+12, H+28, H+44, 92]]
    A(f"""
    s_mov_b32 s78, {NLOG2E}
    s_mov_b32 s79, {NLOG2E}
    s_mov_b32 s80, {NLN2}
    s_mov_b32 s81, {NLN2}
    """)
    for nt in range(3):
        h = H + 16 * nt
        for i in range(4):
            A(f"v_lshlrev_b32 v{h+4+2*i}, 16, v{h+i}")
            A(f"v_and_b32 v{h+5+2*i}, 0xffff0000, v{h+i}")
    for i in range(12):
        A(f"v_pk_mul_f32 v[{D+2*i}:{D+2*i+1}], v[{D+2*i}:{D+2*i+1}], s[78:79]")
    A(f"""
    s_waitcnt vmcnt(0)
    s_setprio 3
    @st g
    L2_gsp:
    ds_read_b32 v{t6}, v{t5} offset:{FLG}
    s_waitcnt lgkmcnt(0)
    v_cmp_ne_u32 vcc, {24*16}, v{t6}
    s_cbranch_vccz L2_gspd
    s_sleep {os.environ.get("GSL", "1")}
    s_branch L2_gsp
    L2_gspd:
    @stamp 11
    """)
    for nt in range(3):
        for k in range(4):
            A(f"ds_read_b128 v[{MF[nt][k]}:{MF[nt][k]+3}], v{SA+3} offset:{nt*16*MSTR + 64*k}")
    def mm(nt):
        o = []
        for k in range(4):
            o.append(f"s_waitcnt lgkmcnt({11 - 4*nt - k})")
            for ab in range(2):
                d = D + 8 * nt + 4 * ab
                o.append(mf16(d, W1[ab][k], MF[nt][k], d))
        return o
    def fin(nt):
        d = D + 8 * nt; h = H + 16 * nt
        tm = lambda i: MF[nt][i >> 2] + (i & 3)
        o = []
        o += [f"v_exp_f32 v{tm(i)}, v{d+i}" for i in range(8)]
        o += [f"v_pk_add_f32 v[{tm(2*i)}:{tm(2*i+1)}], v[{tm(2*i)}:{tm(2*i+1)}], 1.0 op_sel_hi:[1,0]" for i in range(4)]
        o += [f"v_rcp_f32 v{tm(i)}, v{tm(i)}" for i in range(8)]
        o += [f"v_pk_mul_f32 v[{tm(2*i)}:{tm(2*i+1)}], v[{tm(2*i)}:{tm(2*i+1)}], v[{d+2*i}:{d+2*i+1}]" for i in range(4)]
        o += [f"v_pk_fma_f32 v[{tm(2*i)}:{tm(2*i+1)}], v[{tm(2*i)}:{tm(2*i+1)}], s[80:81], v[{h+4+2*i}:{h+5+2*i}]" for i in range(4)]
        o += [f"v_cvt_pk_bf16_f32 v{h+i}, v{tm(2*i)}, v{tm(2*i+1)}" for i in range(4)]
        o += [f"buffer_store_dwordx4 v[{h}:{h+3}], v{SA+nt}, s[60:63], s82 offen"]
        return o
    for x in mm(0): A(x)
    for x in mm(1): A(x)
    f0 = fin(0); m2 = mm(2)
    for i, x in enumerate(f0):
        A(x)
        if i < 8 and i % 2 == 1:
            for y in m2[3*(i//2):3*(i//2)+3]: A(y)
    for x in fin(1): A(x)
    for x in fin(2): A(x)
    A(f"""
    L2_other0:
    s_waitcnt lgkmcnt(0)
    v_readfirstlane_b32 s56, v{t4}
    """)
    A(f"""
    @wait
    L2_other:
    @stamp 13
    @stamp 14 real
    @dump 8
    s_mov_b64 exec, -1
    {"s_cmp_eq_u32 s24, 11" if DIAG else ""}
    {"s_cbranch_scc1 L2_diag" if DIAG else ""}
    s_cmp_lg_u32 s56, {11*16}
    s_cbranch_scc1 L2_exit
    v_add_u32 v1, 1, v{LANE}
    v_and_b32 v4, 7, v1
    v_lshlrev_b32 v4, 4, v4
    v_add_u32 v4, {PP}, v4
    s_mul_i32 s72, s3, 6
    v_mul_u32_u24 v2, 6, v{LANE}
    v_mov_b64 v[12:13], 0
    v_mov_b32 v14, 0
    buffer_load_short_d16_hi v12, v2, s[44:47], s72 offen
    buffer_load_short_d16_hi v13, v2, s[44:47], s72 offen offset:2
    buffer_load_short_d16_hi v14, v2, s[44:47], s72 offen offset:4
    """)
    for w in range(12):
        A(f"ds_read_b128 v[{20+4*w}:{23+4*w}], v4 offset:{128*w}")
    A(f"""
    s_add_u32 s73, s72, 2560000
    s_add_u32 s60, s20, s73
    s_addc_u32 s61, s21, 0
    s_mul_i32 s62, s70, 6
    s_mov_b32 s63, 0x00020000
    v_mov_b64 v[16:17], 0
    v_mov_b64 v[18:19], 0
    s_mov_b32 s76, {f2u(-0.6931471805599453 * DELTA)}
    """)
    for w in range(12):
        A(f"s_waitcnt lgkmcnt({11-w})")
        A(f"v_cmp_eq_u32 vcc, v{20+4*w}, v1")
        A(f"s_mov_b64 exec, vcc")
        A(f"v_add_f32 v17, v17, v{21+4*w}")
        A(f"v_pk_add_f32 v[18:19], v[18:19], v[{22+4*w}:{23+4*w}]")
        A(f"s_mov_b64 exec, -1")
    A(f"""
    s_waitcnt vmcnt(0)
    v_fma_f32 v12, v17, s76, v12
    v_fma_f32 v13, v18, s76, v13
    v_fma_f32 v14, v19, s76, v14
    v_cvt_pk_bf16_f32 v12, v12, v13
    v_cvt_pk_bf16_f32 v14, v14, v14
    buffer_store_short v12, v2, s[60:63], 0 offen
    buffer_store_short_d16_hi v12, v2, s[60:63], 0 offen offset:2
    buffer_store_short v14, v2, s[60:63], 0 offen offset:4
    L2_exit:
    s_endpgm
    """)
    if DIAG:
        A(f"""
        L2_diag:
        s_memrealtime s[92:93]
        s_add_u32 s76, s22, {DBG1_OFF}
        s_addc_u32 s77, s23, 0
        s_load_dwordx2 s[78:79], s[76:77], 0
        s_waitcnt lgkmcnt(0)
        """)
        A({"k2": "s_sub_u32 s80, s92, s98", "k1k2": "s_sub_u32 s80, s98, s78", "k1": "s_sub_u32 s80, s79, s78", "pro": "s_sub_u32 s80, s100, s98", "0": "s_mov_b32 s80, 0"}[DIAG])
        A(f"""
        s_min_u32 s80, s80, 4000
        s_add_u32 s80, s80, 150
        s_mov_b32 s81, 0
        L2_dl:
        s_sleep 2
        s_memrealtime s[94:95]
        s_add_u32 s81, s81, 1
        s_waitcnt lgkmcnt(0)
        s_sub_u32 s82, s94, s92
        s_cmp_gt_u32 s81, 2000
        s_cbranch_scc1 L2_exit2
        s_cmp_lt_u32 s82, s80
        s_cbranch_scc1 L2_dl
        L2_exit2:
        s_endpgm
        """)
    section(True)
    for f in OOL: f()
    A(f"""
    L2_ov1:
    s_cbranch_vccz L2_nolost
    v_mov_b32 v1, 0x100000
    ds_write_b32 v{VZ}, v1 offset:{CNT}
    L2_nolost:
    """)
    p1((3, 4)); pL((3, 4))
    A("s_branch L2_ov1_done")
    A(f"""
    L2_slownext:
    s_mov_b32 s29, 1
    s_add_u32 s30, s30, 768
    s_cmp_ge_u32 s30, 320000
    s_cbranch_scc1 L2_flush
    L2_goslow:
    s_add_u32 s29, s29, 1
    s_waitcnt vmcnt(0) lgkmcnt(0)
    s_barrier
    v_lshrrev_b32 v1, 4, v{TID16}
    v_add_u32 v1, s30, v1
    v_min_u32 v3, 319999, v1
    v_lshlrev_b32 v4, 2, v3
    v_lshlrev_b32 v3, 1, v3
    global_load_dword v7, v4, s[12:13]
    global_load_dword v8, v4, s[10:11]
    global_load_ushort v6, v3, s[8:9]
    s_mov_b32 s73, 320000
    s_mov_b32 s76, 0x05040100
    v_cmp_gt_u32 s[60:61], s73, v1
    s_waitcnt vmcnt(0)
    v_subrev_u32 v7, s3, v7
    v_cmp_gt_u32 s[62:63], s70, v7
    v_lshl_add_u32 v7, v8, 6, v7
    v_lshl_add_u32 v7, v7, 2, 4
    v_lshlrev_b32 v6, 16, v6
    v_mul_f32 v6, {NLOG2E}, v6
    v_cvt_pk_bf16_f32 v6, v6, v6
    v_perm_b32 v7, v6, v7, s76
    s_and_b64 s[60:61], s[60:61], s[62:63]
    v_cndmask_b32 v2, 0, v7, s[60:61]
    v_lshrrev_b32 v5, 8, v8
    v_mov_b64 v[6:7], 0
    v_mov_b64 v[8:9], 0
    v_mov_b32 v3, 0
    v_mov_b32 v4, 0
    s_branch L2_batch
    """)
    A.check_all_edges()
    return A
```
